```python
import torch

def _softmax(x, axis=-1):
    return torch.softmax(x, dim=axis)
def _gelu(x):
    return torch.nn.functional.gelu(x, approximate="tanh")
def _silu(x):
    return torch.nn.functional.silu(x)
def _sigmoid(x):
    return torch.sigmoid(x)
def _layernorm(x, axis=-1, eps=1e-5):
    m = x.mean(dim=axis, keepdim=True)
    v = x.var(dim=axis, keepdim=True, unbiased=False)
    return (x - m) / torch.sqrt(v + eps)
def _scatter_add(tgt, idx, src, axis=0):
    return tgt.clone().index_add_(axis, idx, src)
def _segment_sum(src, seg, n):
    out = torch.zeros((n,) + src.shape[1:], dtype=src.dtype)
    return out.index_add_(0, seg, src)
def _pad(x, pw):
    flat = tuple(v for pair in reversed(pw) for v in pair)
    return torch.nn.functional.pad(x, flat)

kernel_name = 'gated_mix__compressed_kv_cla__linear_attn_block__prompt'

def setup_inputs():

    _w = (lambda a: (lambda t: t.to(torch.bfloat16) if t.is_floating_point() else t)(torch.as_tensor(a)))
    def _A_setup():
        B, H, Sq, Sk, D, M = 1, 32, 2048, 2048, 128, 512
        Dc = 4 * D
        return {
            "x": _w((lambda *s: torch.randn(*s, dtype=torch.bfloat16) * 0.05)(B, Sq, M)),
            "c_kv": _w((lambda *s: torch.randn(*s, dtype=torch.bfloat16) * 1.6)(B, Sk, Dc)),
            "w_q": _w((lambda *s: torch.randn(*s, dtype=torch.bfloat16) * 3.2)(M, H, D) * (M ** -0.5)),
            "w_uk": _w((lambda *s: torch.randn(*s, dtype=torch.bfloat16) * 3.2)(Dc, H, D) * (Dc ** -0.5)),
            "w_uv": _w((lambda *s: torch.randn(*s, dtype=torch.bfloat16) * 1.6)(Dc, H, D) * (Dc ** -0.5)),
            "w_o": _w((lambda *s: torch.randn(*s, dtype=torch.bfloat16) * 1.6)(H, D, M) * ((H * D) ** -0.5)),
        }
    _A_in = _A_setup()

    def _B_setup():
        B, S, D = 1, 2048, 512
        return {
            "x": _w((lambda *s: torch.randn(*s, dtype=torch.bfloat16) * 0.05)(B, S, D)),
            "wqkv": _w((lambda *s: torch.randn(*s, dtype=torch.bfloat16) * 3.2)(D, 3 * D)),
            "wo": _w((lambda *s: torch.randn(*s, dtype=torch.bfloat16) * 0.4)(D, D)),
        }
    _B_in = _B_setup()

    return {
        "A_x": _A_in["x"],
        "A_c_kv": _A_in["c_kv"],
        "A_w_q": _A_in["w_q"],
        "A_w_uk": _A_in["w_uk"],
        "A_w_uv": _A_in["w_uv"],
        "A_w_o": _A_in["w_o"],
        "B_x": _B_in["x"],
        "B_wqkv": _B_in["wqkv"],
        "B_wo": _B_in["wo"],
        "gate_w": _w((lambda *s: torch.randn(*s, dtype=torch.bfloat16) * 0.05)(512) * 16.0),
    }

def reference(A_x, A_c_kv, A_w_q, A_w_uk, A_w_uv, A_w_o, B_x, B_wqkv, B_wo, gate_w):
    def _A_ref(x, c_kv, w_q, w_uk, w_uv, w_o):
        B, Sq, M = x.shape[0], x.shape[1], x.shape[2]
        Sk = c_kv.shape[1]
        H, D = w_q.shape[1], w_q.shape[2]
        q = torch.einsum("bqm,mhd->bhqd", x, w_q)
        k = torch.einsum("bkc,chd->bhkd", c_kv, w_uk)
        v = torch.einsum("bkc,chd->bhkd", c_kv, w_uv)
        scores = torch.einsum("bhqd,bhkd->bhqk", q, k) * (D ** -0.5)
        off = Sk - Sq
        qi = torch.arange(Sq)[:, None]
        kj = torch.arange(Sk)[None, :]
        cmask = kj <= (qi + off)
        scores = torch.where(cmask[None, None], scores, -1e9)
        p = _softmax(scores, axis=-1)
        ctx = torch.einsum("bhqk,bhkd->bhqd", p, v)
        return torch.einsum("bhqd,hdm->bqm", ctx, w_o)

    def _B_ref(x, wqkv, wo):
        B, S, D = x.shape
        H = 32; Dh = D // H
        qkv = (lambda x, *d: x.permute(*d))((x @ wqkv).reshape(B, S, 3, H, Dh), 2, 0, 3, 1, 4)
        q, k, v = qkv[0], qkv[1], qkv[2]
        phi = lambda t: torch.where(t > 0, t + 1, torch.exp(t)) + 1e-6
        pq, pk = phi(q), phi(k)
        kv = torch.einsum("bhsd,bhse->bhde", pk, v)
        z = torch.einsum("bhsd->bhd", pk)
        num = torch.einsum("bhqd,bhde->bhqe", pq, kv)
        den = torch.einsum("bhqd,bhd->bhq", pq, z)[..., None] + 1e-6
        o = num / den
        return (lambda x, *d: x.permute(*d))(o, 0, 2, 1, 3).reshape(B, S, D) @ wo

    x = A_x
    g = _sigmoid((x * gate_w).sum(-1, keepdims=True))
    a = _A_ref(x, A_c_kv, A_w_q, A_w_uk, A_w_uv, A_w_o)
    b = _B_ref(x, B_wqkv, B_wo)
    return g * a + (1 - g) * b
```

```python
import re

class Ins:
    __slots__ = ("text", "op", "args", "mods")
    def __init__(self, text):
        self.text = text
        t = text.split(";")[0].strip()
        parts = t.split(None, 1)
        self.op = parts[0]
        rest = parts[1] if len(parts) > 1 else ""
        args = []
        cur = ""
        depth = 0
        for ch in rest:
            if ch in "[(":
                depth += 1
            if ch in "])":
                depth -= 1
            if ch == "," and depth == 0:
                args.append(cur.strip()); cur = ""
            else:
                cur += ch
        if cur.strip():
            args.append(cur.strip())
        mods = []
        if args:
            sp = args[-1].split()
            args[-1] = sp[0]
            mods = sp[1:]
        self.args = args
        self.mods = mods

_REG = re.compile(r"^-?(?:abs\()?\|?([vas])(?:(\d+)|\[(\d+):(\d+)\])\|?\)?$")

def regs_of(arg):
    a = arg.strip()
    if a == "vcc":
        return {("s", "vcc")}
    if a == "exec":
        return {("s", "exec")}
    if a == "m0":
        return {("s", "m0")}
    m = _REG.match(a)
    if not m:
        return set()
    k = m.group(1)
    if m.group(2) is not None:
        return {(k, int(m.group(2)))}
    return {(k, i) for i in range(int(m.group(3)), int(m.group(4)) + 1)}

TRANS = ("v_exp_f32", "v_log_f32", "v_rcp_f32", "v_rsq_f32", "v_sqrt_f32", "v_sin_f32", "v_cos_f32")

def classify(ins):
    op, a = ins.op, ins.args
    R, W = set(), set()
    if op.startswith("v_mfma"):
        W |= regs_of(a[0])
        for x in a[1:4]:
            R |= regs_of(x)
        return "mfma", R, W
    if op.startswith("v_cmp"):
        W |= regs_of(a[0])
        for x in a[1:]:
            R |= regs_of(x)
        return "valu", R, W
    if op.startswith("v_permlane32_swap") or op.startswith("v_permlane16_swap"):
        for x in a[:2]:
            R |= regs_of(x); W |= regs_of(x)
        return "valu", R, W
    if op in ("v_readfirstlane_b32", "v_readlane_b32"):
        W |= regs_of(a[0])
        for x in a[1:]:
            R |= regs_of(x)
        return "valu", R, W
    if op.startswith("v_"):
        W |= regs_of(a[0])
        rest = a[1:]
        if op.startswith("v_add_co") or op.startswith("v_sub_co") or op.startswith("v_addc_co"):
            W |= regs_of(a[1]); rest = a[2:]
        for x in rest:
            R |= regs_of(x)
        if op.startswith("v_fmac") or op.startswith("v_dot2c") or op.startswith("v_pk_fmac"):
            R |= regs_of(a[0])
        if op.startswith("v_cndmask") and len(a) == 3:
            R |= {("s", "vcc")}
        return "valu", R, W
    if op.startswith("ds_read") or op.startswith("ds_bpermute") or op.startswith("ds_swizzle"):
        W |= regs_of(a[0])
        for x in a[1:]:
            R |= regs_of(x)
        return "ds", R, W
    if op.startswith("ds_"):
        for x in a:
            R |= regs_of(x)
        return "ds", R, W
    if op.startswith("buffer_load") or op.startswith("global_load"):
        if "lds" in ins.mods or "_lds_" in op:
            for x in a:
                R |= regs_of(x)
            R |= {("s", "m0")}
            return "vmem", R, W
        W |= regs_of(a[0])
        for x in a[1:]:
            R |= regs_of(x)
        return "vmem", R, W
    if op.startswith("buffer_store") or op.startswith("global_store") or op.startswith("buffer_atomic") or op.startswith("global_atomic"):
        for x in a:
            R |= regs_of(x)
        if "atomic" in op and "sc0" in ins.mods:
            W |= regs_of(a[0])
        return "vmem", R, W
    if op.startswith("buffer_"):
        return "vmem", R, W
    if op.startswith("s_load") or op.startswith("s_memtime") or op.startswith("s_memrealtime"):
        W |= regs_of(a[0])
        for x in a[1:]:
            R |= regs_of(x)
        return "smem", R, W
    if op in ("s_waitcnt", "s_nop", "s_barrier", "s_endpgm", "s_setprio", "s_sleep") or op.startswith("s_cbranch") or op == "s_branch":
        return "ctl", R, W
    if op.startswith("s_cmp"):
        for x in a:
            R |= regs_of(x)
        return "salu", R, W
    if op.startswith("s_"):
        W |= regs_of(a[0])
        for x in a[1:]:
            R |= regs_of(x)
        if "saveexec" in op:
            W |= {("s", "exec")}
        return "salu", R, W
    raise ValueError("unknown op " + ins.text)

def mfma_passes(op):
    if "32x32x16" in op:
        return 8
    if "16x16x32" in op:
        return 4
    raise ValueError(op)

def check_seq(seq, name=""):
    errs = []
    hist = []
    pos = 0
    vm = []
    lg = []
    def err(msg, ins, prev):
        errs.append(f"[{name}] {msg}: '{prev.text.strip()}' -> '{ins.text.strip()}'")
    for ins in seq:
        if ins.op.endswith(":"):
            continue
        kind, R, W = classify(ins)
        if ins.op == "s_waitcnt":
            t = ins.text
            m = re.search(r"vmcnt\((\d+)\)", t)
            if m:
                n = int(m.group(1)); vm = vm[len(vm) - n:] if n < len(vm) else vm
                if n == 0: vm = []
            m = re.search(r"lgkmcnt\((\d+)\)", t)
            if m:
                n = int(m.group(1))
                if n == 0: lg = []
                elif n < len(lg):
                    if any(k == "smem" for k, _, _ in lg):
                        pass
                    else:
                        lg = lg[len(lg) - n:]
        else:
            for (pi, pw) in vm:
                if pw & (R | W):
                    err("use of un-waited vmem load dest", ins, pi)
            for (k, pi, pw) in lg:
                if pw & (R | W):
                    err("use of un-waited lgkm load dest", ins, pi)
        for (ppos, pk, pins, pR, pW) in hist:
            d = pos - ppos - 1
            if d >= 20:
                continue
            def need(n, msg):
                if d < n:
                    err(f"{msg} needs {n} has {d}", ins, pins)
            vW = {r for r in pW if r[0] in "va"}
            sW = {r for r in pW if r[0] == "s"}
            if pk == "valu":
                if kind == "mfma" and vW & R:
                    need(2, "valu->mfma")
                if pins.op in TRANS or pins.op.replace("_e64", "").replace("_e32", "") in TRANS:
                    if kind in ("valu",) and vW & R:
                        need(1, "trans->valu")
                    if kind == "mfma" and vW & R:
                        need(2, "trans->mfma")
                if ins.op.startswith("v_permlane") and vW & R:
                    need(2, "valu->permlane")
                if ins.op in ("v_readfirstlane_b32", "v_readlane_b32") and vW & R:
                    need(1, "valu->readlane")
                if kind == "valu" and ("dpp" in ins.op or any(m.startswith("row_") or m.startswith("quad_perm") for m in ins.mods)) and vW & R:
                    need(2, "valu->dpp")
                if sW:
                    if kind == "valu" and sW & R:
                        need(2, "valu sgpr->valu read")
                    if kind == "vmem" and sW & R:
                        need(5, "valu sgpr->vmem")
                if "op_sel" in " ".join(pins.mods) and kind == "valu" and vW & R and not pins.op.startswith("v_pk"):
                    need(1, "opsel->valu")
            if pk == "salu":
                if ("s", "m0") in pW and kind == "vmem" and ("s", "m0") in R:
                    need(1, "m0->ldsdma")
            if pk == "mfma":
                p = mfma_passes(pins.op)
                if kind == "mfma":
                    a = ins.args
                    AB = regs_of(a[1]) | regs_of(a[2])
                    C = regs_of(a[3])
                    if pW & AB:
                        need({8: 12, 4: 8}[p], "mfma D->mfma AB")
                    if pW & C:
                        if C == pW and mfma_passes(ins.op) == p:
                            pass
                        else:
                            need({8: 10, 4: 6}[p], "mfma D->mfma C overlap")
                    elif pW & W:
                        need({8: 10, 4: 6}[p], "mfma D->mfma D waw")
                elif kind in ("valu", "ds", "vmem"):
                    if pW & (R | W):
                        need({8: 12, 4: 8}[p], "mfma D->use")
                    pC = regs_of(pins.args[3])
                    if kind == "valu" and pC & W:
                        need({8: 7, 4: 3}[p], "mfma C war")
                    if kind in ("ds", "vmem") and pC & W:
                        need({8: 7, 4: 3}[p], "mfma C war(load)")
            if pk == "vmem" and ("store" in pins.op) and ("x4" in pins.op or "x3" in pins.op):
                data = regs_of(pins.args[0]) if pins.op.startswith("buffer") else regs_of(pins.args[1])
                if data & W and kind in ("valu", "mfma", "ds", "vmem"):
                    need(2, "store data war")
        if kind == "vmem":
            vm.append((ins, W))
        elif kind in ("ds", "smem"):
            lg.append((kind, ins, W))
        hist.append((pos, kind, ins, R, W))
        if len(hist) > 24:
            hist.pop(0)
        if ins.op == "s_nop":
            pos += int(ins.args[0], 0) + 1
        else:
            pos += 1
    return errs


class Prog:
    def __init__(self):
        self.segs = {}
        self.order = []
        self.cur = None
    def seg(self, name):
        assert name not in self.segs, name
        self.segs[name] = []
        self.order.append(name)
        self.cur = self.segs[name]
    def __call__(self, text):
        for line in text.strip("\n").split("\n"):
            s = line.strip()
            if not s or s.startswith(";"):
                continue
            if s.endswith(":"):
                self.label(s[:-1])
            else:
                self.cur.append(Ins(s))
    def label(self, name):
        self.cur.append(Ins(name + ":"))
    def raw(self, text):
        i = Ins("s_nop 0"); i.text = text; i.op = "raw:"
        self.cur.append(i)
    def text(self):
        out = []
        for n in self.order:
            out.append(f"; ---- {n}")
            for i in self.segs[n]:
                if i.op.endswith(":"):
                    out.append(i.text)
                else:
                    out.append("  " + i.text)
        return "\n".join(out) + "\n"
    def check(self, path):
        seq = []
        for n in path:
            seq += self.segs[n]
        return check_seq(seq, "+".join(path))


def interleave(mfmas, fillers, start=0, per=None):
    out = []
    n = len(mfmas)
    slots = n - start
    k = len(fillers)
    fi = 0
    for i, m in enumerate(mfmas):
        out.append(m)
        if i >= start:
            j = i - start + 1
            tgt = (k * j + slots - 1) // slots
            while fi < tgt:
                out.append(fillers[fi]); fi += 1
    while fi < k:
        out.append(fillers[fi]); fi += 1
    return out
```

```python
from asmlib import Prog
import gen as G_
from gen import *

QS = 64 << 20
import os
X = lambda k: bool(os.environ.get(k))

def gen_l2():
    p = Prog()
    st_ = Stamper(p)
    S_X, S_WQ, S_WS = 4, 8, 12
    sH, sI, sW, sG, sW4, sRB, sHP, sQB, sR, sPAR, sKSRC, sVSRC, sPH, sM0, sKB, sVB = 16, 17, 18, 19, 20, 21, 22, 23, 24, 25, 26, 27, 28, 29, 30, 31
    SM = [40, 42, 44, 46]
    sTHR = 48
    O = lambda d: d * 16
    S = lambda b: 64 + b * 16
    NEGM = 96
    Q = lambda kc: 112 + kc * 4
    P = lambda b: 144 + b * 8
    F = lambda n: 160 + (n % 8) * 4
    T = [192, 193, 194, 195]
    vLs, vTS, vM, vRD, vST, vD0, vD1, vNINF, vG, vL, vT = 196, 197, 198, 199, 200, 201, 202, 203, 204, 205, 206
    vQR = 216
    vWD = 220
    vDP = 221
    MISC = 131072
    WS = f"s[{S_WS}:{S_WS+3}]"

    p.seg("pro")
    p("s_cmp_ge_u32 s2, 256")
    p("s_cbranch_scc1 L2_end")
    st_(0); st_.real(8)
    load_kernargs(p)
    p(f"v_and_b32 v{vL}, 63, v0")
    p(f"v_lshrrev_b32 v{vT}, 6, v0")
    p("s_and_b32 s32, s2, 7")
    p("s_lshr_b32 s33, s2, 3")
    p(f"v_readfirstlane_b32 s{sW}, v{vT}")
    p(f"s_lshl_b32 s{sH}, s32, 2")
    p("s_and_b32 s34, s33, 3")
    p(f"s_add_u32 s{sH}, s{sH}, s34")
    p(f"s_lshr_b32 s{sI}, s33, 2")
    p(f"s_lshr_b32 s{sRB}, s32, 1")
    p(f"s_lshl_b32 s{sRB}, s{sRB}, 2")
    p(f"s_add_u32 s{sRB}, s{sRB}, s34")
    p(f"s_and_b32 s{sHP}, s32, 1")
    p(f"s_lshl_b32 s{sHP}, s{sHP}, 3")
    p(f"s_add_u32 s{sHP}, s{sHP}, s{sI}")
    p(f"s_lshr_b32 s{sG}, s{sW}, 2")
    p(f"s_and_b32 s{sW4}, s{sW}, 3")
    p(f"v_lshlrev_b32 v{vST}, 4, v{vL}")
    p(f"v_lshrrev_b32 v{vT+1}, 4, v{vL}")
    p(f"s_lshl_b32 s34, s{sH}, 8")
    p(f"v_lshlrev_b32 v{vT}, 13, v{vT+1}")
    p(f"v_add_u32 v{vT}, s34, v{vT}")
    p(f"v_and_b32 v{vT+2}, 15, v{vL}")
    p(f"v_lshlrev_b32 v{vT+3}, 2, v{vT+1}")
    p(f"v_xor_b32 v{vT+2}, v{vT+2}, v{vT+3}")
    p(f"v_lshl_add_u32 v{vWD}, v{vT+2}, 4, v{vT}")
    p(f"v_lshrrev_b32 v{vT+2}, 5, v{vL}")
    p(f"v_bfe_u32 v{vT+3}, v{vL}, 2, 2")
    p(f"v_lshl_add_u32 v{vT}, v{vT+2}, 3, v{vT+3}")
    p(f"v_lshlrev_b32 v{vT}, 8, v{vT}")
    p(f"v_bfe_u32 v{vT+4}, v{vL}, 4, 1")
    p(f"v_lshl_add_u32 v{vT}, v{vT+4}, 5, v{vT}")
    p(f"v_and_b32 v{vT+4}, 3, v{vL}")
    p(f"v_lshl_add_u32 v{vT}, v{vT+4}, 3, v{vT}")
    for d in range(4):
        p(f"v_xor_b32 v{vT+4}, {d}, v{vT+3}")
        p(f"v_lshl_add_u32 v{vQR+d}, v{vT+4}, 6, v{vT}")
    p(f"v_and_b32 v{vT}, 31, v{vL}")
    p(f"v_lshlrev_b32 v{vT+4}, 2, v{vT+2}")
    p(f"v_sub_u32 v{vD0}, v{vT}, v{vT+4}")
    p(f"s_sub_i32 s34, s{sW4}, s{sG}")
    p("s_lshl_b32 s34, s34, 5")
    p(f"v_add_u32 v{vD0}, s34, v{vD0}")
    p(f"v_subrev_u32 v{vD1}, 64, v{vD0}")
    p(f"v_mov_b32 v{vNINF}, 0xff800000")
    p(f"s_mov_b32 s{sTHR}, {'0x7f800000' if X('NORARE') else '0x44800000'}")
    p(f"v_lshlrev_b32 v{vT}, 10, v{vT}")
    p(f"v_lshl_add_u32 v{vT}, v{vT+2}, 4, v{vT}")
    p(f"s_lshl_b32 s34, s{sG}, 13")
    p(f"v_add_u32 v{vRD}, s34, v{vST}")
    p(f"s_lshl_b32 s{sM0}, s{sW}, 12")
    p(f"s_lshl_b32 s{sKB}, s{sH}, 19")
    import os
    if os.environ.get('SAMEHEAD'): p(f"s_mov_b32 s{sKB}, 0")
    p(f"s_add_u32 s{sKB}, s{sKB}, s{sM0}")
    p(f"s_add_u32 s{sVB}, s{sKB}, {VWS - 16384}")
    p("s_waitcnt lgkmcnt(0)")
    srd(p, S_X, P_X, 2 << 20)
    srd(p, S_WQ, P_WQ, 4 << 20)
    srd(p, S_WS, P_WS, WS_BYTES)
    p(f"s_lshl_b32 s34, s{sHP}, 4")
    p(f"s_lshl_b32 s35, s{sW}, 1")
    p("s_add_u32 s34, s34, s35")
    p("s_lshl_b32 s34, s34, 12")
    p(f"s_add_u32 s34, s34, {KVP}")
    p("s_add_u32 s35, s34, 4096")
    for q in range(4):
        p(f"buffer_load_dwordx4 {vr(q*4)}, v{vST}, {WS}, s34 offen offset:{q*1024}")
    for q in range(4):
        p(f"buffer_load_dwordx4 {vr(16+q*4)}, v{vST}, {WS}, s35 offen offset:{q*1024}")
    p(f"s_lshl_b32 s36, s{sRB}, 2")
    p(f"s_add_u32 s36, s36, s{sW4}")
    p("s_lshl_b32 s34, s36, 5")
    p(f"s_lshl_b32 s35, s{sHP}, 1")
    p("s_add_u32 s34, s34, s35")
    p("s_lshl_b32 s34, s34, 10")
    p(f"s_add_u32 s34, s34, {PQ}")
    for s in range(2):
        p(f"buffer_load_dwordx4 {vr(32+s*4)}, v{vST}, {WS}, s34 offen offset:{s*1024}")
    p(f"v_and_b32 v{vT+5}, 31, v{vL}")
    p(f"v_lshlrev_b32 v{vDP}, 2, v{vT+5}")
    p("s_lshl_b32 s34, s36, 7")
    p(f"s_add_u32 s34, s34, {G}")
    p(f"buffer_load_dword v40, v{vDP}, {WS}, s34 offen")
    p(f"s_lshl_b32 s34, s{sW}, 19")
    p(f"s_lshl_b32 s35, s{sW}, 14")
    for n in range(16):
        if n % 4 == 0:
            p(f"s_add_u32 m0, s35, {(n >> 2) * 4096}")
        p(f"s_add_u32 s37, s34, {4 * n * 8192 - (n & 3) * 1024}")
        p(f"buffer_load_dwordx4 v{vWD}, s[{S_WQ}:{S_WQ+3}], s37 offen offset:{(n & 3) * 1024} lds")
    XQ = lambda kk: 64 + kk * 4
    p(f"s_sub_u32 s34, 15, s{sI}")
    p(f"s_cmp_eq_u32 s{sG}, 0")
    p(f"s_cselect_b32 s34, s{sI}, s34")
    p("s_lshl_b32 s34, s34, 2")
    p(f"s_add_u32 s34, s34, s{sW4}")
    p("s_lshl_b32 s34, s34, 15")
    for kk in range(32):
        p(f"buffer_load_dwordx4 {vr(XQ(kk))}, v{vT}, s[{S_X}:{S_X+3}], s34 offen offset:{kk*32}")
    p("s_waitcnt vmcnt(51)")
    for i in range(16):
        p(f"v_add_f32 v{i}, v{i}, v{16+i}")
    p(f"s_add_u32 s34, s{sM0}, {MISC}")
    p(f"v_add_u32 v{vT+1}, s34, v{vST}")
    for q in range(4):
        p(f"ds_write_b128 v{vT+1}, {vr(q*4)} offset:{q*1024}")
    p("s_waitcnt vmcnt(0) lgkmcnt(0)")
    p("s_barrier")
    st_(1)
    p(f"s_cmp_lg_u32 s{sG}, 0")
    p("s_cbranch_scc1 L2_qproj")
    p.seg("ophase")
    p(f"v_add_u32 v{vT+1}, {MISC}, v{vST}")
    def ord_(w, dst):
        for q in range(4):
            p(f"ds_read_b128 {vr(dst + q*4)}, v{vT+1} offset:{w*4096 + q*1024}")
    ord_(0, 0); ord_(1, 16); ord_(2, 44)
    for w in range(1, 8):
        src = 16 if w % 2 else 44
        p(f"s_waitcnt lgkmcnt({4 if w < 7 else 0})")
        for i in range(16):
            p(f"v_add_f32 v{i}, v{i}, v{src+i}")
        if w + 2 < 8:
            ord_(w + 2, src)
    for i in range(8):
        p(f"v_cvt_pk_bf16_f32 v{16+i}, v{2*i}, v{2*i+1}")
    p(f"v_and_b32 v{vT+1}, 16, v{vL}")
    p(f"v_cmp_ne_u32 vcc, 0, v{vT+1}")
    p(f"v_sub_f32 v40, 1.0, v40")
    p("s_nop 0")
    for i in range(8):
        p(f"v_cndmask_b32 v{i}, v{16+i}, 0, vcc")
    for i in range(8):
        p(f"v_cndmask_b32 v{8+i}, 0, v{16+i}, vcc")
    p("s_nop 1")
    p(f"{MF} {vr(16,16)}, {vr(0)}, {vr(32)}, 0")
    p(f"{MF} {vr(44,16)}, {vr(4)}, {vr(32)}, 0")
    p(f"{MF} {vr(16,16)}, {vr(8)}, {vr(36)}, {vr(16,16)}")
    p(f"{MF} {vr(44,16)}, {vr(12)}, {vr(36)}, {vr(44,16)}")
    p("s_nop 15")
    for i in range(16):
        p(f"v_add_f32 v{44+i}, 0x358637bd, v{44+i}")
    for i in range(16):
        p(f"v_rcp_f32 v{44+i}, v{44+i}")
    for i in range(16):
        p(f"v_mul_f32 v{16+i}, v40, v{16+i}")
    for i in range(16):
        p(f"v_mul_f32 v{16+i}, v{16+i}, v{44+i}")
    for i in range(8):
        p(f"v_cvt_pk_bf16_f32 v{i}, v{16+2*i}, v{17+2*i}")
    p(f"s_mul_i32 s34, s36, 288")
    p(f"s_lshl_b32 s35, s{sHP}, 1")
    p("s_add_u32 s34, s34, s35")
    p("s_add_u32 s34, s34, 256")
    p("s_lshl_b32 s34, s34, 10")
    p(f"s_add_u32 s34, s34, {AWS}")
    for s in range(2):
        p(f"buffer_store_dwordx4 {vr(4*s)}, v{vST}, {WS}, s34 offen offset:{s*1024}")
    p("s_nop 1")
    p.seg("qproj")
    p.label("L2_qproj")
    WF = lambda st, d: 224 + st * 16 + d * 4
    def qreads(kk, d):
        off = (kk & 15) * 4096
        return [f"ds_read_b64_tr_b16 v[{WF(kk&1,d)}:{WF(kk&1,d)+1}], v{vQR+d} offset:{off}",
                f"ds_read_b64_tr_b16 v[{WF(kk&1,d)+2}:{WF(kk&1,d)+3}], v{vQR+d} offset:{off + 1024}"]
    for d in range(4):
        for r in qreads(0, d):
            p(r)
    for kk in range(32):
        for d in range(4):
            p(f"s_waitcnt lgkmcnt({6 if kk < 31 else 2 * (3 - d)})")
            c = "0" if kk == 0 else vr(O(d), 16)
            p(f"{MF} {vr(O(d),16)}, {vr(WF(kk&1,d))}, {vr(XQ(kk))}, {c}")
            if kk == 15:
                p(f"v_add_u32 v{vQR+d}, 0x10000, v{vQR+d}")
            if kk < 31:
                for r in qreads(kk + 1, d):
                    p(r)
    p("s_barrier")
    st_(2)
    def dma_round(first=False):
        L = [f"s_add_u32 m0, s{sM0}, s{sPAR}", "s_nop 0"]
        for i in range(4):
            L.append(f"buffer_load_dwordx4 v{vST}, {WS}, s{sKSRC} offen offset:{i*1024} lds")
        L.append("s_add_u32 m0, m0, 32768")
        L.append(f"s_add_u32 s{sKSRC}, s{sKSRC}, 32768")
        for i in range(4):
            L.append(f"buffer_load_dwordx4 v{vST}, {WS}, s{sVSRC} offen offset:{i*1024} lds")
        L.append(f"s_add_u32 s{sVSRC}, s{sVSRC}, 32768")
        L.append(f"s_xor_b32 s{sPAR}, s{sPAR}, 65536")
        return L
    p(f"s_mov_b32 s{sPAR}, 0")
    p(f"s_mov_b32 s{sKSRC}, s{sKB}")
    p(f"s_mov_b32 s{sVSRC}, s{sVB}")
    for x in dma_round():
        p(x)
    p("s_mov_b32 s34, 0x3e0293ee")
    p("s_nop 0")
    for i in range(64):
        p(f"v_mul_f32 v{i}, s34, v{i}")
    for i in range(32):
        p(f"v_cvt_pk_bf16_f32 v{Q(0)+i}, v{2*i}, v{2*i+1}")
    p(f"s_lshl_b32 s35, s{sW4}, 13")
    p(f"s_cmp_lg_u32 s{sG}, 0")
    p("s_cbranch_scc1 L2_qst1")
    p.seg("qst0")
    p(f"s_add_u32 s34, s35, {MISC}")
    p(f"v_add_u32 v{vT+1}, s34, v{vST}")
    for kc in range(8):
        p(f"ds_write_b128 v{vT+1}, {vr(Q(kc))} offset:{kc*1024}")
    p("s_branch L2_qst2")
    p.seg("qst1")
    p.label("L2_qst1")
    p("s_lshl_b32 s34, s2, 15")
    p("s_add_u32 s34, s34, s35")
    p(f"s_add_u32 s34, s34, {QS}")
    p("s_add_u32 s37, s34, 4096")
    for kc in range(8):
        p(f"buffer_store_dwordx4 {vr(Q(kc))}, v{vST}, {WS}, {'s34' if kc < 4 else 's37'} offen offset:{(kc&3)*1024}")
    p.seg("qst2")
    p.label("L2_qst2")
    p("s_waitcnt lgkmcnt(0)")
    p("s_barrier")
    p(f"s_add_u32 s34, s35, {MISC}")
    p(f"v_add_u32 v{vT+1}, s34, v{vST}")
    for kc in range(8):
        p(f"ds_read_b128 {vr(Q(kc))}, v{vT+1} offset:{kc*1024}")
    p(f"s_mov_b32 s{sQB}, s{sI}")
    p(f"s_mov_b32 s{sPH}, 0")

    D = 6
    def frag_read(n):
        it, half, k = n >> 4, (n >> 3) & 1, n & 7
        if half == 0:
            off = it * 16384 + k * 1024
        else:
            kh, d = k >> 2, k & 3
            off = 32768 + it * 16384 + (d * 2 + kh) * 1024
        return f"ds_read_b128 {vr(F(n))}, v{vRD} offset:{off}"
    def mf(n, sb_nxt, pb):
        half, k = (n >> 3) & 1, n & 7
        if half == 0:
            c = vr(NEGM, 16) if k == 0 else vr(S(sb_nxt), 16)
            return f"{MF} {vr(S(sb_nxt),16)}, {vr(F(n))}, {vr(Q(k))}, {c}"
        kh, d = k >> 2, k & 3
        return f"{MF} {vr(O(d),16)}, {vr(F(n))}, {vr(P(pb)+kh*4)}, {vr(O(d),16)}"
    def sm_pairs(sb, pairs):
        L = []
        for j in pairs:
            t0, t1 = (T[0], T[1]) if j % 2 == 0 else (T[2], T[3])
            L.append(f"v_exp_f32 v{t0}, v{S(sb)+2*j}")
            L.append(f"v_exp_f32 v{t1}, v{S(sb)+2*j+1}")
            if j == 0:
                L.append("s_nop 0")
                L.append(f"v_add_f32 v{vTS}, v{t0}, v{t1}")
            else:
                L.append(f"v_add_f32 v{vTS}, v{vTS}, v{t0}")
                L.append(f"v_add_f32 v{vTS}, v{vTS}, v{t1}")
            L.append(f"v_cvt_pk_bf16_f32 v{P(sb)+j}, v{t0}, v{t1}")
        return L
    def mask_ops(sb, vD):
        L = []
        cs = [(r & 3) + 8 * (r >> 2) for r in range(16)]
        for r in range(16 + 3):
            if r < 16:
                m = SM[r % 4]
                L.append(f"v_cmp_le_i32 s[{m}:{m+1}], {cs[r]}, v{vD}")
            if r >= 3:
                q = r - 3
                m = SM[q % 4]
                L.append(f"v_cndmask_b32 v{S(sb)+q}, v{vNINF}, v{S(sb)+q}, s[{m}:{m+1}]")
        return L
    P1, P2 = [0, 1, 2], [3, 4, 5, 6, 7]
    rare_sites = []
    def spread(fill, nslots):
        out = [[] for _ in range(nslots)]
        k = len(fill)
        fi = 0
        for i in range(nslots):
            tgt = (k * (i + 1) + nslots - 1) // nslots
            while fi < tgt:
                out[i].append(fill[fi]); fi += 1
        return out
    def check(sb, tag):
        p(f"v_cmp_lt_f32 vcc, s{sTHR}, v{vTS}")
        p(f"s_cbranch_vccnz L2_rare_{tag}")
        p.label(f"L2_back_{tag}")
        p(f"v_add_f32 v{vLs}, v{vLs}, v{vTS}")
        rare_sites.append((tag, sb))
    def round_end(last=False):
        p("s_waitcnt vmcnt(0) lgkmcnt(0)")
        if last or not X('NOBAR'): p("s_barrier")
        p(f"v_xor_b32 v{vRD}, 0x10000, v{vRD}")
    def iteration(it, masked, tag, last=False):
        cur, nxt = (1, 0) if it == 0 else (0, 1)
        base = it * 16
        fa = spread(sm_pairs(cur, P2) if not X('NOVALU') else [], 8)
        for k in range(8):
            n = base + k
            p(f"s_waitcnt lgkmcnt({D-1})")
            p(mf(n, nxt, cur))
            p(frag_read(n + D))
            for x in fa[k]:
                p(x)
        check(cur, tag)
        fill = (mask_ops(nxt, vD0 if it == 0 else vD1) if masked else []) + (sm_pairs(nxt, P1) if not X('NOVALU') else [])
        fb = [[], [], []] + spread(fill, 5)
        dma = []
        for k in range(8):
            n = base + 8 + k
            if it == 1 and n == 28:
                round_end(last)
                if last:
                    dma = tail_loads()
                    for m in range(8, 8 + 4):
                        p(frag_read(m))
                else:
                    dma = dma_round()
                    if X('NODMA'): dma = [x for x in dma if not x.startswith('buffer')]
                    for m in range(0, 2):
                        p(frag_read(m))
            if it == 1 and n >= 26:
                if n < 28:
                    p(f"s_waitcnt lgkmcnt({31 - n})")
                p(mf(n, nxt, cur))
                if n >= 28 and not last:
                    p(frag_read(n + D - 32))
                if n >= 28 and last:
                    p(frag_read(n - 16))
                if n >= 28:
                    q = (len(dma) + 3) // 4
                    for x in dma[(n - 28) * q:(n - 27) * q]:
                        p(x)
            else:
                p(f"s_waitcnt lgkmcnt({D-1})")
                p(mf(n, nxt, cur))
                p(frag_read(n + D))
            for x in fb[k]:
                p(x)
    def tail_loads():
        L = [f"s_cmp_lg_u32 s{sPH}, 0", "s_cbranch_scc1 L2_skipnext",
             f"s_mov_b32 s{sKSRC}, s{sKB}", f"s_mov_b32 s{sVSRC}, s{sVB}"]
        L += dma_round()
        L += ["s_lshl_b32 s34, s2, 15", f"s_lshl_b32 s35, s{sW4}, 13", "s_add_u32 s34, s34, s35",
              f"s_add_u32 s34, s34, {QS}", "s_add_u32 s37, s34, 4096"]
        for kc in range(8):
            L.append(f"buffer_load_dwordx4 {vr(Q(kc))}, v{vST}, {WS}, {'s34' if kc < 4 else 's37'} offen offset:{(kc&3)*1024}")
        L.append("L2_skipnext:")
        return ["\n".join(L)]

    p.seg("apro")
    p.label("L2_phase")
    p(f"s_lshl_b32 s34, s{sQB}, 2")
    p(f"s_add_u32 s34, s34, s{sW4}")
    p("s_lshl_b32 s34, s34, 7")
    p(f"s_add_u32 s34, s34, {G}")
    p(f"buffer_load_dword v{vG}, v{vDP}, {WS}, s34 offen")
    for i in range(64):
        p(f"v_mov_b32 v{i}, 0")
    p(f"v_mov_b32 v{vLs}, 0")
    p(f"s_lshl_b32 s34, s{sQB}, 7")
    p(f"v_add_u32 v{vT}, s34, v{vD0}")
    p(f"s_mov_b32 s{sR}, 0")
    p("s_waitcnt vmcnt(0) lgkmcnt(0)")
    p("s_barrier")
    st_(3)
    for x in dma_round():
        p(x)
    for n in range(8):
        p(frag_read(n))
    for k in range(8):
        p(f"s_waitcnt lgkmcnt({7 - k})")
        c = "0" if k == 0 else vr(S(0), 16)
        p(f"{MF} {vr(S(0),16)}, {vr(F(k))}, {vr(Q(k))}, {c}")
    for n in range(16, 16 + D):
        p(frag_read(n))
    p("s_nop 7")
    for x in mask_ops(0, vT):
        p(x)
    def maxtree(sb, dst):
        s = S(sb)
        p(f"v_max3_f32 v{dst}, v{s}, v{s+1}, v{s+2}")
        p(f"v_max3_f32 v{dst+1}, v{s+3}, v{s+4}, v{s+5}")
        p(f"v_max3_f32 v{dst}, v{dst}, v{s+6}, v{s+7}")
        p(f"v_max3_f32 v{dst+1}, v{dst+1}, v{s+8}, v{s+9}")
        p(f"v_max3_f32 v{dst}, v{dst}, v{s+10}, v{s+11}")
        p(f"v_max3_f32 v{dst+1}, v{dst+1}, v{s+12}, v{s+13}")
        p(f"v_max3_f32 v{dst}, v{dst}, v{s+14}, v{s+15}")
        p(f"v_max_f32 v{dst}, v{dst}, v{dst+1}")
        p(f"v_mov_b32 v{dst+1}, v{dst}")
        p("s_nop 1")
        p(f"v_permlane32_swap_b32 v{dst}, v{dst+1}")
        p("s_nop 1")
        p(f"v_max_f32 v{dst}, v{dst}, v{dst+1}")
    maxtree(0, vT + 2)
    p(f"v_max_f32 v{vM}, 0xf149f2ca, v{vT+2}")
    for i in range(16):
        p(f"v_sub_f32 v{S(0)+i}, v{S(0)+i}, v{vM}")
    for i in range(16):
        p(f"v_sub_f32 v{NEGM+i}, 0, v{vM}")
    for x in sm_pairs(0, P1):
        p(x)
    p(f"s_cmp_eq_u32 s{sQB}, 0")
    p("s_cbranch_scc1 L2_itOm")
    p.seg("itO")
    p.label("L2_itO")
    iteration(1, False, "O")
    p(f"s_add_u32 s{sR}, s{sR}, 1")
    p(f"s_cmp_eq_u32 s{sR}, s{sQB}")
    p("s_cbranch_scc1 L2_itEm")
    p.seg("itE")
    iteration(0, False, "E")
    p("s_branch L2_itO")
    p.seg("itEm")
    p.label("L2_itEm")
    iteration(0, True, "Em")
    p.seg("itOm")
    p.label("L2_itOm")
    iteration(1, True, "Om", last=True)
    p.seg("tail")
    for x in sm_pairs(1, P2):
        p(x)
    check(1, "T")
    for k in range(8):
        n = 8 + k
        p(f"s_waitcnt lgkmcnt({7 - k})")
        p(mf(n, 0, 1))
    st_(4)
    p(f"v_mov_b32 v{vT}, v{vLs}")
    p("s_nop 1")
    p(f"v_permlane32_swap_b32 v{vLs}, v{vT}")
    p("s_nop 1")
    p(f"v_add_f32 v{vLs}, v{vLs}, v{vT}")
    p(f"v_and_b32 v{vT+1}, 0x10000, v{vRD}")
    p(f"v_lshl_add_u32 v{vT+2}, v{vL}, 2, v{vT+1}")
    p(f"s_lshl_b32 s34, s{sW}, 9")
    p(f"s_xor_b32 s35, s34, 2048")
    p(f"v_add_u32 v{vT+3}, s35, v{vT+2}")
    p(f"v_add_u32 v{vT+2}, s34, v{vT+2}")
    p(f"ds_write_b32 v{vT+2}, v{vM} offset:{32768+16384}")
    p(f"ds_write_b32 v{vT+2}, v{vLs} offset:{32768+16384+256}")
    p(f"s_lshl_b32 s34, s{sW4}, 13")
    p(f"v_add_u32 v{vT+4}, s34, v{vST}")
    p(f"v_add_u32 v{vT+5}, {MISC}, v{vT+4}")
    p(f"v_add_u32 v{vT+4}, v{vT+1}, v{vT+4}")
    p(f"s_lshl_b32 s34, s{sQB}, 2")
    p(f"s_add_u32 s34, s34, s{sW4}")
    p("s_mul_i32 s34, s34, 288")
    p(f"s_lshl_b32 s35, s{sH}, 3")
    p("s_add_u32 s34, s34, s35")
    p(f"s_lshl_b32 s35, s{sG}, 2")
    p("s_add_u32 s34, s34, s35")
    p("s_lshl_b32 s34, s34, 10")
    p(f"s_add_u32 s36, s34, {AWS}")
    p(f"s_cmp_lg_u32 s{sG}, 0")
    p("s_cbranch_scc1 L2_mg1")
    RX = 64
    def merge(g):
        send = 32 if g == 0 else 0
        own = 0 if g == 0 else 32
        wa, ra = (vT + 4, vT + 5) if g == 0 else (vT + 5, vT + 4)
        for q in range(8):
            p(f"ds_write_b128 v{wa}, {vr(send + q*4)} offset:{q*1024}")
        p("s_waitcnt lgkmcnt(0)")
        p("s_barrier")
        p(f"ds_read_b32 v{vT+6}, v{vT+3} offset:{32768+16384}")
        p(f"ds_read_b32 v{vT+7}, v{vT+3} offset:{32768+16384+256}")
        for q in range(8):
            p(f"ds_read_b128 {vr(RX + q*4)}, v{ra} offset:{q*1024}")
        p("s_waitcnt lgkmcnt(8)")
        p(f"v_max_f32 v{vT+8}, v{vM}, v{vT+6}")
        p(f"v_sub_f32 v{vT}, v{vM}, v{vT+8}")
        p(f"v_sub_f32 v{vT+6}, v{vT+6}, v{vT+8}")
        p(f"v_exp_f32 v{vT}, v{vT}")
        p(f"v_exp_f32 v{vT+6}, v{vT+6}")
        p("s_nop 0")
        p(f"v_mul_f32 v{vLs}, v{vLs}, v{vT}")
        p(f"v_fmac_f32 v{vLs}, v{vT+7}, v{vT+6}")
        p(f"v_rcp_f32 v{vLs}, v{vLs}")
        p("s_nop 0")
        p(f"v_mul_f32 v{vLs}, v{vLs}, v{vG}")
        p(f"v_mul_f32 v{vT}, v{vT}, v{vLs}")
        p(f"v_mul_f32 v{vT+6}, v{vT+6}, v{vLs}")
        for i in range(32):
            p(f"v_mul_f32 v{own+i}, v{own+i}, v{vT}")
        p("s_waitcnt lgkmcnt(0)")
        for i in range(32):
            p(f"v_fmac_f32 v{own+i}, v{RX+i}, v{vT+6}")
        for i in range(16):
            p(f"v_cvt_pk_bf16_f32 v{RX+i}, v{own+2*i}, v{own+2*i+1}")
        for q in range(4):
            p(f"buffer_store_dwordx4 {vr(RX + q*4)}, v{vST}, {WS}, s36 offen offset:{q*1024}")
    p.seg("mg0")
    merge(0)
    p("s_branch L2_mgd")
    p.seg("mg1")
    p.label("L2_mg1")
    merge(1)
    p.seg("mgd")
    p.label("L2_mgd")
    p(f"s_cmp_lg_u32 s{sPH}, 0")
    p("s_cbranch_scc1 L2_fin")
    p.seg("nextph")
    st_(5)
    p(f"s_mov_b32 s{sPH}, 1")
    p(f"s_sub_u32 s{sQB}, 15, s{sI}")
    p(f"v_xor_b32 v{vRD}, 0x10000, v{vRD}")
    p("s_branch L2_phase")
    p.seg("fin")
    p.label("L2_fin")
    st_(6)
    if G_.STAMPS: p("s_waitcnt vmcnt(0)")
    st_(7); st_.real(9)
    st_.dump(S_WS, sW, 1, 0)
    p.label("L2_end")
    p("s_endpgm")
    for tag, sb in rare_sites:
        p.seg("rare_" + tag)
        p.label(f"L2_rare_{tag}")
        p("s_nop 15")
        p("s_nop 7")
        maxtree(sb, vT + 2)
        p(f"v_max_f32 v{vT+2}, 0, v{vT+2}")
        p(f"v_exp_f32 v{vT+3}, -v{vT+2}")
        p(f"v_add_f32 v{vM}, v{vM}, v{vT+2}")
        for i in range(32):
            p(f"v_sub_f32 v{S(0)+i}, v{S(0)+i}, v{vT+2}")
        for i in range(16):
            p(f"v_sub_f32 v{NEGM+i}, v{NEGM+i}, v{vT+2}")
        for i in range(64):
            p(f"v_mul_f32 v{i}, v{i}, v{vT+3}")
        p(f"v_mul_f32 v{vLs}, v{vLs}, v{vT+3}")
        for x in sm_pairs(sb, range(8)):
            p(x)
        p("s_nop 1")
        p(f"s_branch L2_back_{tag}")
    errs = []
    pre0 = ["pro", "ophase", "qproj", "qst0", "qst2"]
    pre1 = ["pro", "qproj", "qst1", "qst2"]
    errs += p.check(pre0 + ["apro", "itOm", "tail", "mg0", "mgd", "nextph", "apro", "itO", "itE", "itO", "itEm", "itOm", "tail", "mg0", "mgd", "fin"])
    errs += p.check(pre1 + ["apro", "itO", "itEm", "itOm", "tail", "mg1", "mgd", "nextph", "apro", "itO", "itE", "itO", "itE", "itO", "itEm", "itOm", "tail", "mg1", "mgd", "fin"])
    for tag, sb in rare_sites:
        errs += p.check(["rare_" + tag])
    return p, errs
```

```python
from asmlib import Prog
import gen as G_
from gen import *
import os
X = lambda k: bool(os.environ.get(k))

def gen_l3():
    p = Prog()
    st_ = Stamper(p)
    S_WO, S_BWO, S_WS, S_OUT = 4, 8, 12, 16
    sW, sTB, sCB, sA0, sA1, sWK, sM0 = 20, 21, 22, 23, 24, 25, 26
    PD = 6; NS = PD + 2
    ACC = lambda cb, tb: (cb * 2 + tb) * 16
    AF = lambda s, tb: 64 + (s % NS) * 8 + tb * 4
    WF = lambda s, cb: 128 + (s & 1) * 8 + cb * 4
    vL, vST, vWD, vR, vT = 144, 145, 146, 147, 150
    WS = f"s[{S_WS}:{S_WS+3}]"
    p.seg("pro")
    p("s_cmp_ge_u32 s2, 256")
    p("s_cbranch_scc1 L3_end")
    st_(0); st_.real(8)
    load_kernargs(p)
    p(f"v_and_b32 v{vL}, 63, v0")
    p(f"v_lshrrev_b32 v{vT}, 6, v0")
    p("s_and_b32 s32, s2, 7")
    p("s_lshr_b32 s33, s2, 3")
    p(f"v_readfirstlane_b32 s{sW}, v{vT}")
    p("s_lshl_b32 s32, s32, 2")
    p("s_and_b32 s34, s33, 3")
    p(f"s_add_u32 s{sTB}, s32, s34")
    p(f"s_lshr_b32 s{sCB}, s33, 2")
    p(f"v_lshlrev_b32 v{vST}, 4, v{vL}")
    p(f"v_lshrrev_b32 v{vT}, 3, v{vL}")
    p(f"v_lshlrev_b32 v{vT}, 10, v{vT}")
    p(f"v_bfe_u32 v{vT+1}, v{vL}, 4, 1")
    p(f"v_lshlrev_b32 v{vT+2}, 2, v{vT+1}")
    p(f"v_and_b32 v{vT+3}, 7, v{vL}")
    p(f"v_xor_b32 v{vT+3}, v{vT+3}, v{vT+2}")
    p(f"v_lshl_add_u32 v{vT}, v{vT+3}, 4, v{vT}")
    p(f"s_lshl_b32 s34, s{sCB}, 7")
    p(f"v_add_u32 v{vWD}, s34, v{vT}")
    p(f"s_lshl_b32 s{sM0}, s{sW}, 14")
    p(f"v_lshrrev_b32 v{vT+2}, 5, v{vL}")
    p(f"v_bfe_u32 v{vT+3}, v{vL}, 2, 2")
    p(f"v_lshl_add_u32 v{vT}, v{vT+2}, 2, v{vT+3}")
    p(f"v_lshlrev_b32 v{vT}, 7, v{vT}")
    p(f"v_lshl_add_u32 v{vT}, v{vT+1}, 5, v{vT}")
    p(f"v_and_b32 v{vT+4}, 3, v{vL}")
    p(f"v_lshl_add_u32 v{vT}, v{vT+4}, 3, v{vT}")
    p(f"v_add_u32 v{vT}, s{sM0}, v{vT}")
    p(f"v_lshrrev_b32 v{vT+3}, 1, v{vT+3}")
    p(f"v_lshl_add_u32 v{vR}, v{vT+3}, 6, v{vT}")
    p(f"v_xor_b32 v{vT+3}, 1, v{vT+3}")
    p(f"v_lshl_add_u32 v{vR+1}, v{vT+3}, 6, v{vT}")
    p(f"s_mul_i32 s34, s{sTB}, {2 * 288 * 1024}")
    p(f"s_add_u32 s34, s34, {AWS}")
    p(f"s_lshl_b32 s35, s{sW}, 15")
    p(f"s_add_u32 s{sA0}, s34, s35")
    p(f"s_lshl_b32 s35, s{sW}, 12")
    p(f"s_add_u32 s{sA1}, s34, s35")
    p(f"s_add_u32 s{sA1}, s{sA1}, {256 * 1024}")
    p(f"s_lshl_b32 s{sWK}, s{sW}, 19")
    p(f"s_lshl_b32 s27, s{sW}, 16")
    p("s_waitcnt lgkmcnt(0)")
    srd(p, S_WO, P_WO, 4 << 20)
    srd(p, S_BWO, P_BWO, 512 * 1024)
    srd(p, S_WS, P_WS, WS_BYTES)
    srd(p, S_OUT, P_OUT, 2 << 20)
    def loads(s):
        L = []
        if s < 32:
            ab, ao, wb, wo_, sr = sA0, s * 1024, sWK, s * 16384, S_WO
        else:
            ab, ao, wb, wo_, sr = sA1, (s - 32) * 1024, 27, (s - 32) * 16384, S_BWO
        L.append(f"s_add_u32 m0, s{sM0}, {(s % NS) * 2048}")
        L.append(f"s_add_u32 s34, s{wb}, {wo_}")
        L.append(f"s_add_u32 s35, s{wb}, {wo_ + 8192 - 1024}")
        L.append(f"buffer_load_dwordx4 v{vWD}, s[{sr}:{sr+3}], s34 offen lds")
        L.append(f"buffer_load_dwordx4 v{vWD}, s[{sr}:{sr+3}], s35 offen offset:1024 lds")
        L.append(f"s_add_u32 s36, s{ab}, {ao}")
        L.append(f"s_add_u32 s37, s{ab}, {ao + 288 * 1024}")
        L.append(f"buffer_load_dwordx4 {vr(AF(s,0))}, v{vST}, {WS}, s36 offen")
        L.append(f"buffer_load_dwordx4 {vr(AF(s,1))}, v{vST}, {WS}, s37 offen")
        return L
    def treads(s):
        L = []
        for cb in range(2):
            o = (s % NS) * 2048
            L.append(f"ds_read_b64_tr_b16 v[{WF(s,cb)}:{WF(s,cb)+1}], v{vR+cb} offset:{o}")
            L.append(f"ds_read_b64_tr_b16 v[{WF(s,cb)+2}:{WF(s,cb)+3}], v{vR+cb} offset:{o + 1024}")
        return L
    NST = 36
    for s in range(PD + 1):
        for x in loads(s):
            p(x)
    p(f"s_waitcnt vmcnt({4 * PD})")
    st_(1)
    for x in treads(0):
        p(x)
    for s in range(NST):
        if s + 1 < NST:
            hi = min(s + PD, NST - 1)
            p(f"s_waitcnt vmcnt({4 * (hi - (s + 1))})")
            for x in treads(s + 1):
                p(x)
        if s + PD + 1 < NST:
            for x in loads(s + PD + 1):
                p(x)
        p(f"s_waitcnt lgkmcnt({4 if s + 1 < NST else 0})")
        for cb in range(2):
            for tb in range(2):
                c = "0" if s == 0 else vr(ACC(cb, tb), 16)
                p(f"{MF} {vr(ACC(cb,tb),16)}, {vr(WF(s,cb))}, {vr(AF(s,tb))}, {c}")
    st_(2)
    p("s_barrier")
    p(f"v_add_u32 v{vT}, s{sM0}, v{vST}")
    p("s_nop 7")
    p("s_nop 3")
    for q in range(16):
        p(f"ds_write_b128 v{vT}, {vr(q*4)} offset:{q*1024}")
    p(f"s_lshl_b32 s34, s{sW}, 11")
    p(f"v_add_u32 v{vT+1}, s34, v{vST}")
    p(f"v_add_u32 v{vT+2}, 0x10000, v{vT+1}")
    p("s_waitcnt lgkmcnt(0)")
    p("s_barrier")
    for w in range(8):
        a = vT + 1 if w < 4 else vT + 2
        for q in range(2):
            p(f"ds_read_b128 {vr(64 + w*8 + q*4)}, v{a} offset:{(w & 3) * 16384 + q * 1024}")
    p(f"s_lshr_b32 s34, s{sW}, 1")
    p("s_and_b32 s35, s34, 1")
    p("s_lshr_b32 s34, s34, 1")
    p(f"s_lshl_b32 s36, s{sTB}, 1")
    p("s_add_u32 s36, s36, s35")
    p("s_lshl_b32 s36, s36, 15")
    p(f"s_lshl_b32 s37, s{sCB}, 7")
    p("s_add_u32 s36, s36, s37")
    p("s_lshl_b32 s37, s34, 6")
    p("s_add_u32 s36, s36, s37")
    p(f"s_and_b32 s37, s{sW}, 1")
    p("s_lshl_b32 s37, s37, 5")
    p("s_add_u32 s36, s36, s37")
    p(f"v_and_b32 v{vT}, 31, v{vL}")
    p(f"v_lshlrev_b32 v{vT}, 10, v{vT}")
    p(f"v_lshrrev_b32 v{vT+3}, 5, v{vL}")
    p(f"v_lshl_add_u32 v{vT}, v{vT+3}, 4, v{vT}")
    for w in range(1, 8):
        p(f"s_waitcnt lgkmcnt({2 * (7 - w)})")
        for i in range(8):
            p(f"v_add_f32 v{64+i}, v{64+i}, v{64 + w*8 + i}")
    for i in range(4):
        p(f"v_cvt_pk_bf16_f32 v{i}, v{64+2*i}, v{65+2*i}")
    p("s_nop 1")
    p("v_permlane32_swap_b32 v0, v2")
    p("v_permlane32_swap_b32 v1, v3")
    p("s_nop 1")
    p(f"buffer_store_dwordx4 v[0:3], v{vT}, s[{S_OUT}:{S_OUT+3}], s36 offen")
    st_(6)
    if G_.STAMPS: p("s_waitcnt vmcnt(0)")
    st_(7); st_.real(9)
    st_.dump(S_WS, sW, 2, 8)
    p.label("L3_end")
    p("s_endpgm")
    errs = p.check(["pro"])
    return p, errs
```

```python
import sys
from asmlib import Prog, interleave

NAME = 'gated_mix__compressed_kv_cla__linear_attn_block__prompt'
KWS, VWS, AWS, PQ, KVP, G = 0, 16 << 20, 32 << 20, 52 << 20, 56 << 20, 58 << 20
WS_BYTES = 128 << 20
LOG2E = 0x3fb8aa3b
MF = "v_mfma_f32_32x32x16_bf16"

def vr(b, n=4):
    return f"v[{b}:{b+n-1}]"

def srd(p, s, lo, nbytes):
    p(f"s_mov_b32 s{s}, s{lo}")
    p(f"s_and_b32 s{s+1}, s{lo+1}, 0xffff")
    p(f"s_mov_b32 s{s+2}, {nbytes}")
    p(f"s_mov_b32 s{s+3}, 0x20000")

def load_kernargs(p):
    p("s_load_dwordx16 s[64:79], s[0:1], 0")
    p("s_load_dwordx8 s[80:87], s[0:1], 64")
    p("s_load_dwordx2 s[88:89], s[0:1], 96")

P_X, P_CKV, P_WQ, P_WUK, P_WUV, P_WO, P_BX, P_WQKV, P_BWO, P_GATE, P_OUT, P_DBG, P_WS = [64 + 2 * i for i in range(13)]

STAMPS = False
DBGOFF = 60 << 20
class Stamper:
    def __init__(self, p, base=90, n=10):
        self.p, self.base, self.n, self.i = p, base, n, 0
    def __call__(self, idx):
        if not STAMPS: return
        p = self.p
        p("s_memtime s[62:63]")
        p("s_waitcnt lgkmcnt(0)")
        p(f"s_mov_b32 s{self.base+idx}, s62")
    def real(self, idx):
        if not STAMPS: return
        p = self.p
        p("s_memrealtime s[62:63]")
        p("s_waitcnt lgkmcnt(0)")
        p(f"s_mov_b32 s{self.base+idx}, s62")
    def dump(self, sws, swave, kidx, vtmp):
        if not STAMPS: return
        p = self.p
        p("s_lshl_b32 s62, s2, 3")
        p(f"s_add_u32 s62, s62, s{swave}")
        p("s_lshl_b32 s62, s62, 6")
        p(f"s_add_u32 s62, s62, {DBGOFF + kidx * (1 << 20)}")
        p(f"v_mov_b32 v{vtmp}, 0")
        for i in range(self.n):
            p(f"v_mov_b32 v{vtmp+1}, s{self.base+i}")
            p(f"buffer_store_dword v{vtmp+1}, v{vtmp}, s[{sws}:{sws+3}], s62 offen offset:{4*i}")

def kernel_header(name):
    return f".globl {name}\n.p2align 8\n.type {name},@function\n{name}:\n"

def kernel_desc(name, vgpr, sgpr=102):
    acc = (vgpr + 3) // 4 * 4
    return f""".p2align 6
.amdhsa_kernel {name}
  .amdhsa_next_free_vgpr {vgpr}
  .amdhsa_next_free_sgpr {sgpr}
  .amdhsa_accum_offset {acc}
  .amdhsa_group_segment_fixed_size 0
  .amdhsa_kernarg_size 104
  .amdhsa_user_sgpr_count 2
  .amdhsa_user_sgpr_kernarg_segment_ptr 1
  .amdhsa_system_sgpr_workgroup_id_x 1
.end_amdhsa_kernel
"""

def gen_l1():
    p = Prog()
    S_CKV, S_WUK, S_WUV, S_X, S_WQKV, S_WS, S_GATE = 4, 8, 12, 16, 20, 24, 28
    sH, sJ, sW, sRB, sHP, sT, sT2, sM0X, sM0W, sKS, sST = 32, 33, 34, 35, 36, 37, 38, 39, 40, 41, 42
    ACC = lambda tbi, cbi: (tbi * 2 + cbi) * 16
    XF = lambda st, tbi: 128 + st * 24 + tbi * 4
    WF = lambda st, cbi: 128 + st * 24 + 16 + cbi * 4
    vXD, vWD, vXR, vWR, vST, vBD, vBR, vL, vT = 176, 180, 182, 186, 188, 189, 190, 193, 194
    BQ, BK, BV = 200, 216, 232
    KEEP = 240
    LX = [0, 32768]; LW = [65536, 98304]; LSP = 131072
    LB = [32768, 98304, 131072]

    p.seg("pro")
    st_ = Stamper(p)
    p("s_cmp_ge_u32 s2, 256")
    p("s_cbranch_scc1 L1_end")
    st_(0); st_.real(8)
    load_kernargs(p)
    p(f"v_and_b32 v{vL}, 63, v0")
    p(f"v_lshrrev_b32 v{vT}, 6, v0")
    p("s_and_b32 s37, s2, 7")
    p("s_lshr_b32 s38, s2, 3")
    p(f"v_readfirstlane_b32 s{sW}, v{vT}")
    p(f"s_lshl_b32 s{sH}, s37, 2")
    p("s_and_b32 s43, s38, 3")
    p(f"s_add_u32 s{sH}, s{sH}, s43")
    p(f"s_lshr_b32 s{sJ}, s38, 2")
    p(f"s_lshr_b32 s{sRB}, s37, 1")
    p(f"s_lshl_b32 s{sRB}, s{sRB}, 2")
    p(f"s_add_u32 s{sRB}, s{sRB}, s43")
    p(f"s_and_b32 s{sHP}, s37, 1")
    p(f"s_lshl_b32 s{sHP}, s{sHP}, 3")
    p(f"s_add_u32 s{sHP}, s{sHP}, s{sJ}")
    p(f"s_lshl_b32 s43, s{sJ}, 8")
    p(f"s_lshl_b32 s44, s{sW}, 5")
    p("s_add_u32 s43, s43, s44")
    p("s_lshl_b32 s43, s43, 10")
    p(f"v_lshrrev_b32 v{vT}, 3, v{vL}")
    p(f"v_lshlrev_b32 v{vT}, 10, v{vT}")
    p(f"v_add_u32 v{vT}, s43, v{vT}")
    p(f"v_lshrrev_b32 v{vT+1}, 4, v{vL}")
    p(f"v_and_b32 v{vT+2}, 7, v{vL}")
    p(f"v_xor_b32 v{vT+3}, v{vT+2}, v{vT+1}")
    p(f"v_lshlrev_b32 v{vT+3}, 4, v{vT+3}")
    p(f"v_xor_b32 v{vT+4}, 64, v{vT+3}")
    p(f"v_add_u32 v{vXD}, v{vT}, v{vT+3}")
    p(f"v_add_u32 v{vXD+1}, v{vT}, v{vT+4}")
    p(f"v_add_u32 v{vXD+1}, {8192 - 1024}, v{vXD+1}")
    p(f"v_add_u32 v{vXD+2}, {16384 - 2048}, v{vXD}")
    p(f"v_add_u32 v{vXD+3}, {16384 - 2048}, v{vXD+1}")
    p(f"s_lshl_b32 s43, s{sW}, 16")
    p(f"s_lshl_b32 s44, s{sH}, 8")
    p("s_add_u32 s43, s43, s44")
    p(f"v_lshlrev_b32 v{vT}, 13, v{vT+1}")
    p(f"v_add_u32 v{vT}, s43, v{vT}")
    p(f"v_and_b32 v{vT+2}, 15, v{vL}")
    p(f"v_lshlrev_b32 v{vT+3}, 2, v{vT+1}")
    p(f"v_xor_b32 v{vT+2}, v{vT+2}, v{vT+3}")
    p(f"v_lshlrev_b32 v{vT+2}, 4, v{vT+2}")
    p(f"v_add_u32 v{vWD}, v{vT}, v{vT+2}")
    p(f"v_add_u32 v{vWD+1}, {4 * 8192 - 1024}, v{vWD}")
    p(f"s_lshr_b32 s43, s{sW}, 1")
    p("s_and_b32 s43, s43, 1")
    p("s_lshl_b32 s44, s43, 14")
    p(f"v_and_b32 v{vT}, 31, v{vL}")
    p(f"v_lshlrev_b32 v{vT}, 7, v{vT}")
    p(f"v_add_u32 v{vT}, s44, v{vT}")
    p(f"v_lshrrev_b32 v{vT+2}, 5, v{vL}")
    p(f"v_bfe_u32 v{vT+3}, v{vL}, 1, 3")
    p(f"v_xor_b32 v{vT+3}, v{vT+3}, v{vT+2}")
    p(f"v_lshlrev_b32 v{vT+3}, 4, v{vT+3}")
    for kk in range(4):
        p(f"v_xor_b32 v{vT+4}, {kk * 32}, v{vT+3}")
        p(f"v_add_u32 v{vXR+kk}, v{vT}, v{vT+4}")
    p(f"s_lshr_b32 s44, s{sW}, 2")
    p("s_lshl_b32 s45, s44, 11")
    p("s_add_u32 s45, s45, 65536")
    p(f"s_and_b32 s46, s{sW}, 1")
    p("s_lshl_b32 s47, s46, 1")
    p(f"v_lshlrev_b32 v{vT}, 12, v{vT+2}")
    p(f"v_add_u32 v{vT}, s45, v{vT}")
    p(f"v_bfe_u32 v{vT+3}, v{vL}, 2, 2")
    p(f"v_lshl_add_u32 v{vT}, v{vT+3}, 8, v{vT}")
    p(f"v_bfe_u32 v{vT+4}, v{vL}, 4, 1")
    p(f"v_lshlrev_b32 v{vT+4}, 5, v{vT+4}")
    p(f"v_and_b32 v{vT+5}, 3, v{vL}")
    p(f"v_lshl_add_u32 v{vT+4}, v{vT+5}, 3, v{vT+4}")
    p(f"v_add_u32 v{vT}, v{vT}, v{vT+4}")
    p(f"v_xor_b32 v{vT+5}, s47, v{vT+3}")
    p(f"v_lshl_add_u32 v{vWR}, v{vT+5}, 6, v{vT}")
    p(f"v_xor_b32 v{vT+5}, 1, v{vT+5}")
    p(f"v_lshl_add_u32 v{vWR+1}, v{vT+5}, 6, v{vT}")
    p(f"v_lshl_add_u32 v{vT}, v{vT+2}, 3, v{vT+3}")
    p(f"v_lshl_add_u32 v{vT}, v{vT}, 6, v{vT+4}")
    for s in range(3):
        p(f"v_add_u32 v{vBR+s}, {LB[s]}, v{vT}")
    p(f"v_lshrrev_b32 v{vT}, 2, v{vL}")
    p(f"v_mul_u32_u24 v{vT}, 3072, v{vT}")
    p(f"v_and_b32 v{vT+1}, 3, v{vL}")
    p(f"v_lshl_add_u32 v{vT}, v{vT+1}, 4, v{vT}")
    p(f"s_lshl_b32 s45, s{sHP}, 6")
    p(f"v_add_u32 v{vBD}, s45, v{vT}")
    p(f"v_lshlrev_b32 v{vST}, 4, v{vL}")
    p(f"s_lshl_b32 s{sST}, s{sH}, 6")
    p(f"s_lshl_b32 s45, s{sJ}, 3")
    p(f"s_add_u32 s{sST}, s{sST}, s45")
    p("s_lshl_b32 s45, s43, 2")
    p(f"s_add_u32 s{sST}, s{sST}, s45")
    p(f"s_lshl_b32 s{sST}, s{sST}, 13")
    p("s_lshl_b32 s45, s46, 12")
    p(f"s_add_u32 s{sST}, s{sST}, s45")
    p("s_lshl_b32 s45, s44, 24")
    p(f"s_add_u32 s{sST}, s{sST}, s45")
    p(f"s_lshl_b32 s{sM0X}, s{sW}, 12")
    p(f"s_add_u32 s{sM0W}, s{sM0X}, 65536")
    p("s_waitcnt lgkmcnt(0)")
    srd(p, S_CKV, P_CKV, 2 << 20)
    srd(p, S_WUK, P_WUK, 4 << 20)
    srd(p, S_WUV, P_WUV, 4 << 20)
    srd(p, S_X, P_X, 2 << 20)
    srd(p, S_WQKV, P_WQKV, 512 * 1536 * 2)
    srd(p, S_WS, P_WS, WS_BYTES)
    srd(p, S_GATE, P_GATE, 1024)

    def dma_stage(s):
        b = s & 1
        L = []
        L.append(f"s_add_u32 m0, s{sM0X}, {LX[b]}")
        L.append(f"s_mov_b32 s{sKS}, {s * 128}")
        for i in range(4):
            L.append(f"buffer_load_dwordx4 v{vXD+i}, s[{S_CKV}:{S_CKV+3}], s{sKS} offen offset:{1024*i} lds")
        L.append(f"s_add_u32 m0, s{sM0W}, {b * 32768}")
        L.append(f"s_mov_b32 s{sKS}, {s * 64 * 8192}")
        for i in range(2):
            L.append(f"buffer_load_dwordx4 v{vWD+i}, s[{S_WUK}:{S_WUK+3}], s{sKS} offen offset:{1024*i} lds")
        L.append(f"s_add_u32 m0, s{sM0W}, {b * 32768 + 2048}")
        L.append("s_nop 0")
        for i in range(2):
            L.append(f"buffer_load_dwordx4 v{vWD+i}, s[{S_WUV}:{S_WUV+3}], s{sKS} offen offset:{1024*i} lds")
        return L

    p(f"s_mul_i32 s43, s{sW}, {4 * 49152}")
    for s in range(3):
        p(f"s_add_u32 m0, s{sM0X}, {LB[s]}")
        for i in range(4):
            p(f"s_add_u32 s44, s43, {i * (49152 - 1024) + s * 1024}")
            p(f"buffer_load_dwordx4 v{vBD}, s[{S_WQKV}:{S_WQKV+3}], s44 offen offset:{1024*i} lds")
    p(f"s_cmp_ge_u32 s{sW}, 4")
    p("s_cbranch_scc1 L1_vpath")

    def reads(s, kk, st):
        b = s & 1
        L = []
        def wr(cbi):
            L.append(f"ds_read_b64_tr_b16 v[{WF(st,cbi)}:{WF(st,cbi)+1}], v{vWR+cbi} offset:{b*32768 + kk*8192}")
            L.append(f"ds_read_b64_tr_b16 v[{WF(st,cbi)+2}:{WF(st,cbi)+3}], v{vWR+cbi} offset:{b*32768 + kk*8192 + 1024}")
        def xr(tbi):
            L.append(f"ds_read_b128 {vr(XF(st,tbi))}, v{vXR+kk} offset:{b*32768 + tbi*4096}")
        wr(0); xr(0); wr(1); xr(1); xr(2); xr(3)
        return L

    def mfmas(isv, st, first):
        L = []
        for tbi in range(4):
            for cbi in range(2):
                a = ACC(tbi, cbi)
                c = "0" if first else vr(a, 16)
                if isv:
                    L.append(f"{MF} {vr(a,16)}, {vr(XF(st,tbi))}, {vr(WF(st,cbi))}, {c}")
                else:
                    L.append(f"{MF} {vr(a,16)}, {vr(WF(st,cbi))}, {vr(XF(st,tbi))}, {c}")
        return L

    def step(isv, s, kk, nxt):
        st = (s * 4 + kk) & 1
        M = mfmas(isv, st, s == 0 and kk == 0)
        Rd = reads(nxt[0], nxt[1], st ^ 1) if nxt else []
        p("s_waitcnt lgkmcnt(0)")
        for i, m in enumerate(M):
            p(m)
            for r in Rd[2 * i:2 * i + 2]:
                p(r)

    def main_loop(isv, tag):
        for s in range(8):
            if s == 0:
                p.seg(f"{tag}_s0")
                for r in reads(0, 0, 0):
                    p(r)
            for kk in range(3):
                step(isv, s, kk, (s, kk + 1))
            if s == 0 and isv:
                p("s_barrier")
                st_(2)
                for x in dma_stage(1):
                    p(x)
            if s < 7:
                p("s_waitcnt vmcnt(0) lgkmcnt(0)")
                p("s_barrier")
                if s == 0: st_(3)
                if s == 3: st_(4)
                if s + 2 < 8:
                    for x in dma_stage(s + 2):
                        p(x)
                if s == 0 and not isv:
                    p(f"s_cmp_lg_u32 s{sW}, 0")
                    p("s_cbranch_scc1 L1_nored")
                    p.seg("k_red")
                    for r in range(3):
                        for q in range(4):
                            p(f"ds_read_b128 {vr(192 + (r*4+q)*4)}, v{vST} offset:{r*4096 + q*1024 + 0}" .replace("offset:", "offset:") )
                    p("s_waitcnt lgkmcnt(0)")
                    for r in range(3):
                        for i in range(16):
                            p(f"v_add_f32 v{KEEP+i}, v{192 + r*16 + i}, v{KEEP+i}")
                    p(f"s_lshl_b32 s43, s{sHP}, 4")
                    p(f"s_add_u32 s43, s43, s{sRB}")
                    p("s_lshl_b32 s43, s43, 12")
                    p(f"s_add_u32 s43, s43, {KVP}")
                    p(f"v_subrev_u32 v192, {LSP}, v{vST}")
                    for q in range(4):
                        p(f"buffer_store_dwordx4 {vr(KEEP + q*4)}, v192, s[{S_WS}:{S_WS+3}], s43 offen offset:{q*1024}")
                    p.seg("k_rest")
                    p.label("L1_nored")
                    p(f"v_subrev_u32 v{vST}, {LSP}, v{vST}")
                step(isv, s, 3, (s + 1, 0))
            else:
                step(isv, s, 3, None)
        p("s_nop 7")
        p("s_nop 7")
        st_(5)
        for tbi in range(4):
            if tbi:
                p(f"s_add_u32 s{sST}, s{sST}, 8192")
            for cbi in range(2):
                a = ACC(tbi, cbi)
                d = 128 + ((tbi * 2 + cbi) & 3) * 8
                for i in range(8):
                    p(f"v_cvt_pk_bf16_f32 v{d+i}, v{a+2*i}, v{a+2*i+1}")
                for half in range(2):
                    p(f"buffer_store_dwordx4 {vr(d + half*4)}, v{vST}, s[{S_WS}:{S_WS+3}], s{sST} offen offset:{cbi*2048 + half*1024}")
        st_(6)
        if STAMPS: p("s_waitcnt vmcnt(0)")
        st_(7); st_.real(9)
        st_.dump(S_WS, sW, 0, 0)
        p("s_endpgm")

    p.seg("k_pro")
    p(f"s_lshl_b32 s43, s{sRB}, 7")
    p(f"s_lshl_b32 s44, s{sW}, 5")
    p("s_add_u32 s43, s43, s44")
    p("s_lshl_b32 s43, s43, 10")
    p(f"v_and_b32 v{vT}, 31, v{vL}")
    p(f"v_lshlrev_b32 v{vT}, 10, v{vT}")
    p(f"v_lshrrev_b32 v{vT+1}, 5, v{vL}")
    p(f"v_lshl_add_u32 v{vT}, v{vT+1}, 4, v{vT}")
    for kk in range(32):
        p(f"buffer_load_dwordx4 {vr(kk*4)}, v{vT}, s[{S_X}:{S_X+3}], s43 offen offset:{kk*32}")
    for x in dma_stage(0):
        p(x)
    p("s_waitcnt vmcnt(0)")
    p("s_barrier")
    st_(1)
    BF = lambda st, seg: 128 + st * 12 + seg * 4
    def breads(kk):
        st = kk % 3
        L = []
        for seg in range(3):
            L.append(f"ds_read_b64_tr_b16 v[{BF(st,seg)}:{BF(st,seg)+1}], v{vBR+seg} offset:{kk*1024}")
            L.append(f"ds_read_b64_tr_b16 v[{BF(st,seg)+2}:{BF(st,seg)+3}], v{vBR+seg} offset:{kk*1024 + 256}")
        return L
    for r in breads(0) + breads(1):
        p(r)
    for kk in range(32):
        st = kk % 3
        p(f"s_waitcnt lgkmcnt({6 if kk < 31 else 0})")
        Rd = breads(kk + 2) if kk + 2 < 32 else []
        c = lambda a: "0" if kk == 0 else vr(a, 16)
        M = [f"{MF} {vr(BQ,16)}, {vr(BF(st,0))}, {vr(kk*4)}, {c(BQ)}",
             f"{MF} {vr(BK,16)}, {vr(kk*4)}, {vr(BF(st,1))}, {c(BK)}",
             f"{MF} {vr(BV,16)}, {vr(kk*4)}, {vr(BF(st,2))}, {c(BV)}"]
        for i, m in enumerate(M):
            p(m)
            for r in Rd[2 * i:2 * i + 2]:
                p(r)
    p("s_barrier")
    st_(2)
    for x in dma_stage(1):
        p(x)
    def phi(src, dst):
        for i in range(8):
            p(f"v_cvt_pk_bf16_f32 v{32+i}, v{src+2*i}, v{src+2*i+1}")
        for i in range(8):
            p(f"v_lshlrev_b32 v{40+2*i}, 16, v{32+i}")
            p(f"v_and_b32 v{41+2*i}, 0xffff0000, v{32+i}")
        for i in range(16):
            p(f"v_min_f32 v{56+i}, 0, v{40+i}")
        for i in range(16):
            p(f"v_mul_f32 v{56+i}, {LOG2E:#x}, v{56+i}")
        for i in range(16):
            p(f"v_exp_f32 v{56+i}, v{56+i}")
        for i in range(16):
            p(f"v_max_f32 v{40+i}, 0, v{40+i}")
        for i in range(16):
            p(f"v_add_f32 v{40+i}, 0x358637bd, v{40+i}")
        for i in range(16):
            p(f"v_add_f32 v{40+i}, v{40+i}, v{56+i}")
        for i in range(8):
            p(f"v_cvt_pk_bf16_f32 v{dst+i}, v{40+2*i}, v{41+2*i}")
    phi(BK, 8)
    for i in range(8):
        p(f"v_cvt_pk_bf16_f32 v{16+i}, v{BV+2*i}, v{BV+2*i+1}")
    for i in range(4):
        p(f"v_mov_b32 v{24+i}, 0x3f803f80")
    p("s_nop 1")
    p(f"{MF} {vr(80,16)}, {vr(8)}, {vr(16)}, 0")
    p(f"{MF} {vr(96,16)}, {vr(8)}, {vr(24)}, 0")
    p(f"{MF} {vr(80,16)}, {vr(12)}, {vr(20)}, {vr(80,16)}")
    p(f"{MF} {vr(96,16)}, {vr(12)}, {vr(24)}, {vr(96,16)}")
    phi(BQ, 0)
    p(f"s_lshl_b32 s43, s{sRB}, 2")
    p(f"s_add_u32 s43, s43, s{sW}")
    p("s_lshl_b32 s43, s43, 5")
    p(f"s_lshl_b32 s44, s{sHP}, 1")
    p("s_add_u32 s43, s43, s44")
    p("s_lshl_b32 s43, s43, 10")
    p(f"s_add_u32 s43, s43, {PQ}")
    for s in range(2):
        p(f"buffer_store_dwordx4 {vr(4*s)}, v{vST}, s[{S_WS}:{S_WS+3}], s43 offen offset:{s*1024}")
    p(f"v_and_b32 v{vT}, 16, v{vL}")
    p(f"v_cmp_ne_u32 vcc, 0, v{vT}")
    p("s_nop 1")
    for i in range(8):
        p(f"v_cndmask_b32 v{KEEP+i}, v{80+i}, v{88+i}, vcc")
    for i in range(8):
        p(f"v_cndmask_b32 v{KEEP+8+i}, v{96+i}, v{104+i}, vcc")
    p(f"v_add_u32 v{vST}, {LSP}, v{vST}")
    p(f"s_lshl_b32 s43, s{sW}, 12")
    p("s_sub_u32 s43, s43, 4096")
    p(f"v_add_u32 v{vT}, s43, v{vST}")
    p(f"s_cmp_eq_u32 s{sW}, 0")
    p("s_cbranch_scc1 L1_nowr")
    p.seg("k_wr")
    for q in range(4):
        p(f"ds_write_b128 v{vT}, {vr(KEEP + q*4)} offset:{q*1024}")
    p.seg("k_wr2")
    p.label("L1_nowr")
    main_loop(False, "k")

    p.seg("v_pro")
    p.label("L1_vpath")
    p("s_lshl_b32 s43, s2, 3")
    p(f"s_sub_u32 s44, s{sW}, 4")
    p("s_lshl_b32 s44, s44, 1")
    p("s_add_u32 s43, s43, s44")
    p("s_lshl_b32 s44, s43, 10")
    p(f"buffer_load_dwordx4 {vr(0)}, v{vST}, s[{S_X}:{S_X+3}], s44 offen")
    p(f"buffer_load_dwordx4 {vr(4)}, v{vST}, s[{S_X}:{S_X+3}], s44 offen offset:1024")
    p(f"buffer_load_dwordx4 {vr(8)}, v{vST}, s[{S_GATE}:{S_GATE+3}], 0 offen")
    for x in dma_stage(0):
        p(x)
    p("s_waitcnt vmcnt(8)")
    for i in range(12):
        p(f"v_lshlrev_b32 v{16+2*i}, 16, v{i}")
        p(f"v_and_b32 v{17+2*i}, 0xffff0000, v{i}")
    for t in range(2):
        p(f"v_mul_f32 v{40+t}, v{16+8*t}, v32")
    for i in range(1, 8):
        for t in range(2):
            p(f"v_fmac_f32 v{40+t}, v{16+8*t+i}, v{32+i}")
    for sh in ("row_shr:1", "row_shr:2", "row_shr:4", "row_shr:8"):
        p("s_nop 1")
        for t in range(2):
            p(f"v_add_f32_dpp v{40+t}, v{40+t}, v{40+t} {sh} row_mask:0xf bank_mask:0xf bound_ctrl:0")
    p("s_nop 1")
    for t in range(2):
        p(f"v_add_f32_dpp v{40+t}, v{40+t}, v{40+t} row_bcast:15 row_mask:0xa bank_mask:0xf")
    p("s_nop 1")
    for t in range(2):
        p(f"v_add_f32_dpp v{40+t}, v{40+t}, v{40+t} row_bcast:31 row_mask:0xc bank_mask:0xf")
    for t in range(2):
        p(f"v_mul_f32 v{40+t}, 0xbfb8aa3b, v{40+t}")
    for t in range(2):
        p(f"v_exp_f32 v{40+t}, v{40+t}")
    p("s_nop 0")
    for t in range(2):
        p(f"v_add_f32 v{40+t}, 1.0, v{40+t}")
    for t in range(2):
        p(f"v_rcp_f32 v{40+t}, v{40+t}")
    p(f"v_cmp_eq_u32 vcc, 63, v{vL}")
    p("v_mov_b32 v42, 0x7ffffff0")
    p("s_lshl_b32 s43, s43, 2")
    p(f"s_add_u32 s43, s43, {G}")
    p("v_cndmask_b32 v42, v42, 0, vcc")
    p(f"buffer_store_dwordx2 v[40:41], v42, s[{S_WS}:{S_WS+3}], s43 offen")
    p("s_waitcnt vmcnt(0)")
    p("s_barrier")
    st_(1)
    main_loop(True, "v")
    p.seg("end")
    p.label("L1_end")
    p("s_endpgm")
    errs = []
    errs += p.check(["pro", "k_pro", "k_wr", "k_wr2", "k_s0", "k_red", "k_rest"])
    errs += p.check(["pro", "k_pro", "k_wr2", "k_s0", "k_rest"])
    errs += p.check(["pro", "v_pro", "v_s0"])
    return p, errs


def main():
    global STAMPS
    if '--stamps' in sys.argv:
        STAMPS = True; sys.argv.remove('--stamps')
    out = []
    hdr = open(f'cdna_kernels/{NAME}.s.ref').read().split("; Override launch")[0]
    kernels = []
    p1, e1 = gen_l1()
    kernels.append(("l1_kernel", p1, 256, "grid=(256,1,1) block=(512,1,1) lds=163840"))
    errs = e1
    import gen2
    p2, e2 = gen2.gen_l2()
    kernels.append(("l2_kernel", p2, 256, "grid=(256,1,1) block=(512,1,1) lds=163840"))
    errs += e2
    import gen3
    p3, e3 = gen3.gen_l3()
    kernels.append(("l3_kernel", p3, 160, "grid=(256,1,1) block=(512,1,1) lds=131072"))
    errs += e3
    for e in errs:
        print("HAZARD", e)
    out.append(hdr)
    for n, p, v, l in kernels:
        out.append(f"; @launch kernel={n} {l}\n")
    out.append('.amdgcn_target "amdgcn-amd-amdhsa--gfx950"\n.text\n')
    for n, p, v, l in kernels:
        out.append(kernel_header(n))
        out.append(p.text())
    out.append('.section .rodata,"a"\n')
    for n, p, v, l in kernels:
        out.append(kernel_desc(n, v))
    dst = sys.argv[1] if len(sys.argv) > 1 else f'cdna_kernels/{NAME}.s'
    open(dst, 'w').write("".join(out))
    print("wrote", dst, "errs", len(errs))

if __name__ == '__main__':
    import gen
    gen.main()
```

```python
import re

class Ins:
    __slots__ = ("text", "op", "args", "mods", "nodst")
    def __init__(self, text):
        self.text = text
        self.nodst = False
        t = text.split(";")[0].strip()
        parts = t.split(None, 1)
        self.op = parts[0]
        rest = parts[1] if len(parts) > 1 else ""
        args = []
        cur = ""
        depth = 0
        for ch in rest:
            if ch in "[(":
                depth += 1
            if ch in "])":
                depth -= 1
            if ch == "," and depth == 0:
                args.append(cur.strip()); cur = ""
            else:
                cur += ch
        if cur.strip():
            args.append(cur.strip())
        mods = []
        if args:
            sp = args[-1].split()
            args[-1] = sp[0]
            mods = sp[1:]
        self.args = args
        self.mods = mods

_REG = re.compile(r"^-?(?:abs\()?\|?([vas])(?:(\d+)|\[(\d+):(\d+)\])\|?\)?$")

def regs_of(arg):
    a = arg.strip()
    if a in ("vcc", "vcc_lo", "vcc_hi"):
        return {("s", "vcc")}
    if a in ("exec", "exec_lo", "exec_hi"):
        return {("s", "exec")}
    if a == "m0":
        return {("s", "m0")}
    m = _REG.match(a)
    if not m:
        return set()
    k = m.group(1)
    if m.group(2) is not None:
        return {(k, int(m.group(2)))}
    return {(k, i) for i in range(int(m.group(3)), int(m.group(4)) + 1)}

TRANS = ("v_exp_f32", "v_log_f32", "v_rcp_f32", "v_rsq_f32", "v_sqrt_f32", "v_sin_f32", "v_cos_f32")

def classify(ins):
    op, a = ins.op, ins.args
    R, W = set(), set()
    if op.startswith("v_mfma"):
        W |= regs_of(a[0])
        for x in a[1:4]:
            R |= regs_of(x)
        return "mfma", R, W
    if op.startswith("v_cmp"):
        W |= regs_of(a[0])
        for x in a[1:]:
            R |= regs_of(x)
        return "valu", R, W
    if op.startswith("v_permlane32_swap") or op.startswith("v_permlane16_swap"):
        for x in a[:2]:
            R |= regs_of(x); W |= regs_of(x)
        return "valu", R, W
    if op in ("v_readfirstlane_b32", "v_readlane_b32"):
        W |= regs_of(a[0])
        for x in a[1:]:
            R |= regs_of(x)
        return "valu", R, W
    if op.startswith("v_"):
        W |= regs_of(a[0])
        if op == "v_writelane_b32":
            R |= regs_of(a[0])
        rest = a[1:]
        if op.startswith("v_add_co") or op.startswith("v_sub_co") or op.startswith("v_addc_co"):
            W |= regs_of(a[1]); rest = a[2:]
        for x in rest:
            R |= regs_of(x)
        if op.startswith("v_fmac") or op.startswith("v_dot2c") or op.startswith("v_pk_fmac"):
            R |= regs_of(a[0])
        if op.startswith("v_cndmask") and len(a) == 3:
            R |= {("s", "vcc")}
        return "valu", R, W
    if op.startswith("ds_read") or op.startswith("ds_bpermute") or op.startswith("ds_swizzle"):
        W |= regs_of(a[0])
        for x in a[1:]:
            R |= regs_of(x)
        return "ds", R, W
    if op.startswith("ds_"):
        for x in a:
            R |= regs_of(x)
        return "ds", R, W
    if op.startswith("buffer_load") or op.startswith("global_load"):
        if "lds" in ins.mods or "_lds_" in op:
            for x in a:
                R |= regs_of(x)
            R |= {("s", "m0")}
            return "vmem", R, W
        if not ins.nodst:
            W |= regs_of(a[0])
        for x in a[1:]:
            R |= regs_of(x)
        return "vmem", R, W
    if op.startswith("buffer_store") or op.startswith("global_store") or op.startswith("buffer_atomic") or op.startswith("global_atomic"):
        for x in a:
            R |= regs_of(x)
        if "atomic" in op and "sc0" in ins.mods:
            W |= regs_of(a[0])
        return "vmem", R, W
    if op.startswith("buffer_"):
        return "vmem", R, W
    if op.startswith("s_load") or op.startswith("s_memtime") or op.startswith("s_memrealtime"):
        W |= regs_of(a[0])
        for x in a[1:]:
            R |= regs_of(x)
        return "smem", R, W
    if op in ("s_waitcnt", "s_nop", "s_barrier", "s_endpgm", "s_setprio", "s_sleep", "s_call_b64", "s_setpc_b64") or op.startswith("s_cbranch") or op == "s_branch":
        return "ctl", R, W
    if op.startswith("s_cmp"):
        for x in a:
            R |= regs_of(x)
        return "salu", R, W
    if op.startswith("s_"):
        W |= regs_of(a[0])
        for x in a[1:]:
            R |= regs_of(x)
        if "saveexec" in op:
            W |= {("s", "exec")}
        return "salu", R, W
    raise ValueError("unknown op " + ins.text)

def mfma_passes(op):
    if "32x32x16" in op:
        return 8
    if "16x16x32" in op:
        return 4
    raise ValueError(op)

def check_seq(seq, name=""):
    errs = []
    hist = []
    pos = 0
    vm = []
    lg = []
    def err(msg, ins, prev):
        errs.append(f"[{name}] {msg}: '{prev.text.strip()}' -> '{ins.text.strip()}'")
    for ins in seq:
        if ins.op.endswith(":"):
            continue
        kind, R, W = classify(ins)
        if ins.op == "s_waitcnt":
            t = ins.text
            m = re.search(r"vmcnt\((\d+)\)", t)
            if m:
                n = int(m.group(1)); vm = vm[len(vm) - n:] if n < len(vm) else vm
                if n == 0: vm = []
            m = re.search(r"lgkmcnt\((\d+)\)", t)
            if m:
                n = int(m.group(1))
                if n == 0: lg = []
                elif n < len(lg):
                    if any(k == "smem" for k, _, _ in lg):
                        pass
                    else:
                        lg = lg[len(lg) - n:]
        else:
            for (pi, pw) in vm:
                if pw & (R | W):
                    err("use of un-waited vmem load dest", ins, pi)
            for (k, pi, pw) in lg:
                if pw & (R | W):
                    err("use of un-waited lgkm load dest", ins, pi)
        for (ppos, pk, pins, pR, pW) in hist:
            d = pos - ppos - 1
            if d >= 20:
                continue
            def need(n, msg):
                if d < n:
                    err(f"{msg} needs {n} has {d}", ins, pins)
            vW = {r for r in pW if r[0] in "va"}
            sW = {r for r in pW if r[0] == "s"}
            if pk == "valu":
                if kind == "mfma" and vW & R:
                    need(2, "valu->mfma")
                if pins.op in TRANS or pins.op.replace("_e64", "").replace("_e32", "") in TRANS:
                    if kind in ("valu",) and vW & R:
                        need(1, "trans->valu")
                    if kind == "mfma" and vW & R:
                        need(2, "trans->mfma")
                if ins.op.startswith("v_permlane") and vW & R:
                    need(2, "valu->permlane")
                if ins.op in ("v_readfirstlane_b32", "v_readlane_b32") and vW & R:
                    need(1, "valu->readlane")
                if kind == "valu" and ("dpp" in ins.op or any(m.startswith("row_") or m.startswith("quad_perm") for m in ins.mods)) and vW & R:
                    need(2, "valu->dpp")
                if sW:
                    if kind == "valu" and sW & R:
                        need(2, "valu sgpr->valu read")
                    if kind == "vmem" and sW & R:
                        need(5, "valu sgpr->vmem")
                if "op_sel" in " ".join(pins.mods) and kind == "valu" and vW & R and not pins.op.startswith("v_pk"):
                    need(1, "opsel->valu")
            if pk == "salu":
                if ("s", "m0") in pW and kind == "vmem" and ("s", "m0") in R:
                    need(1, "m0->ldsdma")
            if pk == "mfma":
                p = mfma_passes(pins.op)
                if kind == "mfma":
                    a = ins.args
                    AB = regs_of(a[1]) | regs_of(a[2])
                    C = regs_of(a[3])
                    if pW & AB:
                        need({8: 12, 4: 8}[p], "mfma D->mfma AB")
                    if pW & C:
                        if C == pW and mfma_passes(ins.op) == p:
                            pass
                        else:
                            need({8: 10, 4: 6}[p], "mfma D->mfma C overlap")
                    elif pW & W:
                        need({8: 10, 4: 6}[p], "mfma D->mfma D waw")
                elif kind in ("valu", "ds", "vmem"):
                    if pW & (R | W):
                        need({8: 12, 4: 8}[p], "mfma D->use")
                    pC = regs_of(pins.args[3])
                    if kind == "valu" and pC & W:
                        need({8: 7, 4: 3}[p], "mfma C war")
                    if kind in ("ds", "vmem") and pC & W:
                        need({8: 7, 4: 3}[p], "mfma C war(load)")
            if pk == "vmem" and ("store" in pins.op) and ("x4" in pins.op or "x3" in pins.op):
                data = regs_of(pins.args[0]) if pins.op.startswith("buffer") else regs_of(pins.args[1])
                if data & W and kind in ("valu", "mfma", "ds", "vmem"):
                    need(2, "store data war")
        if kind == "vmem":
            vm.append((ins, W))
        elif kind in ("ds", "smem"):
            lg.append((kind, ins, W))
        hist.append((pos, kind, ins, R, W))
        if len(hist) > 24:
            hist.pop(0)
        if ins.op == "s_nop":
            pos += int(ins.args[0], 0) + 1
        else:
            pos += 1
    return errs


class Prog:
    def __init__(self):
        self.segs = {}
        self.order = []
        self.cur = None
    def seg(self, name):
        assert name not in self.segs, name
        self.segs[name] = []
        self.order.append(name)
        self.cur = self.segs[name]
    def __call__(self, text):
        for line in text.strip("\n").split("\n"):
            s = line.strip()
            if not s or s.startswith(";"):
                continue
            if s.endswith(":"):
                self.label(s[:-1])
            else:
                self.cur.append(Ins(s))
    def label(self, name):
        self.cur.append(Ins(name + ":"))
    def raw(self, text):
        i = Ins("s_nop 0"); i.text = text; i.op = "raw:"
        self.cur.append(i)
    def text(self):
        out = []
        for n in self.order:
            out.append(f"; ---- {n}")
            for i in self.segs[n]:
                if i.op.endswith(":"):
                    out.append(i.text)
                else:
                    out.append("  " + i.text)
        return "\n".join(out) + "\n"
    def check(self, path):
        seq = []
        for n in path:
            seq += self.segs[n]
        return check_seq(seq, "+".join(path))


def interleave(mfmas, fillers, start=0, per=None):
    out = []
    n = len(mfmas)
    slots = n - start
    k = len(fillers)
    fi = 0
    for i, m in enumerate(mfmas):
        out.append(m)
        if i >= start:
            j = i - start + 1
            tgt = (k * j + slots - 1) // slots
            while fi < tgt:
                out.append(fillers[fi]); fi += 1
    while fi < k:
        out.append(fillers[fi]); fi += 1
    return out
```

```python
import sys, os
from asmlib import Prog

NAME = 'gated_mix__compressed_kv_cla__linear_attn_block__prompt'
KWS, VWS, AWS = 0, 16 << 20, 32 << 20
KVP, KVT, GW, FLG = 52 << 20, 56 << 20, 57 << 20, 58 << 20
DBGOFF = 60 << 20
WS_BYTES = 64 << 20
LOG2E = 0x3fb8aa3b
MF = "v_mfma_f32_32x32x16_bf16"
X = lambda k: bool(os.environ.get(k))
STAMPS = False

def vr(b, n=4):
    return f"v[{b}:{b+n-1}]"
def sr(b):
    return f"s[{b}:{b+3}]"

P_X, P_CKV, P_WQ, P_WUK, P_WUV, P_WO, P_BX, P_WQKV, P_BWO, P_GATE, P_OUT, P_DBG, P_WS = [64 + 2 * i for i in range(13)]
S_CKV, S_WUK, S_WUV, S_X, S_WQ, S_WQKV, S_WS, S_WO, S_BWO, S_OUT, S_GATE, S_DBG = [4 + 4 * i for i in range(12)]
WS = sr(S_WS)
sH, sI, sW, sG, sW4, sHP, sL, sN, sRB, sTO = range(90, 100)
t0, t1, t2, t3, t4, t5, t6, t7, t8, t9, t10, t11 = range(52, 64)
vSTAMP, vL, vST = 255, 254, 253
F_A, F_B, F_K, F_CS, F_CL, F_O = 0, 1, 20, 8, 12, 16
LXS = [0, 32768]
LWS = [65536, 98304, 131072]
MISC = 65536
TIMEOUT = 1 << 18
FLAG0 = int(os.environ.get('FLAG0', 10))
HS = int(os.environ.get('HS', 2))
TRS = int(os.environ.get('TRS', 6))
need_check_fn = [None]


class VM:
    def __init__(self, p):
        self.p, self.q = p, []
    def issue(self, tag, text, cond=False):
        self.p(text)
        if not cond:
            self.q += [tag] * len(text.strip().split("\n"))
    def count_after(self, tags):
        idx = [k for k, t in enumerate(self.q) if t in tags]
        if not idx:
            return None
        return len(self.q) - 1 - max(idx)
    def wait(self, tags, extra=""):
        n = self.count_after(tags)
        if n is None:
            if extra: self.p(f"s_waitcnt {extra}")
            return
        assert n <= 63, n
        self.p(f"s_waitcnt vmcnt({n}) {extra}".rstrip())
        self.q = self.q[len(self.q) - n:] if n else []
    def wait_all(self, extra=""):
        self.p(f"s_waitcnt vmcnt(0) {extra}".rstrip()); self.q = []


def stamp(p, idx):
    if not STAMPS: return
    p("s_memtime s[100:101]")
    p("s_waitcnt lgkmcnt(0)")
    p(f"v_writelane_b32 v{vSTAMP}, s100, {idx}")
def stamp_real(p, idx):
    if not STAMPS: return
    p("s_memrealtime s[100:101]")
    p("s_waitcnt lgkmcnt(0)")
    p(f"v_writelane_b32 v{vSTAMP}, s100, {idx}")

def srd(p, s, lo, nbytes):
    p(f"s_mov_b32 s{s}, s{lo}")
    p(f"s_and_b32 s{s+1}, s{lo+1}, 0xffff")
    p(f"s_mov_b32 s{s+2}, {nbytes}")
    p(f"s_mov_b32 s{s+3}, 0x20000")

def spread(fill, nslots):
    out = [[] for _ in range(nslots)]
    k = len(fill); fi = 0
    for i in range(nslots):
        tgt = (k * (i + 1) + nslots - 1) // nslots
        while fi < tgt:
            out[i].append(fill[fi]); fi += 1
    return out

_lab = [0]
def newlab(s):
    _lab[0] += 1
    return f"L_{s}_{_lab[0]}"

def poll_block(p, loads, tag):
    top, done = newlab("poll" + tag), newlab("pdone" + tag)
    p.label(top)
    for vd, va, s, so, e in loads:
        p(f"buffer_load_dword v{vd}, v{va}, {sr(s)}, {so} offen sc1")
    p("s_waitcnt vmcnt(0)")
    poll_check(p, loads)
    p(f"s_cbranch_vccz {done}")
    p("s_sleep 4")
    p(f"s_sub_u32 s{sTO}, s{sTO}, 1")
    p(f"s_cbranch_scc0 {top}")
    p(f"s_mov_b32 s{sTO}, 0")
    p.label(done)

def poll_check(p, loads):
    for k, (vd, va, s, so, e) in enumerate(loads):
        if k == 0:
            p(f"v_cmp_ne_u32 vcc, {e}, v{vd}")
        else:
            p(f"v_cmp_ne_u32 s[{t10}:{t11}], {e}, v{vd}")
            p("s_nop 0")
            p(f"s_or_b64 vcc, vcc, s[{t10}:{t11}]")
    p("s_nop 1")


def gen():
    p = Prog()
    vXD, vWA, vWB2, vXR, vWR, vXR2, vXB, vWQ = 216, 220, 222, 224, 228, 232, 236, 240
    vT = 184
    sXa, sXb, sXc, sWa, sWb, sM4, sST, sTB, sCB = 64, 65, 66, 67, 68, 69, 70, 71, 72
    p.seg("pro")
    p("s_cmp_ge_u32 s2, 256")
    p("s_cbranch_scc1 L_end")
    if STAMPS: p(f"v_mov_b32 v{vSTAMP}, 0")
    stamp(p, 0); stamp_real(p, 62)
    p("s_load_dwordx16 s[64:79], s[0:1], 0")
    p("s_load_dwordx8 s[80:87], s[0:1], 64")
    p("s_load_dwordx2 s[88:89], s[0:1], 96")
    p(f"v_and_b32 v{vL}, 63, v0")
    p(f"v_lshrrev_b32 v{vT}, 6, v0")
    p(f"s_and_b32 s{t0}, s2, 7")
    p(f"s_lshr_b32 s{t1}, s2, 3")
    p(f"v_readfirstlane_b32 s{sW}, v{vT}")
    p(f"s_lshl_b32 s{sH}, s{t0}, 2")
    p(f"s_and_b32 s{t2}, s{t1}, 3")
    p(f"s_add_u32 s{sH}, s{sH}, s{t2}")
    p(f"s_lshr_b32 s{sI}, s{t1}, 2")
    p(f"s_lshr_b32 s{sG}, s{sW}, 2")
    p(f"s_and_b32 s{sW4}, s{sW}, 3")
    p(f"s_lshr_b32 s{sHP}, s{sH}, 1")
    p(f"s_lshl_b32 s{sL}, s{sH}, 3")
    p(f"s_add_u32 s{sL}, s{sL}, s{sI}")
    p(f"s_sub_u32 s{sN}, 16, s{sI}")
    p(f"s_sub_u32 s{t3}, 15, s{sI}")
    p(f"s_and_b32 s{t4}, s{sH}, 1")
    p(f"s_cmp_eq_u32 s{t4}, 0")
    p(f"s_cselect_b32 s{sRB}, s{sI}, s{t3}")
    p(f"s_mov_b32 s{sTO}, {TIMEOUT}")
    p(f"v_lshlrev_b32 v{vST}, 4, v{vL}")
    l4, hi, r4, cc = vT + 1, vT + 2, vT + 3, vT + 4
    p(f"v_lshrrev_b32 v{l4}, 4, v{vL}")
    p(f"v_lshrrev_b32 v{hi}, 5, v{vL}")
    p(f"v_bfe_u32 v{r4}, v{vL}, 2, 2")
    p(f"v_lshrrev_b32 v{vT}, 3, v{vL}")
    p(f"v_lshlrev_b32 v{vT}, 10, v{vT}")
    p(f"v_and_b32 v{vT+5}, 7, v{vL}")
    p(f"v_xor_b32 v{vT+5}, v{vT+5}, v{l4}")
    p(f"v_lshlrev_b32 v{vT+5}, 4, v{vT+5}")
    p(f"v_xor_b32 v{vT+6}, 64, v{vT+5}")
    p(f"v_add_u32 v{vXD}, v{vT}, v{vT+5}")
    p(f"v_add_u32 v{vXD+1}, v{vT}, v{vT+6}")
    p(f"v_add_u32 v{vXD+1}, 7168, v{vXD+1}")
    p(f"v_add_u32 v{vXD+2}, {2*7168}, v{vXD}")
    p(f"v_add_u32 v{vXD+3}, {2*7168}, v{vXD+1}")
    p(f"s_lshl_b32 s{t5}, s{sH}, 8")
    p(f"v_lshlrev_b32 v{vT}, 13, v{l4}")
    p(f"v_add_u32 v{vT}, s{t5}, v{vT}")
    p(f"v_and_b32 v{vT+5}, 15, v{vL}")
    p(f"v_lshlrev_b32 v{vT+6}, 2, v{l4}")
    p(f"v_xor_b32 v{vT+5}, v{vT+5}, v{vT+6}")
    p(f"v_lshl_add_u32 v{vWA}, v{vT+5}, 4, v{vT}")
    p(f"v_add_u32 v{vWA+1}, {4*8192 - 1024}, v{vWA}")
    p(f"v_mul_u32_u24 v{vT}, 3072, v{l4}")
    p(f"v_lshrrev_b32 v{vT+6}, 2, v{vT+5}")
    p(f"v_min_u32 v{vT+6}, 2, v{vT+6}")
    p(f"v_lshl_add_u32 v{vT}, v{vT+6}, 10, v{vT}")
    p(f"v_and_b32 v{vT+6}, 3, v{vT+5}")
    p(f"v_lshl_add_u32 v{vT}, v{vT+6}, 4, v{vT}")
    p(f"s_lshl_b32 s{t5}, s{sHP}, 6")
    p(f"v_add_u32 v{vWB2}, s{t5}, v{vT}")
    p(f"v_add_u32 v{vWB2+1}, {4*3072 - 1024}, v{vWB2}")
    p(f"s_lshr_b32 s{t5}, s{sW}, 1")
    p(f"s_and_b32 s{t5}, s{t5}, 1")
    p(f"s_lshl_b32 s{t6}, s{t5}, 14")
    p(f"s_lshl_b32 s{t7}, s{sW}, 12")
    p(f"s_lshl_b32 s{t8}, s{t4}, 2")
    p(f"s_add_u32 s{t8}, s{t8}, s{sW4}")
    p(f"s_lshl_b32 s{t8}, s{t8}, 12")
    p(f"v_and_b32 v{vT}, 31, v{vL}")
    p(f"v_lshlrev_b32 v{vT}, 7, v{vT}")
    p(f"v_bfe_u32 v{vT+5}, v{vL}, 1, 3")
    p(f"v_xor_b32 v{vT+5}, v{vT+5}, v{hi}")
    p(f"v_lshlrev_b32 v{vT+5}, 4, v{vT+5}")
    for kk in range(4):
        p(f"v_xor_b32 v{vT+6}, {kk*32}, v{vT+5}")
        p(f"v_add_u32 v{vT+6}, v{vT}, v{vT+6}")
        p(f"v_add_u32 v{vXR+kk}, s{t6}, v{vT+6}")
        p(f"v_add_u32 v{vXR2+kk}, s{t7}, v{vT+6}")
        p(f"v_add_u32 v{vXB+kk}, s{t8}, v{vT+6}")
    p(f"v_lshlrev_b32 v{vT}, 12, v{hi}")
    p(f"v_lshl_add_u32 v{vT}, v{r4}, 8, v{vT}")
    p(f"v_and_b32 v{vT+5}, 1, v{l4}")
    p(f"v_lshl_add_u32 v{vT}, v{vT+5}, 5, v{vT}")
    p(f"v_and_b32 v{vT+5}, 3, v{vL}")
    p(f"v_lshl_add_u32 v{vT}, v{vT+5}, 3, v{vT}")
    p(f"v_add_u32 v{vT}, 0x10000, v{vT}")
    for d in range(4):
        p(f"v_xor_b32 v{vT+5}, {d}, v{r4}")
        p(f"v_lshl_add_u32 v{vWQ+d}, v{vT+5}, 6, v{vT}")
        p(f"v_add_u32 v{vWQ+4+d}, 0x10000, v{vWQ+d}")
    p(f"s_and_b32 s{t6}, s{sW}, 1")
    p(f"s_lshl_b32 s{t7}, s{t6}, 1")
    p(f"s_lshl_b32 s{t8}, s{sG}, 11")
    p(f"v_add_u32 v{vT}, s{t8}, v{vT}")
    p(f"v_xor_b32 v{vT+5}, s{t7}, v{r4}")
    p(f"v_lshl_add_u32 v{vWR}, v{vT+5}, 6, v{vT}")
    p(f"v_xor_b32 v{vT+5}, 1, v{vT+5}")
    p(f"v_lshl_add_u32 v{vWR+1}, v{vT+5}, 6, v{vT}")
    p(f"v_add_u32 v{vWR+2}, 0x10000, v{vWR}")
    p(f"v_add_u32 v{vWR+3}, 0x10000, v{vWR+1}")
    p(f"s_lshl_b32 s{t9}, s{sL}, 3")
    p(f"s_lshl_b32 s{t7}, s{t5}, 2")
    p(f"s_add_u32 s{t9}, s{t9}, s{t7}")
    p(f"s_lshl_b32 s{t9}, s{t9}, 13")
    p(f"s_lshl_b32 s{t7}, s{t6}, 12")
    p(f"s_add_u32 s{t9}, s{t9}, s{t7}")
    p(f"s_lshl_b32 s{t7}, s{sG}, 24")
    p(f"s_add_u32 s{t9}, s{t9}, s{t7}")
    p("s_waitcnt lgkmcnt(0)")
    stamp(p, 29)
    srd(p, S_CKV, P_CKV, 2 << 20)
    srd(p, S_WUK, P_WUK, 4 << 20)
    srd(p, S_WUV, P_WUV, 4 << 20)
    srd(p, S_X, P_X, 2 << 20)
    srd(p, S_WQ, P_WQ, 4 << 20)
    srd(p, S_WQKV, P_WQKV, 512 * 1536 * 2)
    srd(p, S_WS, P_WS, WS_BYTES)
    srd(p, S_WO, P_WO, 4 << 20)
    srd(p, S_BWO, P_BWO, 512 * 1024)
    srd(p, S_OUT, P_OUT, 2 << 20)
    srd(p, S_GATE, P_GATE, 1024)
    srd(p, S_DBG, P_DBG, 256)
    p(f"s_mov_b32 s{sST}, s{t9}")
    p(f"s_lshl_b32 s{t5}, s{sW4}, 15")
    p(f"s_lshl_b32 s{sXa}, s{sI}, 18")
    p(f"s_add_u32 s{sXa}, s{sXa}, s{t5}")
    p(f"s_lshl_b32 s{sXb}, s{sI}, 17")
    p(f"s_add_u32 s{sXb}, s{sXb}, s{t5}")
    p(f"s_lshl_b32 s{sXc}, s{t3}, 17")
    p(f"s_add_u32 s{sXc}, s{sXc}, s{t5}")
    p(f"s_lshl_b32 s{sWa}, s{sW4}, 16")
    p(f"s_mul_i32 s{sWb}, s{sW4}, {8*3072}")
    p(f"s_lshl_b32 s{sM4}, s{sW4}, 12")
    p(f"s_cmp_lt_u32 s{sH}, 16")
    p(f"s_cselect_b32 s{sTB}, s{sI}, s{t3}")
    p(f"s_lshl_b32 s{sTB}, s{sTB}, 1")
    p(f"s_bfe_u32 s{t5}, s{sH}, 0x10003")
    p(f"s_add_u32 s{sTB}, s{sTB}, s{t5}")
    p(f"s_and_b32 s{sCB}, s{sH}, 7")
    vPA, vPB, vPD, vPE = 248, 249, 250, 251
    p(f"v_and_b32 v{vT}, 7, v{vL}")
    p(f"s_lshl_b32 s{t0}, s{sH}, 10")
    p(f"s_add_u32 s{t0}, s{t0}, {FLG + 4*F_A}")
    p(f"v_lshlrev_b32 v{vPA}, 7, v{vT}")
    p(f"v_add_u32 v{vPA}, s{t0}, v{vPA}")
    p(f"v_lshlrev_b32 v{vPB}, 5, v{vT}")
    p(f"v_bfe_u32 v{vT}, v{vL}, 2, 2")
    p(f"v_xor_b32 v{vT}, v{vT}, v{l4}")
    p(f"v_cmp_ne_u32 s[2:3], 3, v{vT}")
    p(f"s_cmp_lg_u32 s{sG}, 0")
    p("s_cbranch_scc1 L_g1")

    def dma_x(vm, s):
        slot = LXS[s & 1]
        for g2 in range(2):
            p(f"s_add_u32 m0, s{sM4}, {slot + g2 * 16384}")
            if s < 8:
                p(f"s_add_u32 s{t0}, s{sXa}, {s * 128 + g2 * 131072}"); S = S_CKV
            else:
                p(f"s_add_u32 s{t0}, s{sXc if g2 else sXb}, {(s - 8) * 128}"); S = S_X
            for i4 in range(4):
                vm.issue(("X", s), f"buffer_load_dwordx4 v{vXD+i4}, {sr(S)}, s{t0} offen offset:{1024*i4} lds")
    def dma_w(vm, s):
        slot = LWS[s % 3]
        for g2 in range(2):
            p(f"s_add_u32 m0, s{sM4}, {slot + g2 * 16384}")
            p(f"s_add_u32 s{t0}, s{sWa}, {(s & 7) * 524288 + g2 * 262144}")
            for i2 in range(2):
                vm.issue(("W", s), f"buffer_load_dwordx4 v{vWA+i2}, {sr(S_WUK if s < 8 else S_WQ)}, s{t0} offen offset:{1024*i2} lds")
            p("s_add_u32 m0, m0, 2048")
            if s >= 8:
                p(f"s_add_u32 s{t0}, s{sWb}, {(s - 8) * 196608 + g2 * 98304}")
            else:
                p("s_nop 0")
            if s >= 8: p("s_mov_b64 exec, s[2:3]")
            for i2 in range(2):
                if s < 8:
                    vm.issue(("W", s), f"buffer_load_dwordx4 v{vWA+i2}, {sr(S_WUV)}, s{t0} offen offset:{1024*i2} lds")
                else:
                    vm.issue(("W", s), f"buffer_load_dwordx4 v{vWB2+i2}, {sr(S_WQKV)}, s{t0} offen offset:{1024*i2} lds")
            if s >= 8: p("s_mov_b64 exec, -1")
    sKS, sVS, sKM, sVM, sR, sJ, sSTOP, sQB, sSITE, sPEND, sRED, sTHR, sM8 = range(73, 86)
    sALL = 89
    SM = [t0, t2, t4, t6]
    def dma_kv(vm, static=None):
        L = []
        def piece(src, k):
            return f"buffer_load_dwordx4 v{vST}, {WS}, s{src} offen offset:{(k & 3) * 1024} lds"
        skipk, skipv = newlab("skipk"), newlab("skipv")
        if not static:
            allok = newlab("allok")
            p(f"s_cmp_lg_u32 s{sALL}, 0")
            p(f"s_cbranch_scc1 {allok}")
            p(f"s_add_u32 s{t8}, s{sR}, 1")
            p(f"s_lshr_b32 s{t8}, s{t8}, 1")
            p(f"s_lshl_b32 s{t8}, 2, s{t8}")
            p(f"s_sub_u32 s{t8}, s{t8}, 1")
            p(f"s_and_b32 s{t8}, s{t8}, 0xff")
            need_check_fn[0](t8, False, "k")
            p(f"s_and_b32 s{t9}, vcc_lo, 0xff")
            p(f"s_cmp_eq_u32 s{t9}, 0")
            p(f"s_cselect_b32 s{sALL}, 1, 0")
            p(f"s_cbranch_scc1 {allok}")
            p(f"buffer_load_dword v{vPD}, v{vPA}, {WS}, 0 offen sc1")
            p.label(allok)
            p(f"s_add_u32 s{t8}, s{sR}, 1")
            p(f"s_cmp_ge_u32 s{t8}, s{sN}")
            p(f"s_cbranch_scc1 {skipk}")
        p(f"s_mov_b32 m0, s{sKM}")
        p(f"s_add_u32 s{t9}, s{sKS}, 4096")
        for k in range(8):
            if k == 4:
                p("s_add_u32 m0, m0, 4096"); p("s_nop 0")
            t = piece(sKS if k < 4 else t9, k)
            vm.issue("KV", t) if vm else p(t)
        if not static:
            p.label(skipk)
            p(f"s_min_u32 s{t9}, s{sW4}, 1")
            p(f"s_add_u32 s{t8}, s{t8}, s{t9}")
            p(f"s_cmp_gt_u32 s{t8}, s{sN}")
            p(f"s_cbranch_scc1 {skipv}")
        p(f"s_mov_b32 m0, s{sVM}")
        p(f"s_add_u32 s{t9}, s{sVS}, 4096")
        for k in range(8):
            if k == 4:
                p("s_add_u32 m0, m0, 4096"); p("s_nop 0")
            t = piece(sVS if k < 4 else t9, k)
            vm.issue("KV", t) if vm else p(t)
        if not static:
            p.label(skipv)
        p(f"s_add_u32 s{sKS}, s{sKS}, 32768")
        p(f"s_add_u32 s{sVS}, s{sVS}, 32768")
        p(f"s_xor_b32 s{sKM}, s{sKM}, 0x8000")
        p(f"s_xor_b32 s{sVM}, s{sVM}, 0x38000")

    ACC = lambda tbi, cbi: (tbi * 2 + cbi) * 16
    XF = lambda st, tbi: 128 + st * 24 + tbi * 4
    WF = lambda st, cbi: 128 + st * 24 + 16 + cbi * 4
    def wsel(base, s):
        sl = s % 3
        return (base[1], 0) if sl == 2 else (base[0], sl * 32768)
    def reads1(s, kk, st):
        L = []
        wb, wo = wsel((0, 2), s)
        def wr(cbi):
            o = wo + kk * 8192
            L.append(f"ds_read_b64_tr_b16 v[{WF(st,cbi)}:{WF(st,cbi)+1}], v{vWR+wb+cbi} offset:{o}")
            L.append(f"ds_read_b64_tr_b16 v[{WF(st,cbi)+2}:{WF(st,cbi)+3}], v{vWR+wb+cbi} offset:{o + 1024}")
        def xr(tbi):
            L.append(f"ds_read_b128 {vr(XF(st,tbi))}, v{vXR+kk} offset:{LXS[s & 1] + tbi*4096}")
        wr(0); xr(0); wr(1); xr(1); xr(2); xr(3)
        return L
    def mf1(isv, st, first):
        L = []
        for tbi in range(4):
            for cbi in range(2):
                a = ACC(tbi, cbi)
                c = "0" if first else vr(a, 16)
                if isv:
                    L.append(f"{MF} {vr(a,16)}, {vr(XF(st,tbi))}, {vr(WF(st,cbi))}, {c}")
                else:
                    L.append(f"{MF} {vr(a,16)}, {vr(WF(st,cbi))}, {vr(XF(st,tbi))}, {c}")
        return L
    F2 = lambda st: 112 + 36 * st
    BQ, BK, BV = 64, 80, 96
    def reads2(s, kk, st, withb):
        L = []
        wb, wo = wsel((0, 4), s)
        b = F2(st)
        def tr(dst, d, extra):
            o = wo + kk * 8192 + extra
            L.append(f"ds_read_b64_tr_b16 v[{dst}:{dst+1}], v{vWQ+wb+d} offset:{o}")
            L.append(f"ds_read_b64_tr_b16 v[{dst+2}:{dst+3}], v{vWQ+wb+d} offset:{o + 1024}")
        L.append(f"ds_read_b128 {vr(b)}, v{vXR2+kk} offset:{LXS[s & 1]}")
        for d in range(4):
            tr(b + 8 + d * 4, d, 0)
        if withb:
            L.append(f"ds_read_b128 {vr(b+4)}, v{vXB+kk} offset:{LXS[s & 1]}")
            for sg in range(3):
                tr(b + 24 + sg * 4, sg, 2048)
        return L
    def mf2(st, first, withb):
        b = F2(st)
        c = lambda a: "0" if first else vr(a, 16)
        L = [f"{MF} {vr(d*16,16)}, {vr(b+8+d*4)}, {vr(b)}, {c(d*16)}" for d in range(4)]
        if withb:
            L += [f"{MF} {vr(BQ,16)}, {vr(b+24)}, {vr(b+4)}, {c(BQ)}",
                  f"{MF} {vr(BK,16)}, {vr(b+4)}, {vr(b+28)}, {c(BK)}",
                  f"{MF} {vr(BV,16)}, {vr(b+4)}, {vr(b+32)}, {c(BV)}"]
        return L
    def step(g, s, kk, nxt=True):
        if s < 8:
            st = kk & 1
            M = mf1(g == 1, st, s == 0 and kk == 0)
            ns, nk = (s, kk + 1) if kk < 3 else (s + 1, 0)
            Rd = reads1(ns, nk, st ^ 1) if (nxt and ns < 8) else []
            per = 2
        else:
            st = (kk + 1) & 1
            M = mf2(st, s == 8 and kk == 0, g == 1)
            ns, nk = (s, kk + 1) if kk < 3 else (s + 1, 0)
            Rd = reads2(ns, nk, st ^ 1, g == 1) if (nxt and ns < 16) else []
            per = 3
        p("s_waitcnt lgkmcnt(0)")
        for i, m in enumerate(M):
            p(m)
            for r in Rd[per * i:per * i + per]:
                p(r)
        for r in Rd[per * len(M):]:
            p(r)

    def need_check(need_expr_sgpr, with_cnt, tag):
        top, ok = newlab("nd" + tag), newlab("ndok" + tag)
        p.label(top)
        p(f"v_cmp_ne_u32 vcc, 1, v{vPD}")
        if with_cnt:
            p(f"v_cmp_ne_u32 s[{t10}:{t11}], 32, v{vPE}")
        p("s_nop 1")
        p(f"s_and_b32 s{t9}, vcc_lo, s{need_expr_sgpr}")
        if with_cnt:
            p(f"s_or_b32 s{t9}, s{t9}, s{t10}")
        p(f"s_cmp_eq_u32 s{t9}, 0")
        p(f"s_cbranch_scc1 {ok}")
        p("s_sleep 2")
        p(f"buffer_load_dword v{vPD}, v{vPA}, {WS}, 0 offen sc1")
        if with_cnt:
            p(f"buffer_load_dword v{vPE}, v{vPB}, {sr(S_DBG)}, 0 offen sc1")
        p("s_waitcnt vmcnt(0)")
        p(f"s_sub_u32 s{sTO}, s{sTO}, 1")
        p(f"s_cbranch_scc0 {top}")
        p(f"s_mov_b32 s{sTO}, 0")
        p.label(ok)
    need_check_fn[0] = need_check
    def gemm_phases(g, vm):
        trickle = {}
        sST2 = 86
        def do_trickle(s, kk):
            st = trickle.pop((s, kk), None)
            if st:
                skip = newlab("notr")
                p(f"s_cmp_eq_u32 s{sI}, 0")
                p(f"s_cbranch_scc1 {skip}")
                vm.issue("ST", st, cond=True)
                p.label(skip)
        for s in range(16):
            p.seg(f"g{g}_s{s}")
            if s == 0:
                for r in reads1(0, 0, 0):
                    p(r)
            for kk in range(3):
                step(g, s, kk)
                do_trickle(s, kk)
            if s == FLAG0:
                skip = newlab("nowt")
                p(f"s_cmp_lg_u32 s{sI}, 0")
                p(f"s_cbranch_scc1 {skip}")
                p("s_waitcnt vmcnt(0)")
                p.label(skip)
            if g == 0:
                if s == 14:
                    vm.wait_all()
                    p(f"s_mov_b32 s{t8}, 1")
                    need_check(t8, True, "a")
                    p("s_waitcnt lgkmcnt(0)")
                elif s == 15:
                    vm.wait_all("lgkmcnt(0)")
                else:
                    vm.wait([("X", s + 1), ("W", s + 1)], "lgkmcnt(0)")
            else:
                if s == 14:
                    vm.wait_all("lgkmcnt(0)")
                elif s < 2:
                    vm.wait([("X", s + 1), ("W", s + 1)], "lgkmcnt(0)")
                else:
                    p("s_waitcnt lgkmcnt(0)")
            p("s_barrier")
            stamp(p, 2 + s)
            if g == 0:
                if s + 2 < 16: dma_x(vm, s + 2)
                if s + 3 < 16: dma_w(vm, s + 3)
                if s >= 14: dma_kv(vm, static=True)
                if s in (13, 15):
                    vm.issue("P", f"buffer_load_dword v{vPD}, v{vPA}, {WS}, 0 offen sc1")
                if s == 13:
                    vm.issue("P", f"buffer_load_dword v{vPE}, v{vPB}, {sr(S_DBG)}, 0 offen sc1")
            else:
                if s in (HS, FLAG0, 14):
                    skip = newlab("nofl")
                    p(f"s_cmp_lg_u32 s{sW}, {7 if s == HS else 4}")
                    p(f"s_cbranch_scc1 {skip}")
                    if s == HS:
                        p("s_waitcnt vmcnt(0)")
                        p(f"v_mov_b32 v{vPD}, 1")
                        p(f"s_lshl_b32 s{t0}, s{sI}, 5")
                        p(f"v_mov_b32 v{vPE}, s{t0}")
                        p("s_mov_b64 exec, 1")
                        p(f"buffer_atomic_add v{vPD}, v{vPE}, {sr(S_DBG)}, 0 offen sc1")
                        p("s_mov_b64 exec, -1")
                    else:
                        p(f"s_cmp_{'lg' if s == FLAG0 else 'eq'}_u32 s{sI}, 0")
                        p(f"s_cbranch_scc1 {skip}")
                        p(f"v_mov_b32 v{vPD}, 1")
                        p(f"v_mov_b32 v{vPE}, 0")
                        p(f"s_lshl_b32 s{t0}, s{sL}, 7")
                        p(f"s_add_u32 s{t0}, s{t0}, {FLG}")
                        p("s_mov_b64 exec, 1")
                        p(f"buffer_store_dword v{vPD}, v{vPE}, {WS}, s{t0} offen offset:{4*F_A} sc1")
                        p("s_mov_b64 exec, -1")
                    p.label(skip)
            step(g, s, 3)
            do_trickle(s, 3)
            if s == 7:
                for r in reads2(8, 0, 1, g == 1):
                    p(r)
                p(f"s_add_u32 s{sST2}, s{sST}, 8192")
                p(f"s_add_u32 s{sST2+1}, s{sST}, 16384")
                p(f"s_add_u32 s{sST2+2}, s{sST}, 24576")
                p("s_nop 4")
                base = [sST, sST2, sST2 + 1, sST2 + 2]
                if g == 0:
                    order = [(4, 64), (5, 72), (6, 80), (7, 88), (0, 96), (1, 104), (2, 184), (3, 192)]
                    nimm = 0
                else:
                    order = [(4, 184), (5, 192), (6, 200), (7, 208), (0, 184), (1, 192), (2, 200), (3, 208)]
                    nimm = 4
                lazy = []
                for q, (t, d) in enumerate(order):
                    tbi, cbi = t >> 1, t & 1
                    a = ACC(tbi, cbi)
                    for i in range(8):
                        p(f"v_cvt_pk_bf16_f32 v{d+i}, v{a+2*i}, v{a+2*i+1}")
                    for half in range(2):
                        st = f"buffer_store_dwordx4 {vr(d + half*4)}, v{vST}, {WS}, s{base[tbi]} offen offset:{cbi*2048 + half*1024}{'' if X('PLAINKV') else ' sc1'}"
                        if X('NOST'):
                            pass
                        elif q < nimm:
                            vm.issue("ST", st)
                        else:
                            lazy.append(st)
                skip = newlab("noburst")
                p(f"s_cmp_lg_u32 s{sI}, 0")
                p(f"s_cbranch_scc1 {skip}")
                for st in lazy:
                    vm.issue("ST", st, cond=True)
                p.label(skip)
                steps = [(8 + q // 4, q % 4) for q in range(TRS * 4)]
                if g == 1: steps = steps[TRS:]
                for q, st in enumerate(lazy):
                    key = steps[(q * len(steps)) // len(lazy)]
                    trickle[key] = (trickle[key] + "\n" + st) if key in trickle else st
                stamp(p, 20)

    p.seg("g0_pro")
    vm0 = VM(p)
    dma_x(vm0, 0); dma_w(vm0, 0)
    def attn_scalars():
        p(f"s_lshl_b32 s{sM8}, s{sW4}, 13")
        p(f"s_lshl_b32 s{sKS}, s{sH}, 19")
        p(f"s_add_u32 s{sKS}, s{sKS}, s{sM8}")
        p(f"s_add_u32 s{sVS}, s{sKS}, {VWS - 8192}")
        p(f"s_mov_b32 s{sKM}, s{sM8}")
        p(f"s_add_u32 s{sVM}, s{sM8}, {LWS[1]}")
        p(f"s_sub_u32 s{t0}, 15, s{sI}")
        p(f"s_cmp_eq_u32 s{sG}, 0")
        p(f"s_cselect_b32 s{sQB}, s{sI}, s{t0}")
        p(f"s_lshl_b32 s{sSTOP}, s{sQB}, 2")
        p(f"s_add_u32 s{sSTOP}, s{sSTOP}, s{sW4}")
        p(f"s_mov_b32 s{sR}, 0")
        p(f"s_mov_b32 s{sJ}, 1")
        p(f"s_mov_b32 s{sPEND}, 1")
        p(f"s_mov_b32 s{sALL}, 0")
        p(f"s_mov_b32 s{sTHR}, {'0x7f800000' if X('NORARE') else '0x44800000'}")
        p(f"s_and_b32 s{t0}, s{sL}, 15")
        p(f"s_or_b32 s{t0}, s{t0}, s{sG}")
        p(f"s_cmp_eq_u32 s{t0}, 0")
        p(f"s_cselect_b32 s{sRED}, 1, 0")
    attn_scalars()
    stamp(p, 30)
    vm0.wait([("X", 0), ("W", 0)])
    stamp(p, 31)
    p("s_barrier")
    stamp(p, 1)
    gemm_phases(0, vm0)
    p.seg("g0_q")
    def qcvt():
        p("s_mov_b32 s52, 0x3e0293ee")
        for i in range(64):
            p(f"v_mul_f32 v{i}, s52, v{i}")
        for i in range(32):
            p(f"v_cvt_pk_bf16_f32 v{112+i}, v{2*i}, v{2*i+1}")
    p("s_nop 7")
    p("s_nop 3")
    qcvt()
    p("s_branch L_apro")

    p.seg("g1_pro")
    p.label("L_g1")
    vm1 = VM(p)
    p(f"v_and_b32 v{vT}, 31, v{vL}")
    p(f"v_lshlrev_b32 v{vT}, 2, v{vT}")
    p(f"v_mov_b32 v{vT+1}, 0")
    p(f"s_lshl_b32 s{t0}, s{sL}, 7")
    p(f"s_add_u32 s{t0}, s{t0}, {FLG}")
    p(f"s_cmp_lg_u32 s{sW}, 7")
    p("s_cbranch_scc1 L_noclr")
    p(f"buffer_store_dword v{vT+1}, v{vT}, {WS}, s{t0} offen sc1")
    p.label("L_noclr")
    dma_x(vm1, 1); dma_w(vm1, 1); dma_w(vm1, 2)
    attn_scalars()
    stamp(p, 19)
    p("s_barrier")
    stamp(p, 1)
    gemm_phases(1, vm1)
    p.seg("g1_b")
    p("s_nop 7")
    p("s_nop 3")
    TB = 144
    def phi(src, dst):
        a, b, c = TB, TB + 8, TB + 24
        for i in range(8):
            p(f"v_cvt_pk_bf16_f32 v{a+i}, v{src+2*i}, v{src+2*i+1}")
        for i in range(8):
            p(f"v_lshlrev_b32 v{b+2*i}, 16, v{a+i}")
            p(f"v_and_b32 v{b+1+2*i}, 0xffff0000, v{a+i}")
        for i in range(16):
            p(f"v_min_f32 v{c+i}, 0, v{b+i}")
        for i in range(16):
            p(f"v_mul_f32 v{c+i}, {LOG2E:#x}, v{c+i}")
        for i in range(16):
            p(f"v_exp_f32 v{c+i}, v{c+i}")
        for i in range(16):
            p(f"v_max_f32 v{b+i}, 0, v{b+i}")
        for i in range(16):
            p(f"v_add_f32 v{b+i}, 0x358637bd, v{b+i}")
        for i in range(16):
            p(f"v_add_f32 v{b+i}, v{b+i}, v{c+i}")
        for i in range(8):
            p(f"v_cvt_pk_bf16_f32 v{dst+i}, v{b+2*i}, v{b+1+2*i}")
    PK, VB, ONE = 184, 192, 200
    phi(BK, PK)
    for i in range(8):
        p(f"v_cvt_pk_bf16_f32 v{VB+i}, v{BV+2*i}, v{BV+2*i+1}")
    for i in range(4):
        p(f"v_mov_b32 v{ONE+i}, 0x3f803f80")
    p("s_nop 1")
    p(f"{MF} {vr(BK,16)}, {vr(PK)}, {vr(VB)}, 0")
    p(f"{MF} {vr(BV,16)}, {vr(PK)}, {vr(ONE)}, 0")
    p(f"{MF} {vr(BK,16)}, {vr(PK+4)}, {vr(VB+4)}, {vr(BK,16)}")
    p(f"{MF} {vr(BV,16)}, {vr(PK+4)}, {vr(ONE)}, {vr(BV,16)}")
    phi(BQ, 204)
    p(f"v_and_b32 v{TB}, 16, v{vL}")
    p(f"v_cmp_ne_u32 vcc, 0, v{TB}")
    p(f"s_lshl_b32 s{t0}, s{sW4}, 11")
    p(f"s_add_u32 s{t0}, s{t0}, {MISC}")
    p(f"v_add_u32 v{TB+1}, s{t0}, v{vST}")
    for i in range(8):
        p(f"v_cndmask_b32 v{PK+i}, v{BK+i}, v{BK+8+i}, vcc")
    for i in range(8):
        p(f"v_cndmask_b32 v{PK+8+i}, v{BV+i}, v{BV+8+i}, vcc")
    p(f"s_lshl_b32 s{t0}, s{sL}, 2")
    p(f"s_add_u32 s{t0}, s{t0}, s{sW4}")
    p(f"s_lshl_b32 s{t0}, s{t0}, 12")
    p(f"s_add_u32 s{t0}, s{t0}, {KVP}")
    for q in range(4):
        p(f"buffer_store_dwordx4 {vr(PK + q*4)}, v{vST}, {WS}, s{t0} offen offset:{q*1024} sc1")
    for s in range(2):
        p(f"ds_write_b128 v{TB+1}, {vr(204 + 4*s)} offset:{s*1024}")
    qcvt()
    p(f"v_mov_b32 v{TB}, 1")
    p(f"v_mov_b32 v{TB+1}, 0")
    p(f"s_lshl_b32 s{t0}, s{sL}, 7")
    p(f"s_lshl_b32 s{t1}, s{sW4}, 2")
    p(f"s_add_u32 s{t0}, s{t0}, s{t1}")
    p(f"s_add_u32 s{t0}, s{t0}, {FLG}")
    p("s_waitcnt vmcnt(0) lgkmcnt(0)")
    p("s_mov_b64 exec, 1")
    p(f"buffer_store_dword v{TB}, v{TB+1}, {WS}, s{t0} offen offset:{4*F_B} sc1")
    p("s_mov_b64 exec, -1")

    O = lambda d: d * 16
    S = lambda b: 64 + b * 16
    NEGM = 96
    Q = lambda kc: 112 + kc * 4
    P = lambda b: 144 + b * 8
    F = lambda n: 160 + (n % 8) * 4
    T = [192, 193, 194, 195]
    vLs, vTS, vM, vRK, vRV, vD0, vNINF, vU = 196, 197, 198, 199, 200, 201, 202, 204
    D = 6
    def kread(k, n):
        return f"ds_read_b128 {vr(F(n))}, v{vRK} offset:{k*8192 + n*1024}"
    def vread(k, m, ring):
        kh, d = m >> 2, m & 3
        return f"ds_read_b128 {vr(F(ring))}, v{vRV} offset:{k*8192 + (d*2+kh)*1024}"
    def fread(k, n):
        return kread(k, n) if n < 8 else vread(k, n - 8, n)
    def mqk(n, sb, first_c):
        c = first_c if n == 0 else vr(S(sb), 16)
        return f"{MF} {vr(S(sb),16)}, {vr(F(n))}, {vr(Q(n))}, {c}"
    def mpv(m, ring, pb):
        kh, d = m >> 2, m & 3
        return f"{MF} {vr(O(d),16)}, {vr(F(ring))}, {vr(P(pb)+kh*4)}, {vr(O(d),16)}"
    def sm_pairs(sb, pairs):
        L = []
        for j in pairs:
            a, b = (T[0], T[1]) if j % 2 == 0 else (T[2], T[3])
            L.append(f"v_exp_f32 v{a}, v{S(sb)+2*j}")
            L.append(f"v_exp_f32 v{b}, v{S(sb)+2*j+1}")
            if j == 0:
                L.append("s_nop 0")
                L.append(f"v_add_f32 v{vTS}, v{a}, v{b}")
            else:
                L.append(f"v_add_f32 v{vTS}, v{vTS}, v{a}")
                L.append(f"v_add_f32 v{vTS}, v{vTS}, v{b}")
            L.append(f"v_cvt_pk_bf16_f32 v{P(sb)+j}, v{a}, v{b}")
        return L
    def mask_ops(sb, vD):
        L = []
        cs = [(r & 3) + 8 * (r >> 2) for r in range(16)]
        for r in range(16 + 3):
            if r < 16:
                m = SM[r % 4]
                L.append(f"v_cmp_le_i32 s[{m}:{m+1}], {cs[r]}, v{vD}")
            if r >= 3:
                q = r - 3
                m = SM[q % 4]
                L.append(f"v_cndmask_b32 v{S(sb)+q}, v{vNINF}, v{S(sb)+q}, s[{m}:{m+1}]")
        return L
    P1, P2 = [0, 1, 2], [3, 4, 5, 6, 7]
    sites = {0: [], 1: []}
    def check(sb, tag):
        p(f"s_mov_b32 s{sSITE}, {len(sites[sb])}")
        p(f"v_cmp_lt_f32 vcc, s{sTHR}, v{vTS}")
        p(f"s_cbranch_vccnz L_rare{sb}")
        p.label(f"L_back_{tag}")
        p(f"v_add_f32 v{vLs}, v{vLs}, v{vTS}")
        sites[sb].append(tag)
    def round_end():
        p("s_waitcnt vmcnt(0) lgkmcnt(0)")
        p("s_barrier")
        p(f"v_xor_b32 v{vRK}, 0x8000, v{vRK}")
        p(f"v_xor_b32 v{vRV}, 0x38000, v{vRV}")
        p(f"s_add_u32 s{sR}, s{sR}, 1")
    def loader():
        skip = newlab("noload")
        p(f"s_cmp_lg_u32 s{sG}, 0")
        p(f"s_cbranch_scc1 {skip}")
        dma_kv(None)
        p.label(skip)
    def iteration(k, masked):
        nxt, cur = k & 1, (k & 1) ^ 1
        tag = f"{'m' if masked else 'i'}{k}"
        def ahead(n):
            q = n + D
            if q < 16:
                return fread(k, q)
            q -= 16
            kn = (k + 1) & 3
            return vread(kn, q, q) if masked else fread(kn, q)
        fa = spread(sm_pairs(cur, P2), 8)
        for n in range(8):
            p(f"s_waitcnt lgkmcnt({D-1})")
            p(mqk(n, nxt, vr(NEGM, 16)))
            p(ahead(n))
            for x in fa[n]:
                p(x)
        check(cur, tag)
        fill = (mask_ops(nxt, vD0) if masked else []) + sm_pairs(nxt, P1)
        fb = [[], [], []] + spread(fill, 5)
        for n in range(8, 16):
            if k == 3 and n == 12:
                round_end()
                p(ahead(10)); p(ahead(11))
                loader()
            if k == 3 and n >= 10:
                if n < 12:
                    p(f"s_waitcnt lgkmcnt({15 - n})")
                p(mpv(n - 8, n, cur))
                if n >= 12:
                    p(ahead(n))
            else:
                p(f"s_waitcnt lgkmcnt({D-1})")
                p(mpv(n - 8, n, cur))
                p(ahead(n))
            for x in fb[n - 8]:
                p(x)
    def tail(k):
        cur = k & 1
        kn = (k + 1) & 3
        for q, x in enumerate(sm_pairs(cur, P2)):
            p(x)
            if q == 4:
                p(vread(kn, 6, 6)); p(vread(kn, 7, 7))
        check(cur, f"t{k}")
        p("s_nop 0")
        for m in range(8):
            p(f"s_waitcnt lgkmcnt({7 - m})")
            p(mpv(m, m, cur))
    def maxtree(sb, dst):
        s = S(sb)
        p(f"v_max3_f32 v{dst}, v{s}, v{s+1}, v{s+2}")
        p(f"v_max3_f32 v{dst+1}, v{s+3}, v{s+4}, v{s+5}")
        p(f"v_max3_f32 v{dst}, v{dst}, v{s+6}, v{s+7}")
        p(f"v_max3_f32 v{dst+1}, v{dst+1}, v{s+8}, v{s+9}")
        p(f"v_max3_f32 v{dst}, v{dst}, v{s+10}, v{s+11}")
        p(f"v_max3_f32 v{dst+1}, v{dst+1}, v{s+12}, v{s+13}")
        p(f"v_max3_f32 v{dst}, v{dst}, v{s+14}, v{s+15}")
        p(f"v_max_f32 v{dst}, v{dst}, v{dst+1}")
        p(f"v_mov_b32 v{dst+1}, v{dst}")
        p("s_nop 1")
        p(f"v_permlane32_swap_b32 v{dst}, v{dst+1}")
        p("s_nop 1")
        p(f"v_max_f32 v{dst}, v{dst}, v{dst+1}")

    p.seg("apro")
    p.label("L_apro")
    stamp(p, 21)
    p(f"v_mov_b32 v{vRK}, v{vST}")
    p(f"v_add_u32 v{vRV}, {LWS[1]}, v{vST}")
    for n in range(8):
        p(kread(0, n))
    p(f"v_and_b32 v{vU}, 31, v{vL}")
    p(f"v_lshrrev_b32 v{vU+1}, 5, v{vL}")
    p(f"v_lshlrev_b32 v{vU+1}, 2, v{vU+1}")
    p(f"v_sub_u32 v{vD0}, v{vU}, v{vU+1}")
    p(f"s_lshl_b32 s{t8}, s{sSTOP}, 5")
    p(f"v_add_u32 v{vU}, s{t8}, v{vD0}")
    p(f"v_mov_b32 v{vNINF}, 0xff800000")
    p(f"v_mov_b32 v{vLs}, 0")
    for n in range(8):
        p(f"s_waitcnt lgkmcnt({7 - n})")
        p(mqk(n, 0, "0"))
        for i in range(8):
            p(f"v_mov_b32 v{8*n+i}, 0")
    p(f"s_cmp_eq_u32 s{sSTOP}, 0")
    p("s_cbranch_scc1 L_prob")
    p.seg("aproa")
    for n in range(D):
        p(kread(1, n))
    p("s_branch L_proc")
    p.seg("aprob")
    p.label("L_prob")
    for n in range(D):
        p(vread(1, n, n))
    p.seg("aproc")
    p.label("L_proc")
    p("s_nop 7")
    for x in mask_ops(0, vU):
        p(x)
    maxtree(0, vU + 2)
    p(f"v_max_f32 v{vM}, 0xf149f2ca, v{vU+2}")
    for i in range(16):
        p(f"v_sub_f32 v{S(0)+i}, v{S(0)+i}, v{vM}")
    for i in range(16):
        p(f"v_sub_f32 v{NEGM+i}, 0, v{vM}")
    for x in sm_pairs(0, P1):
        p(x)
    p(f"s_cmp_eq_u32 s{sSTOP}, 0")
    p("s_cbranch_scc1 L_tail0")
    p("s_branch L_it1")
    for k in range(4):
        p.seg(f"it{k}")
        p.label(f"L_it{k}")
        p(f"s_cmp_eq_u32 s{sJ}, s{sSTOP}")
        p(f"s_cbranch_scc1 L_itm{k}")
        p(f"s_add_u32 s{sJ}, s{sJ}, 1")
        iteration(k, False)
    p("s_branch L_it0")
    for k in range(4):
        p.seg(f"itm{k}")
        p.label(f"L_itm{k}")
        iteration(k, True)
        p.seg(f"tail{k}")
        p.label(f"L_tail{k}")
        tail(k)
        if k < 3:
            p("s_branch L_epi")
    p.seg("epi")
    p.label("L_epi")
    stamp(p, 22)
    p(f"v_mov_b32 v{vU}, v{vLs}")
    p(f"s_lshl_b32 s{t0}, s{sQB}, 2")
    p(f"s_add_u32 s{t0}, s{t0}, s{sW4}")
    p(f"v_permlane32_swap_b32 v{vLs}, v{vU}")
    p(f"s_mul_i32 s{t0}, s{t0}, 288")
    p(f"s_lshl_b32 s{t1}, s{sH}, 3")
    p(f"v_add_f32 v{vLs}, v{vLs}, v{vU}")
    p(f"s_add_u32 s{t0}, s{t0}, s{t1}")
    p(f"v_rcp_f32 v{vLs}, v{vLs}")
    p(f"s_lshl_b32 s{t0}, s{t0}, 10")
    p(f"s_add_u32 s{t0}, s{t0}, {AWS}")
    p(f"s_add_u32 s{t1}, s{t0}, 4096")
    p("s_nop 3")
    for d in range(4):
        for i in range(16):
            p(f"v_mul_f32 v{O(d)+i}, v{O(d)+i}, v{vLs}")
        for i in range(8):
            p(f"v_cvt_pk_bf16_f32 v{64+8*d+i}, v{O(d)+2*i}, v{O(d)+2*i+1}")
        for half in range(2):
            p(f"buffer_store_dwordx4 {vr(64+8*d+4*half)}, v{vST}, {WS}, s{t0 if d < 2 else t1} offen offset:{(d&1)*2048 + half*1024} sc1")
    p(f"s_cmp_eq_u32 s{sW4}, 3")
    p("s_cbranch_scc1 L_help")
    p.seg("epib")
    p("s_waitcnt vmcnt(8)")
    p("s_barrier")
    p(f"s_add_u32 s{sR}, s{sR}, 1")
    loader()
    p.seg("help")
    p.label("L_help")
    p(f"s_cmp_eq_u32 s{sRED}, 0")
    p("s_cbranch_scc1 L_hw")
    p.seg("red")
    p(f"s_cmp_ge_u32 s{sRED}, 3")
    p("s_cbranch_scc1 L_red3")
    p(f"s_cmp_eq_u32 s{sRED}, 1")
    p("s_cbranch_scc1 L_redpoll")
    p("v_cmp_ne_u32 vcc, 1, v5")
    p("s_nop 1")
    p("s_cbranch_vccz L_redgo")
    p("s_sleep 4")
    p(f"s_sub_u32 s{sTO}, s{sTO}, 1")
    p("s_cbranch_scc0 L_redpoll")
    p(f"s_mov_b32 s{sTO}, 0")
    p("s_branch L_redgo")
    p.label("L_redpoll")
    p(f"v_lshrrev_b32 v4, 2, v{vL}")
    p("v_lshlrev_b32 v4, 7, v4")
    p(f"v_and_b32 v5, 3, v{vL}")
    p("v_lshl_add_u32 v4, v5, 2, v4")
    p(f"s_lshl_b32 s{t0}, s{sL}, 7")
    p(f"s_add_u32 s{t0}, s{t0}, {FLG}")
    p(f"buffer_load_dword v5, v4, {WS}, s{t0} offen offset:{4*F_B} sc1")
    p(f"s_mov_b32 s{sRED}, 2")
    p("s_branch L_hw")
    p.label("L_redgo")
    for i in range(4):
        p(f"v_mov_b32 v{i}, 0")
    p(f"s_lshl_b32 s{sSITE}, s{sL}, 14")
    p(f"s_lshl_b32 s{t0}, s{sW4}, 10")
    p(f"s_add_u32 s{sSITE}, s{sSITE}, s{t0}")
    p(f"s_add_u32 s{sSITE}, s{sSITE}, {KVP}")
    p("s_branch L_redld")
    p.label("L_red3")
    p(f"s_cmp_eq_u32 s{sRED}, 7")
    p("s_cbranch_scc1 L_redflag")
    for q in range(16):
        for i in range(4):
            p(f"v_add_f32 v{i}, v{i}, v{16+4*q+i}")
    p(f"s_cmp_eq_u32 s{sRED}, 6")
    p("s_cbranch_scc1 L_redst")
    p.label("L_redld")
    for q in range(16):
        p(f"buffer_load_dwordx4 {vr(16+4*q)}, v{vST}, {WS}, s{sSITE} offen sc1")
        p(f"s_add_u32 s{sSITE}, s{sSITE}, 4096")
    p(f"s_add_u32 s{sRED}, s{sRED}, 1")
    p("s_branch L_hw")
    p.label("L_redst")
    p(f"s_lshl_b32 s{t0}, s{sHP}, 12")
    p(f"s_lshl_b32 s{t1}, s{sW4}, 10")
    p(f"s_add_u32 s{t0}, s{t0}, s{t1}")
    p(f"s_add_u32 s{t0}, s{t0}, {KVT}")
    p(f"buffer_store_dwordx4 {vr(0)}, v{vST}, {WS}, s{t0} offen sc1")
    p(f"s_mov_b32 s{sRED}, 7")
    p("s_branch L_hw")
    p.label("L_redflag")
    p("v_mov_b32 v4, 1")
    p("v_mov_b32 v5, 0")
    p(f"s_lshl_b32 s{t0}, s{sL}, 7")
    p(f"s_lshl_b32 s{t1}, s{sW4}, 2")
    p(f"s_add_u32 s{t0}, s{t0}, s{t1}")
    p(f"s_add_u32 s{t0}, s{t0}, {FLG}")
    p("s_mov_b64 exec, 1")
    p(f"buffer_store_dword v4, v5, {WS}, s{t0} offen offset:{4*F_K} sc1")
    p("s_mov_b64 exec, -1")
    p(f"s_mov_b32 s{sRED}, 0")
    p.seg("hw")
    p.label("L_hw")
    p("s_waitcnt vmcnt(0)")
    p(f"s_cmp_eq_u32 s{sPEND}, 0")
    p("s_cbranch_scc1 L_hnf")
    p(f"v_mov_b32 v{vU}, 1")
    p(f"v_mov_b32 v{vU+1}, 0")
    p(f"s_lshl_b32 s{t0}, s{sL}, 7")
    p(f"s_lshl_b32 s{t1}, s{sW}, 2")
    p(f"s_add_u32 s{t0}, s{t0}, s{t1}")
    p(f"s_add_u32 s{t0}, s{t0}, {FLG}")
    p("s_mov_b64 exec, 1")
    p(f"buffer_store_dword v{vU}, v{vU+1}, {WS}, s{t0} offen offset:{4*F_CS} sc1")
    p("s_mov_b64 exec, -1")
    p(f"s_mov_b32 s{sPEND}, 0")
    p.label("L_hnf")
    p(f"s_cmp_ge_u32 s{sR}, s{sN}")
    p("s_cbranch_scc1 L_hx")
    p("s_barrier")
    p(f"s_add_u32 s{sR}, s{sR}, 1")
    loader()
    p("s_branch L_help")
    p.label("L_hx")
    p(f"s_cmp_lg_u32 s{sRED}, 0")
    p("s_cbranch_scc1 L_help")
    stamp(p, 23)

    p.seg("cpro")
    sRING, sA0, sA1, sWK, sBK = 64, 65, 66, 67, 68
    AA = lambda cb, tb: (cb * 2 + tb) * 16
    AB = lambda cb, tb: 64 + (cb * 2 + tb) * 16
    NS = 8
    AF = lambda s, tb: 128 + (s % NS) * 8 + tb * 4
    WFc = lambda s, cb: 192 + (s & 1) * 8 + cb * 4
    vWD, vR, vG0, vFA, vFD, vFO, vFE, vC = 208, 209, 211, 213, 214, 215, 216, 217
    p(f"s_and_b32 s{t0}, s{sN}, 1")
    p(f"s_lshl_b32 s{t0}, s{t0}, 15")
    p(f"s_add_u32 s{t1}, s{t0}, {LWS[1] + 8192}")
    p(f"s_sub_u32 s{t2}, {LWS[2]}, s{t0}")
    p(f"s_lshl_b32 s{t3}, s{sW4}, 14")
    p(f"s_add_u32 s{t2}, s{t2}, s{t3}")
    p(f"s_cmp_eq_u32 s{sW}, 6")
    p(f"s_cselect_b32 s{t2}, s{t1}, s{t2}")
    p(f"s_cmp_eq_u32 s{sW}, 7")
    p(f"s_cselect_b32 s{t2}, {MISC + 8192}, s{t2}")
    p(f"s_cmp_eq_u32 s{sG}, 0")
    p(f"s_cselect_b32 s{sRING}, s{t3}, s{t2}")
    p(f"v_lshrrev_b32 v{vC}, 3, v{vL}")
    p(f"v_lshlrev_b32 v{vC}, 10, v{vC}")
    p(f"v_bfe_u32 v{vC+1}, v{vL}, 4, 1")
    p(f"v_lshlrev_b32 v{vC+2}, 2, v{vC+1}")
    p(f"v_and_b32 v{vC+3}, 7, v{vL}")
    p(f"v_xor_b32 v{vC+3}, v{vC+3}, v{vC+2}")
    p(f"v_lshl_add_u32 v{vC}, v{vC+3}, 4, v{vC}")
    p(f"s_lshl_b32 s{t0}, s{sCB}, 7")
    p(f"v_add_u32 v{vWD}, s{t0}, v{vC}")
    p(f"s_lshl_b32 s{sWK}, s{sW}, 19")
    p(f"s_lshl_b32 s{sBK}, s{sW}, 16")
    vmc = VM(p)
    def wload(s):
        if s < 32:
            wb, wo_, S_ = sWK, s * 16384, S_WO
        else:
            wb, wo_, S_ = sBK, (s - 32) * 16384, S_BWO
        p(f"s_add_u32 m0, s{sRING}, {(s % NS) * 2048}")
        p(f"s_add_u32 s{t0}, s{wb}, {wo_}")
        p(f"s_add_u32 s{t1}, s{wb}, {wo_ + 8192 - 1024}")
        vmc.issue(("W", s), f"buffer_load_dwordx4 v{vWD}, {sr(S_)}, s{t0} offen lds")
        vmc.issue(("W", s), f"buffer_load_dwordx4 v{vWD}, {sr(S_)}, s{t1} offen offset:1024 lds")
    def aload(s):
        ab, ao = (sA0, s * 1024) if s < 32 else (sA1, (s - 32) * 1024)
        p(f"s_add_u32 s{t2}, s{ab}, {ao}")
        p(f"s_add_u32 s{t3}, s{ab}, {ao + 288 * 1024}")
        vmc.issue(("A", s), f"buffer_load_dwordx4 {vr(AF(s,0))}, v{vST}, {WS}, s{t2} offen sc1")
        vmc.issue(("A", s), f"buffer_load_dwordx4 {vr(AF(s,1))}, v{vST}, {WS}, s{t3} offen sc1")
    for s in range(NS):
        wload(s)
    p(f"v_lshrrev_b32 v{vC+2}, 5, v{vL}")
    p(f"v_bfe_u32 v{vC+3}, v{vL}, 2, 2")
    p(f"v_lshl_add_u32 v{vC}, v{vC+2}, 2, v{vC+3}")
    p(f"v_lshlrev_b32 v{vC}, 7, v{vC}")
    p(f"v_lshl_add_u32 v{vC}, v{vC+1}, 5, v{vC}")
    p(f"v_and_b32 v{vC+4}, 3, v{vL}")
    p(f"v_lshl_add_u32 v{vC}, v{vC+4}, 3, v{vC}")
    p(f"v_add_u32 v{vC}, s{sRING}, v{vC}")
    p(f"v_lshrrev_b32 v{vC+3}, 1, v{vC+3}")
    p(f"v_lshl_add_u32 v{vR}, v{vC+3}, 6, v{vC}")
    p(f"v_xor_b32 v{vC+3}, 1, v{vC+3}")
    p(f"v_lshl_add_u32 v{vR+1}, v{vC+3}, 6, v{vC}")
    p(f"s_mul_i32 s{t0}, s{sTB}, {2 * 288 * 1024}")
    p(f"s_add_u32 s{t0}, s{t0}, {AWS}")
    p(f"s_lshl_b32 s{t1}, s{sW}, 15")
    p(f"s_add_u32 s{sA0}, s{t0}, s{t1}")
    p(f"s_lshl_b32 s{t1}, s{sW}, 12")
    p(f"s_add_u32 s{sA1}, s{t0}, s{t1}")
    p(f"s_add_u32 s{sA1}, s{sA1}, {256 * 1024}")
    p(f"s_lshr_b32 s{t0}, s{sTB}, 4")
    p(f"s_and_b32 s{t1}, s{sTB}, 1")
    p(f"s_lshl_b32 s{t1}, s{t1}, 3")
    p(f"s_lshl_b32 s{t2}, s{sW}, 12")
    p(f"s_lshl_b32 s{t3}, s{sI}, 7")
    p(f"s_add_u32 s{t2}, s{t2}, s{t3}")
    p(f"s_add_u32 s{t2}, s{t2}, s{t1}")
    p(f"s_add_u32 s{t2}, s{t2}, {FLG}")
    p(f"s_lshl_b32 s{t3}, s{t0}, 4")
    p(f"s_add_u32 s{t3}, s{t3}, s{t2}")
    p(f"v_lshlrev_b32 v{vC}, 10, v{vC+4}")
    p(f"v_bfe_u32 v{vC+3}, v{vL}, 2, 1")
    p(f"v_lshl_add_u32 v{vC}, v{vC+3}, 2, v{vC}")
    p(f"v_add_u32 v{vFA}, s{t3}, v{vC}")
    p(f"v_add_u32 v{vFA}, {4*F_CS}, v{vFA}")
    p(f"s_lshl_b32 s{t3}, s{t0}, 10")
    p(f"s_add_u32 s{t3}, s{t3}, s{t2}")
    p(f"v_and_b32 v{vC}, 1, v{vL}")
    p(f"v_lshlrev_b32 v{vC}, 11, v{vC}")
    p(f"v_bfe_u32 v{vC+3}, v{vL}, 1, 1")
    p(f"v_lshl_add_u32 v{vC}, v{vC+3}, 2, v{vC}")
    p(f"v_add_u32 v{vFO}, s{t3}, v{vC}")
    p(f"v_add_u32 v{vFO}, {4*F_O}, v{vFO}")
    GLDS = MISC + 24576
    p(f"s_lshl_b32 s{t0}, s{sTB}, 16")
    p(f"s_lshl_b32 s{t1}, s{sW}, 13")
    p(f"s_add_u32 s{t0}, s{t0}, s{t1}")
    p(f"s_add_u32 s{t1}, s{t0}, 4096")
    vmc.issue("GW", f"buffer_load_dwordx4 {vr(160)}, v{vST}, {sr(S_GATE)}, 0 offen")
    for r in range(8):
        vmc.issue("GX", f"buffer_load_dwordx4 {vr(128+4*r)}, v{vST}, {sr(S_X)}, s{t0 if r < 4 else t1} offen offset:{(r & 3) * 1024}")
    p(f"s_cmp_lg_u32 s{sG}, 0")
    p("s_cbranch_scc1 L_cgo")
    p.seg("ophase")
    p(f"s_lshl_b32 s{t0}, s{sW4}, 11")
    p(f"s_add_u32 s{t0}, s{t0}, {MISC}")
    p(f"v_add_u32 v{vC}, s{t0}, v{vST}")
    for s in range(2):
        p(f"ds_read_b128 {vr(32 + 4*s)}, v{vC} offset:{s*1024}")
    p(f"v_and_b32 v{vC+1}, 3, v{vL}")
    p(f"v_lshlrev_b32 v{vC+1}, 2, v{vC+1}")
    p(f"s_lshl_b32 s{t0}, s{sHP}, 11")
    p(f"s_add_u32 s{t0}, s{t0}, {FLG + 4*F_K}")
    poll_block(p, [(vC + 2, vC + 1, S_WS, f"s{t0}", 1)], "fk")
    p(f"s_lshl_b32 s{t0}, s{sHP}, 12")
    p(f"s_add_u32 s{t0}, s{t0}, {KVT}")
    for q in range(4):
        p(f"buffer_load_dwordx4 {vr(q*4)}, v{vST}, {WS}, s{t0} offen offset:{q*1024} sc1")
    p(f"v_and_b32 v{vC+1}, 16, v{vL}")
    p(f"v_cmp_ne_u32 vcc, 0, v{vC+1}")
    p("s_waitcnt vmcnt(0) lgkmcnt(0)")
    for i in range(8):
        p(f"v_cvt_pk_bf16_f32 v{16+i}, v{2*i}, v{2*i+1}")
    for i in range(8):
        p(f"v_cndmask_b32 v{i}, v{16+i}, 0, vcc")
    for i in range(8):
        p(f"v_cndmask_b32 v{8+i}, 0, v{16+i}, vcc")
    p("s_nop 1")
    p(f"{MF} {vr(16,16)}, {vr(0)}, {vr(32)}, 0")
    p(f"{MF} {vr(44,16)}, {vr(4)}, {vr(32)}, 0")
    p(f"{MF} {vr(16,16)}, {vr(8)}, {vr(36)}, {vr(16,16)}")
    p(f"{MF} {vr(44,16)}, {vr(12)}, {vr(36)}, {vr(44,16)}")
    p(f"s_lshl_b32 s{t0}, s{sRB}, 2")
    p(f"s_add_u32 s{t0}, s{t0}, s{sW4}")
    p(f"s_mul_i32 s{t0}, s{t0}, 288")
    p(f"s_lshl_b32 s{t1}, s{sHP}, 1")
    p(f"s_add_u32 s{t0}, s{t0}, s{t1}")
    p(f"s_add_u32 s{t0}, s{t0}, 256")
    p(f"s_lshl_b32 s{t0}, s{t0}, 10")
    p(f"s_add_u32 s{t0}, s{t0}, {AWS}")
    p("s_nop 7")
    for i in range(16):
        p(f"v_add_f32 v{44+i}, 0x358637bd, v{44+i}")
    for i in range(16):
        p(f"v_rcp_f32 v{44+i}, v{44+i}")
    p("s_nop 0")
    for i in range(16):
        p(f"v_mul_f32 v{16+i}, v{16+i}, v{44+i}")
    for i in range(8):
        p(f"v_cvt_pk_bf16_f32 v{i}, v{16+2*i}, v{17+2*i}")
    for s in range(2):
        p(f"buffer_store_dwordx4 {vr(4*s)}, v{vST}, {WS}, s{t0} offen offset:{s*1024} sc1")
    p(f"v_mov_b32 v{vC}, 1")
    p(f"v_mov_b32 v{vC+1}, 0")
    p(f"s_lshl_b32 s{t0}, s{sL}, 7")
    p(f"s_lshl_b32 s{t1}, s{sW4}, 2")
    p(f"s_add_u32 s{t0}, s{t0}, s{t1}")
    p(f"s_add_u32 s{t0}, s{t0}, {FLG}")
    p("s_waitcnt vmcnt(0)")
    p("s_mov_b64 exec, 1")
    p(f"buffer_store_dword v{vC}, v{vC+1}, {WS}, s{t0} offen offset:{4*F_O} sc1")
    p("s_mov_b64 exec, -1")
    p.seg("cmain")
    p.label("L_cgo")
    stamp(p, 24)
    p(f"buffer_load_dword v{vFD}, v{vFA}, {WS}, 0 offen sc1")
    p("s_waitcnt vmcnt(1)")
    for i in range(4):
        p(f"v_lshlrev_b32 v{164+2*i}, 16, v{160+i}")
        p(f"v_and_b32 v{165+2*i}, 0xffff0000, v{160+i}")
    for r in range(8):
        for i in range(4):
            p(f"v_lshlrev_b32 v{172+2*i}, 16, v{128+4*r+i}")
            p(f"v_and_b32 v{173+2*i}, 0xffff0000, v{128+4*r+i}")
        p(f"v_mul_f32 v{180+r}, v172, v164")
        for i in range(1, 8):
            p(f"v_fmac_f32 v{180+r}, v{172+i}, v{164+i}")
    p("s_nop 1")
    for sh in ("row_shr:1", "row_shr:2", "row_shr:4", "row_shr:8"):
        for r in range(8):
            p(f"v_add_f32_dpp v{180+r}, v{180+r}, v{180+r} {sh} row_mask:0xf bank_mask:0xf bound_ctrl:0")
    for r in range(8):
        p(f"v_add_f32_dpp v{180+r}, v{180+r}, v{180+r} row_bcast:15 row_mask:0xa bank_mask:0xf")
    for r in range(8):
        p(f"v_add_f32_dpp v{180+r}, v{180+r}, v{180+r} row_bcast:31 row_mask:0xc bank_mask:0xf")
    for r in range(8):
        p(f"v_mul_f32 v{180+r}, 0xbfb8aa3b, v{180+r}")
    for r in range(8):
        p(f"v_exp_f32 v{180+r}, v{180+r}")
    p(f"s_lshl_b32 s{t0}, s{sW}, 5")
    p(f"s_add_u32 s{t0}, s{t0}, {GLDS}")
    p(f"v_mov_b32 v{vC}, s{t0}")
    for r in range(8):
        p(f"v_add_f32 v{180+r}, 1.0, v{180+r}")
    for r in range(8):
        p(f"v_rcp_f32 v{180+r}, v{180+r}")
    p("s_mov_b32 exec_lo, 0")
    p("s_mov_b32 exec_hi, 0x80000000")
    p(f"ds_write_b128 v{vC}, {vr(180)}")
    p(f"ds_write_b128 v{vC}, {vr(184)} offset:16")
    p("s_mov_b64 exec, -1")
    p("s_waitcnt vmcnt(0)")
    loads = [(vFD, vFA, S_WS, 0, 1)]
    poll_check(p, loads)
    p("s_cbranch_vccz L_fcok")
    poll_block(p, loads, "fc")
    p.label("L_fcok")
    vmc.q = []
    stamp(p, 25)
    for s in range(NS):
        aload(s)
    def treads(s):
        for cb in range(2):
            o = (s % NS) * 2048
            p(f"ds_read_b64_tr_b16 v[{WFc(s,cb)}:{WFc(s,cb)+1}], v{vR+cb} offset:{o}")
            p(f"ds_read_b64_tr_b16 v[{WFc(s,cb)+2}:{WFc(s,cb)+3}], v{vR+cb} offset:{o + 1024}")
    treads(0)
    NST = 36
    for s in range(NST):
        if s + 1 < NST:
            vmc.wait([("W", s + 1), ("A", s)])
            treads(s + 1)
            p("s_waitcnt lgkmcnt(4)")
        else:
            vmc.wait([("A", s)], "lgkmcnt(0)")
        for cb in range(2):
            for tb in range(2):
                a = AA(cb, tb) if s < 32 else AB(cb, tb)
                c = "0" if s in (0, 32) else vr(a, 16)
                p(f"{MF} {vr(a,16)}, {vr(WFc(s,cb))}, {vr(AF(s,tb))}, {c}")
        if s == 12:
            vmc.issue("FO", f"buffer_load_dword v{vFE}, v{vFO}, {WS}, 0 offen sc1")
        if s + NS == 32:
            vmc.wait(["FO"])
            ok = newlab("fook")
            loads = [(vFE, vFO, S_WS, 0, 1)]
            poll_check(p, loads)
            p(f"s_cbranch_vccz {ok}")
            poll_block(p, loads, "fo")
            p.label(ok)
        if s + NS < NST:
            wload(s + NS)
            aload(s + NS)
    stamp(p, 26)
    p(f"v_and_b32 v{vC}, 31, v{vL}")
    p(f"v_lshlrev_b32 v{vC}, 2, v{vC}")
    p(f"v_add_u32 v{vC}, {GLDS}, v{vC}")
    p("s_barrier")
    p(f"ds_read_b32 v{vG0}, v{vC}")
    p(f"ds_read_b32 v{vG0+1}, v{vC} offset:128")
    p(f"s_lshl_b32 s{t0}, s{sW}, 14")
    p(f"v_add_u32 v{vC}, s{t0}, v{vST}")
    p("s_nop 5")
    for cb in range(2):
        for tb in range(2):
            for i in range(16):
                p(f"v_sub_f32 v{AA(cb,tb)+i}, v{AA(cb,tb)+i}, v{AB(cb,tb)+i}")
    p("s_waitcnt lgkmcnt(0)")
    p("s_barrier")
    for cb in range(2):
        for tb in range(2):
            for i in range(16):
                p(f"v_fma_f32 v{AA(cb,tb)+i}, v{AA(cb,tb)+i}, v{vG0+tb}, v{AB(cb,tb)+i}")
    for q in range(16):
        p(f"ds_write_b128 v{vC}, {vr(q*4)} offset:{q*1024}")
    p(f"s_lshl_b32 s{t0}, s{sW}, 11")
    p(f"v_add_u32 v{vC+1}, s{t0}, v{vST}")
    p(f"v_add_u32 v{vC+2}, 0x10000, v{vC+1}")
    p("s_waitcnt lgkmcnt(0)")
    p("s_barrier")
    for w in range(8):
        a = vC + 1 if w < 4 else vC + 2
        for q in range(2):
            p(f"ds_read_b128 {vr(64 + w*8 + q*4)}, v{a} offset:{(w & 3) * 16384 + q * 1024}")
    p(f"s_lshr_b32 s{t0}, s{sW}, 1")
    p(f"s_and_b32 s{t1}, s{t0}, 1")
    p(f"s_lshr_b32 s{t0}, s{t0}, 1")
    p(f"s_lshl_b32 s{t2}, s{sTB}, 1")
    p(f"s_add_u32 s{t2}, s{t2}, s{t1}")
    p(f"s_lshl_b32 s{t2}, s{t2}, 15")
    p(f"s_lshl_b32 s{t3}, s{sCB}, 7")
    p(f"s_add_u32 s{t2}, s{t2}, s{t3}")
    p(f"s_lshl_b32 s{t3}, s{t0}, 6")
    p(f"s_add_u32 s{t2}, s{t2}, s{t3}")
    p(f"s_and_b32 s{t3}, s{sW}, 1")
    p(f"s_lshl_b32 s{t3}, s{t3}, 5")
    p(f"s_add_u32 s{t2}, s{t2}, s{t3}")
    p(f"v_and_b32 v{vC}, 31, v{vL}")
    p(f"v_lshlrev_b32 v{vC}, 10, v{vC}")
    p(f"v_lshrrev_b32 v{vC+3}, 5, v{vL}")
    p(f"v_lshl_add_u32 v{vC}, v{vC+3}, 4, v{vC}")
    for w in range(1, 8):
        p(f"s_waitcnt lgkmcnt({2 * (7 - w)})")
        for i in range(8):
            p(f"v_add_f32 v{64+i}, v{64+i}, v{64 + w*8 + i}")
    for i in range(4):
        p(f"v_cvt_pk_bf16_f32 v{i}, v{64+2*i}, v{65+2*i}")
    p("s_nop 1")
    p("v_permlane32_swap_b32 v0, v2")
    p("v_permlane32_swap_b32 v1, v3")
    p("s_nop 1")
    p(f"buffer_store_dwordx4 v[0:3], v{vC}, {sr(S_OUT)}, s{t2} offen")
    if STAMPS:
        stamp(p, 27)
        p("s_waitcnt vmcnt(0)")
        stamp(p, 28); stamp_real(p, 63)
        p(f"s_lshl_b32 s{t0}, s{sL}, 3")
        p(f"s_add_u32 s{t0}, s{t0}, s{sW}")
        p(f"s_lshl_b32 s{t0}, s{t0}, 8")
        p(f"s_add_u32 s{t0}, s{t0}, {DBGOFF}")
        p(f"v_lshlrev_b32 v{vC}, 2, v{vL}")
        p(f"buffer_store_dword v{vSTAMP}, v{vC}, {WS}, s{t0} offen")
    p.label("L_end")
    p("s_endpgm")
    for sb in range(2):
        p.seg(f"rare{sb}")
        p.label(f"L_rare{sb}")
        p("s_nop 15")
        p("s_nop 7")
        maxtree(sb, vU + 2)
        p(f"v_max_f32 v{vU+2}, 0, v{vU+2}")
        p(f"v_exp_f32 v{vU+3}, -v{vU+2}")
        p(f"v_add_f32 v{vM}, v{vM}, v{vU+2}")
        for i in range(32):
            p(f"v_sub_f32 v{S(0)+i}, v{S(0)+i}, v{vU+2}")
        for i in range(16):
            p(f"v_sub_f32 v{NEGM+i}, v{NEGM+i}, v{vU+2}")
        for i in range(64):
            p(f"v_mul_f32 v{i}, v{i}, v{vU+3}")
        p(f"v_mul_f32 v{vLs}, v{vLs}, v{vU+3}")
        for x in sm_pairs(sb, range(8)):
            p(x)
        p("s_nop 1")
        for k, tag in enumerate(sites[sb]):
            if k < len(sites[sb]) - 1:
                p(f"s_cmp_eq_u32 s{sSITE}, {k}")
                p(f"s_cbranch_scc1 L_back_{tag}")
            else:
                p(f"s_branch L_back_{tag}")
    errs = []
    G0 = ["pro", "g0_pro"] + [f"g0_s{s}" for s in range(16)] + ["g0_q"]
    G1 = ["pro", "g1_pro"] + [f"g1_s{s}" for s in range(16)] + ["g1_b"]
    post = ["epi", "epib", "help", "hw", "cpro", "ophase", "cmain"]
    errs += p.check(G0 + ["apro", "aprob", "aproc", "tail0"] + post)
    errs += p.check(G1 + ["apro", "aproa", "aproc", "it1", "it2", "it3", "it0", "it1", "it2", "itm3", "tail3", "epi", "help", "hw", "cpro", "cmain"])
    errs += p.check(["apro", "aproa", "aproc", "itm1", "tail1", "epi"])
    errs += p.check(["apro", "aproa", "aproc", "it1", "itm2", "tail2", "epi"])
    errs += p.check(["apro", "aproa", "aproc", "it1", "it2", "it3", "itm0", "tail0", "epi"])
    errs += p.check(["rare0"]); errs += p.check(["rare1"])
    return p, errs


def main():
    global STAMPS
    if '--stamps' in sys.argv:
        STAMPS = True; sys.argv.remove('--stamps')
    hdr = open(f'cdna_kernels/{NAME}.s.ref').read().split("; Override launch")[0]
    p, errs = gen()
    for e in errs:
        print("HAZARD", e)
    n = "fused_kernel"
    out = [hdr, f"; @launch kernel={n} grid=(256,1,1) block=(512,1,1) lds=163840\n",
           '.amdgcn_target "amdgcn-amd-amdhsa--gfx950"\n.text\n',
           f".globl {n}\n.p2align 8\n.type {n},@function\n{n}:\n", p.text(),
           '.section .rodata,"a"\n', f""".p2align 6
.amdhsa_kernel {n}
  .amdhsa_next_free_vgpr 256
  .amdhsa_next_free_sgpr 102
  .amdhsa_accum_offset 256
  .amdhsa_group_segment_fixed_size 0
  .amdhsa_kernarg_size 104
  .amdhsa_user_sgpr_count 2
  .amdhsa_user_sgpr_kernarg_segment_ptr 1
  .amdhsa_system_sgpr_workgroup_id_x 1
.end_amdhsa_kernel
"""]
    dst = sys.argv[1] if len(sys.argv) > 1 else f'cdna_kernels/{NAME}.s'
    open(dst, 'w').write("".join(out))
    print("wrote", dst, "errs", len(errs))

if __name__ == '__main__':
    main()
```

```python
import sys, os
from asmlib import Prog

NAME = 'gated_mix__compressed_kv_cla__linear_attn_block__prompt'
KWS, VWS, AWS = 0, 16 << 20, 32 << 20
KVP, KVT, GW, FLG = 52 << 20, 56 << 20, 57 << 20, 58 << 20
DBGOFF = 60 << 20
WS_BYTES = 64 << 20
LOG2E = 0x3fb8aa3b
MF = "v_mfma_f32_32x32x16_bf16"
X = lambda k: bool(os.environ.get(k))
STAMPS = False

def vr(b, n=4):
    return f"v[{b}:{b+n-1}]"
def sr(b):
    return f"s[{b}:{b+3}]"

P_X, P_CKV, P_WQ, P_WUK, P_WUV, P_WO, P_BX, P_WQKV, P_BWO, P_GATE, P_OUT, P_DBG, P_WS = [64 + 2 * i for i in range(13)]
S_CKV, S_WUK, S_WUV, S_X, S_WQ, S_WQKV, S_WS, S_WO, S_BWO, S_OUT, S_GATE, S_DBG = [4 + 4 * i for i in range(12)]
WS = sr(S_WS)
sH, sI, sW, sG, sW4, sHP, sL, sN, sRB, sTO = range(90, 100)
t0, t1, t2, t3, t4, t5, t6, t7, t8, t9, t10, t11 = range(52, 64)
vSTAMP, vL, vST = 255, 254, 253
F_LO, F_HI, F_B, F_K, F_CS, F_CL, F_O = 0, 1, 4, 20, 8, 12, 16
LXS = [0, 32768]
LWS = [65536, 98304, 131072]
MISC = 65536
TIMEOUT = 1 << 18
GS = int(os.environ.get('GS', 4))
PFD = int(os.environ.get('PFD', 3))
FLAG0 = int(os.environ.get('FLAG0', 10))
HS = int(os.environ.get('HS', 2))
TRS = int(os.environ.get('TRS', 6))
need_check_fn = [None]


class VM:
    def __init__(self, p):
        self.p, self.q = p, []
    def issue(self, tag, text, cond=False):
        self.p(text)
        if not cond:
            self.q += [tag] * len(text.strip().split("\n"))
    def count_after(self, tags):
        idx = [k for k, t in enumerate(self.q) if t in tags]
        if not idx:
            return None
        return len(self.q) - 1 - max(idx)
    def wait(self, tags, extra=""):
        n = self.count_after(tags)
        if n is None:
            if extra: self.p(f"s_waitcnt {extra}")
            return
        assert n <= 63, n
        self.p(f"s_waitcnt vmcnt({n}) {extra}".rstrip())
        self.q = self.q[len(self.q) - n:] if n else []
    def wait_all(self, extra=""):
        self.p(f"s_waitcnt vmcnt(0) {extra}".rstrip()); self.q = []


REALS = {1: 56, 9: 57, 17: 58, 23: 59, 26: 60}
def stamp(p, idx):
    if not STAMPS: return
    p("s_memtime s[100:101]")
    p("s_waitcnt lgkmcnt(0)")
    p(f"v_writelane_b32 v{vSTAMP}, s100, {idx}")
    if idx in REALS and X('CST'): stamp_real(p, REALS[idx])
def cstamp(p, idx):
    if X('CST'): stamp(p, idx)
def stamp_real(p, idx):
    if not STAMPS: return
    p("s_memrealtime s[100:101]")
    p("s_waitcnt lgkmcnt(0)")
    p(f"v_writelane_b32 v{vSTAMP}, s100, {idx}")

def srd(p, s, lo, nbytes):
    p(f"s_mov_b32 s{s}, s{lo}")
    p(f"s_and_b32 s{s+1}, s{lo+1}, 0xffff")
    p(f"s_mov_b32 s{s+2}, {nbytes}")
    p(f"s_mov_b32 s{s+3}, 0x20000")

def spread(fill, nslots):
    out = [[] for _ in range(nslots)]
    k = len(fill); fi = 0
    for i in range(nslots):
        tgt = (k * (i + 1) + nslots - 1) // nslots
        while fi < tgt:
            out[i].append(fill[fi]); fi += 1
    return out

_lab = [0]
def newlab(s):
    _lab[0] += 1
    return f"L_{s}_{_lab[0]}"

def poll_block(p, loads, tag):
    top, done = newlab("poll" + tag), newlab("pdone" + tag)
    p.label(top)
    for vd, va, s, so, e in loads:
        p(f"buffer_load_dword v{vd}, v{va}, {sr(s)}, {so} offen sc1")
    p("s_waitcnt vmcnt(0)")
    poll_check(p, loads)
    p(f"s_cbranch_vccz {done}")
    p("s_sleep 4")
    p(f"s_sub_u32 s{sTO}, s{sTO}, 1")
    p(f"s_cbranch_scc0 {top}")
    p(f"s_mov_b32 s{sTO}, 0")
    p.label(done)

def poll_check(p, loads):
    for k, (vd, va, s, so, e) in enumerate(loads):
        if k == 0:
            p(f"v_cmp_ne_u32 vcc, {e}, v{vd}")
        else:
            p(f"v_cmp_ne_u32 s[{t10}:{t11}], {e}, v{vd}")
            p("s_nop 0")
            p(f"s_or_b64 vcc, vcc, s[{t10}:{t11}]")
    p("s_nop 1")


def gen():
    p = Prog()
    vXD, vWA, vWB2, vXR2, vXB, vWQ, vXR, vWR = 216, 220, 222, 224, 228, 232, 240, 244
    vPA, vPB, vPD, vPE, vPK = 248, 249, 250, 251, 252
    vT = 184
    vG, GX, GW_, GT = 168, 192, 200, 204
    F_G = 24
    (sXb, sXc, sWa, sWb, sM4, sSTl, sSTh, sTB, sCB, sKB, sVB, sKM, sVM, sR, sLAST, sQB, sQ4, sPEND, sT, sTHR,
     sHK, sALL) = range(64, 86)
    sHK2 = 3
    LKA, LKB = 86, 88
    KB = [0, 32768]
    VB_ = [LWS[1], LWS[2]]
    p.seg("pro")
    p("s_cmp_ge_u32 s2, 256")
    p("s_cbranch_scc1 L_end")
    if STAMPS: p(f"v_mov_b32 v{vSTAMP}, 0")
    stamp(p, 0); stamp_real(p, 62)
    p("s_load_dwordx16 s[64:79], s[0:1], 0")
    p("s_load_dwordx8 s[80:87], s[0:1], 64")
    p("s_load_dwordx2 s[88:89], s[0:1], 96")
    p(f"v_and_b32 v{vL}, 63, v0")
    p(f"v_lshrrev_b32 v{vT}, 6, v0")
    p(f"s_and_b32 s{t0}, s2, 7")
    p(f"s_lshr_b32 s{t1}, s2, 3")
    p(f"v_readfirstlane_b32 s{sW}, v{vT}")
    p(f"s_lshl_b32 s{sH}, s{t0}, 2")
    p(f"s_and_b32 s{t2}, s{t1}, 3")
    p(f"s_add_u32 s{sH}, s{sH}, s{t2}")
    p(f"s_lshr_b32 s{sI}, s{t1}, 2")
    p(f"s_lshr_b32 s{sG}, s{sW}, 2")
    p(f"s_and_b32 s{sW4}, s{sW}, 3")
    p(f"s_lshr_b32 s{sHP}, s{sH}, 1")
    p(f"s_lshl_b32 s{sL}, s{sH}, 3")
    p(f"s_add_u32 s{sL}, s{sL}, s{sI}")
    p(f"s_sub_u32 s{sN}, 16, s{sI}")
    p(f"s_sub_u32 s{t3}, 15, s{sI}")
    p(f"s_and_b32 s{t4}, s{sH}, 1")
    p(f"s_cmp_eq_u32 s{t4}, 0")
    p(f"s_cselect_b32 s{sRB}, s{sI}, s{t3}")
    p(f"s_mov_b32 s{sTO}, {TIMEOUT}")
    p(f"s_sub_u32 s{t10}, 3, s{sW4}")
    p(f"s_cmp_eq_u32 s{sG}, 0")
    p(f"s_cselect_b32 s{t10}, s{sW4}, s{t10}")
    p(f"v_lshlrev_b32 v{vST}, 4, v{vL}")
    l4, hi, r4 = vT + 1, vT + 2, vT + 3
    p(f"v_lshrrev_b32 v{l4}, 4, v{vL}")
    p(f"v_lshrrev_b32 v{hi}, 5, v{vL}")
    p(f"v_bfe_u32 v{r4}, v{vL}, 2, 2")
    p(f"v_lshrrev_b32 v{vT}, 3, v{vL}")
    p(f"v_lshlrev_b32 v{vT}, 10, v{vT}")
    p(f"v_and_b32 v{vT+5}, 7, v{vL}")
    p(f"v_xor_b32 v{vT+5}, v{vT+5}, v{l4}")
    p(f"v_lshlrev_b32 v{vT+5}, 4, v{vT+5}")
    p(f"v_xor_b32 v{vT+6}, 64, v{vT+5}")
    p(f"v_add_u32 v{vXD}, v{vT}, v{vT+5}")
    p(f"v_add_u32 v{vXD+1}, v{vT}, v{vT+6}")
    p(f"v_add_u32 v{vXD+1}, 7168, v{vXD+1}")
    p(f"v_add_u32 v{vXD+2}, {2*7168}, v{vXD}")
    p(f"v_add_u32 v{vXD+3}, {2*7168}, v{vXD+1}")
    p(f"s_lshl_b32 s{t5}, s{sH}, 8")
    p(f"v_lshlrev_b32 v{vT}, 13, v{l4}")
    p(f"v_add_u32 v{vT}, s{t5}, v{vT}")
    p(f"v_and_b32 v{vT+5}, 15, v{vL}")
    p(f"v_lshlrev_b32 v{vT+6}, 2, v{l4}")
    p(f"v_xor_b32 v{vT+5}, v{vT+5}, v{vT+6}")
    p(f"v_lshl_add_u32 v{vWA}, v{vT+5}, 4, v{vT}")
    p(f"v_add_u32 v{vWA+1}, {4*8192 - 1024}, v{vWA}")
    p(f"v_mul_u32_u24 v{vT}, 3072, v{l4}")
    p(f"v_lshrrev_b32 v{vT+6}, 2, v{vT+5}")
    p(f"v_min_u32 v{vT+6}, 2, v{vT+6}")
    p(f"v_lshl_add_u32 v{vT}, v{vT+6}, 10, v{vT}")
    p(f"v_and_b32 v{vT+6}, 3, v{vT+5}")
    p(f"v_lshl_add_u32 v{vT}, v{vT+6}, 4, v{vT}")
    p(f"s_lshl_b32 s{t5}, s{sHP}, 6")
    p(f"v_add_u32 v{vWB2}, s{t5}, v{vT}")
    p(f"v_add_u32 v{vWB2+1}, {4*3072 - 1024}, v{vWB2}")
    p(f"v_bfe_u32 v{vT}, v{vL}, 2, 2")
    p(f"v_xor_b32 v{vT}, v{vT}, v{l4}")
    p(f"v_cmp_ne_u32 s[2:3], 3, v{vT}")
    p("s_waitcnt lgkmcnt(0)")
    stamp(p, 29)
    srd(p, S_X, P_X, 2 << 20)
    srd(p, S_WQ, P_WQ, 4 << 20)
    srd(p, S_WQKV, P_WQKV, 512 * 1536 * 2)
    srd(p, S_CKV, P_CKV, 2 << 20)
    srd(p, S_WUK, P_WUK, 4 << 20)
    srd(p, S_WUV, P_WUV, 4 << 20)
    srd(p, S_WS, P_WS, WS_BYTES)
    srd(p, S_WO, P_WO, 4 << 20)
    srd(p, S_BWO, P_BWO, 512 * 1024)
    srd(p, S_OUT, P_OUT, 2 << 20)
    srd(p, S_GATE, P_GATE, 1024)
    srd(p, S_DBG, P_DBG, 256)
    p(f"s_mov_b32 s{sQ4}, s{t10}")
    p(f"s_lshl_b32 s{t5}, s{sW4}, 15")
    p(f"s_lshl_b32 s{sXb}, s{sI}, 17")
    p(f"s_add_u32 s{sXb}, s{sXb}, s{t5}")
    p(f"s_lshl_b32 s{sXc}, s{t3}, 17")
    p(f"s_add_u32 s{sXc}, s{sXc}, s{t5}")
    p(f"s_lshl_b32 s{sWa}, s{sW4}, 16")
    p(f"s_mul_i32 s{sWb}, s{sW4}, {8*3072}")
    p(f"s_lshl_b32 s{sM4}, s{sW4}, 12")
    if X('LB'): p("s_branch L_lb")
    p(f"s_cmp_lg_u32 s{sG}, 0")
    p("s_cbranch_scc1 L_g1")

    def setup2():
        p(f"s_sub_u32 s{t3}, 15, s{sI}")
        p(f"s_and_b32 s{t4}, s{sH}, 1")
        p(f"s_lshr_b32 s{t5}, s{sW}, 1")
        p(f"s_and_b32 s{t5}, s{t5}, 1")
        p(f"s_lshl_b32 s{t6}, s{t5}, 13")
        p(f"s_lshl_b32 s{t7}, s{sG}, 2")
        p(f"s_add_u32 s{t7}, s{t7}, s{sQ4}")
        p(f"s_lshl_b32 s{t7}, s{t7}, 12")
        p(f"s_lshl_b32 s{t8}, s{t4}, 2")
        p(f"s_add_u32 s{t8}, s{t8}, s{sW4}")
        p(f"s_lshl_b32 s{t8}, s{t8}, 12")
        p(f"v_and_b32 v{vT}, 31, v{vL}")
        p(f"v_lshlrev_b32 v{vT}, 7, v{vT}")
        p(f"v_bfe_u32 v{vT+5}, v{vL}, 1, 3")
        p(f"v_xor_b32 v{vT+5}, v{vT+5}, v{hi}")
        p(f"v_lshlrev_b32 v{vT+5}, 4, v{vT+5}")
        for kk in range(4):
            p(f"v_xor_b32 v{vT+6}, {kk*32}, v{vT+5}")
            p(f"v_add_u32 v{vT+6}, v{vT}, v{vT+6}")
            p(f"v_add_u32 v{vXR+kk}, s{t6}, v{vT+6}")
            p(f"v_add_u32 v{vXR2+kk}, s{t7}, v{vT+6}")
            p(f"v_add_u32 v{vXB+kk}, s{t8}, v{vT+6}")
        p(f"v_lshlrev_b32 v{vT}, 12, v{hi}")
        p(f"v_lshl_add_u32 v{vT}, v{r4}, 8, v{vT}")
        p(f"v_and_b32 v{vT+5}, 1, v{l4}")
        p(f"v_lshl_add_u32 v{vT}, v{vT+5}, 5, v{vT}")
        p(f"v_and_b32 v{vT+5}, 3, v{vL}")
        p(f"v_lshl_add_u32 v{vT}, v{vT+5}, 3, v{vT}")
        p(f"v_add_u32 v{vT}, 0x10000, v{vT}")
        for d in range(4):
            p(f"v_xor_b32 v{vT+5}, {d}, v{r4}")
            p(f"v_lshl_add_u32 v{vWQ+d}, v{vT+5}, 6, v{vT}")
            p(f"v_add_u32 v{vWQ+4+d}, 0x10000, v{vWQ+d}")
        p(f"s_and_b32 s{t6}, s{sW}, 1")
        p(f"s_lshl_b32 s{t7}, s{t6}, 1")
        p(f"s_lshl_b32 s{t8}, s{sG}, 11")
        p(f"v_add_u32 v{vT}, s{t8}, v{vT}")
        p(f"v_xor_b32 v{vT+5}, s{t7}, v{r4}")
        p(f"v_lshl_add_u32 v{vWR}, v{vT+5}, 6, v{vT}")
        p(f"v_xor_b32 v{vT+5}, 1, v{vT+5}")
        p(f"v_lshl_add_u32 v{vWR+1}, v{vT+5}, 6, v{vT}")
        p(f"v_add_u32 v{vWR+2}, 0x10000, v{vWR}")
        p(f"v_add_u32 v{vWR+3}, 0x10000, v{vWR+1}")
        p(f"s_lshl_b32 s{t9}, s{sH}, 19")
        p(f"s_lshl_b32 s{t7}, s{t5}, 14")
        p(f"s_add_u32 s{t9}, s{t9}, s{t7}")
        p(f"s_lshl_b32 s{t7}, s{t6}, 12")
        p(f"s_add_u32 s{t9}, s{t9}, s{t7}")
        p(f"s_lshl_b32 s{t7}, s{sG}, 24")
        p(f"s_add_u32 s{t9}, s{t9}, s{t7}")
        p(f"s_lshl_b32 s{t7}, s{sI}, 15")
        p(f"s_add_u32 s{sSTl}, s{t9}, s{t7}")
        p(f"s_lshl_b32 s{t7}, s{t3}, 15")
        p(f"s_add_u32 s{sSTh}, s{t9}, s{t7}")
        p(f"s_cmp_lt_u32 s{sH}, 16")
        p(f"s_cselect_b32 s{sTB}, s{sI}, s{t3}")
        p(f"s_lshl_b32 s{sTB}, s{sTB}, 1")
        p(f"s_bfe_u32 s{t5}, s{sH}, 0x10003")
        p(f"s_add_u32 s{sTB}, s{sTB}, s{t5}")
        p(f"s_and_b32 s{sCB}, s{sH}, 7")
        p(f"v_and_b32 v{vT}, 7, v{vL}")
        p(f"v_lshlrev_b32 v{vPB}, 5, v{vT}")
        p(f"v_and_b32 v{vT}, 15, v{vL}")
        p(f"v_sub_u32 v{vT+5}, 15, v{vT}")
        p(f"v_min_u32 v{vT+5}, v{vT}, v{vT+5}")
        p(f"v_lshlrev_b32 v{vT+5}, 7, v{vT+5}")
        p(f"v_lshrrev_b32 v{vT}, 3, v{vT}")
        p(f"v_lshl_add_u32 v{vT+5}, v{vT}, 2, v{vT+5}")
        p(f"s_lshl_b32 s{t0}, s{sH}, 10")
        p(f"s_add_u32 s{t0}, s{t0}, {FLG + 4*F_LO}")
        p(f"v_add_u32 v{vPA}, s{t0}, v{vT+5}")
        p(f"s_lshl_b32 s{t0}, s{sW4}, 13")
        p(f"s_lshl_b32 s{t1}, s{sH}, 19")
        p(f"s_sub_u32 s{sKB}, {3 * 8192}, s{t0}")
        p(f"s_add_u32 s{sKB}, s{sKB}, s{t1}")
        p(f"s_sub_u32 s{sVB}, {4 * 8192}, s{t0}")
        p(f"s_and_b32 s{sVB}, s{sVB}, 0x7fff")
        p(f"s_add_u32 s{sVB}, s{sVB}, s{t1}")
        p(f"s_add_u32 s{sVB}, s{sVB}, {VWS}")
        p(f"s_add_u32 s{sKM}, s{t0}, {KB[0]}")
        p(f"s_add_u32 s{sVM}, s{t0}, {VB_[0]}")
        p(f"s_cmp_eq_u32 s{sG}, 0")
        p(f"s_cselect_b32 s{sQB}, s{sI}, s{t3}")
        p(f"s_add_u32 s{t1}, s{sI}, 1")
        p(f"s_cselect_b32 s{sLAST}, s{t1}, s{t3}")
        p(f"s_cmp_eq_u32 s{sG}, 0")
        p(f"s_cselect_b32 s{sLAST}, s{t1}, s{t3}")
        p(f"s_cmp_eq_u32 s{sLAST}, 1")
        p(f"s_cselect_b32 s{sLAST}, 0, s{sLAST}")
        p(f"s_mov_b32 s{sR}, 0")
        p(f"s_mov_b32 s{sPEND}, 1")
        p(f"s_mov_b32 s{sALL}, 0")
        p(f"s_mov_b32 s{sHK}, 1")
        p(f"s_mov_b32 s{sT}, 0")
        p(f"s_mov_b32 s{sTHR}, {'0x7f800000' if X('NORARE') else ('0x00000000' if X('ALLRARE') else '0x47800000')}")

    def dma_x(vm, s):
        slot = LXS[s & 1]
        for g2 in range(2):
            p(f"s_add_u32 m0, s{sM4}, {slot + g2 * 16384}")
            p(f"s_add_u32 s{t0}, s{sXc if g2 else sXb}, {(s & 7) * 128}")
            S = S_X if s < 8 else S_CKV
            for i4 in range(4):
                vm.issue(("X", s), f"buffer_load_dwordx4 v{vXD+i4}, {sr(S)}, s{t0} offen offset:{1024*i4} lds")
    def dma_w(vm, s):
        slot = LWS[s % 3]
        for g2 in range(2):
            p(f"s_add_u32 m0, s{sM4}, {slot + g2 * 16384}")
            p(f"s_add_u32 s{t0}, s{sWa}, {(s & 7) * 524288 + g2 * 262144}")
            for i2 in range(2):
                vm.issue(("W", s), f"buffer_load_dwordx4 v{vWA+i2}, {sr(S_WQ if s < 8 else S_WUK)}, s{t0} offen offset:{1024*i2} lds")
            p("s_add_u32 m0, m0, 2048")
            if s < 8:
                p(f"s_add_u32 s{t0}, s{sWb}, {s * 196608 + g2 * 98304}")
                p("s_mov_b64 exec, s[2:3]")
            else:
                p("s_nop 0")
            for i2 in range(2):
                if s >= 8:
                    vm.issue(("W", s), f"buffer_load_dwordx4 v{vWA+i2}, {sr(S_WUV)}, s{t0} offen offset:{1024*i2} lds")
                else:
                    vm.issue(("W", s), f"buffer_load_dwordx4 v{vWB2+i2}, {sr(S_WQKV)}, s{t0} offen offset:{1024*i2} lds")
            if s < 8: p("s_mov_b64 exec, -1")
    def flag_store(va, vb, dword, per_wave=None, vm=None):
        p(f"v_mov_b32 v{va}, 1")
        p(f"v_mov_b32 v{vb}, 0")
        p(f"s_lshl_b32 s{t0}, s{sL}, 7")
        if per_wave is not None:
            p(f"s_lshl_b32 s{t1}, s{per_wave}, 2")
            p(f"s_add_u32 s{t0}, s{t0}, s{t1}")
        p(f"s_add_u32 s{t0}, s{t0}, {FLG}")
        p("s_mov_b64 exec, 1")
        t = f"buffer_store_dword v{va}, v{vb}, {WS}, s{t0} offen offset:{4*dword} sc1"
        vm.issue("FL", t) if vm else p(t)
        p("s_mov_b64 exec, -1")

    def gate_addr(va, vb, orow):
        p(f"v_bfe_u32 v{va}, v{vL}, 3, 2")
        p(f"v_lshlrev_b32 v{va}, 10, v{va}")
        p(f"v_and_b32 v{vb}, 7, v{vL}")
        p(f"v_lshl_add_u32 v{va}, v{vb}, 2, v{va}")
        if orow:
            p(f"s_and_b32 s{t0}, s{sH}, 1")
            p(f"s_lshl_b32 s{t0}, s{t0}, 2")
            p(f"s_add_u32 s{t0}, s{t0}, s{sW4}")
        else:
            p(f"s_lshl_b32 s{t0}, s{sG}, 2")
            p(f"s_add_u32 s{t0}, s{t0}, s{sQ4}")
        p(f"s_lshl_b32 s{t0}, s{t0}, 12")
        p(f"s_lshl_b32 s{t1}, s{sI}, 7")
        p(f"s_add_u32 s{t0}, s{t0}, s{t1}")
        p(f"s_add_u32 s{t0}, s{t0}, {FLG + 4*F_G}")
    def gate_check(vd, va, vb, orow, tag):
        ok, top = newlab("gok" + tag), newlab("gtop" + tag)
        p(f"v_cmp_eq_u32 vcc, 0, v{vd}")
        p("s_nop 1")
        p(f"s_cbranch_vccz {ok}")
        gate_addr(va, vb, orow)
        p.label(top)
        p(f"buffer_load_dword v{vd}, v{va}, {WS}, s{t0} offen sc1")
        p("s_waitcnt vmcnt(0)")
        p(f"v_cmp_eq_u32 vcc, 0, v{vd}")
        p("s_nop 1")
        p(f"s_cbranch_vccz {ok}")
        p("s_sleep 4")
        p(f"s_sub_u32 s{sTO}, s{sTO}, 1")
        p(f"s_cbranch_scc0 {top}")
        p(f"s_mov_b32 s{sTO}, 0")
        p.label(ok)

    ACC = lambda tbi, cbi: (tbi * 2 + cbi) * 16
    XF = lambda st, tbi: 128 + st * 24 + tbi * 4
    WF = lambda st, cbi: 128 + st * 24 + 16 + cbi * 4
    def wsel(base, s):
        sl = s % 3
        return (base[1], 0) if sl == 2 else (base[0], sl * 32768)
    def reads1(s, kk, st):
        L = []
        wb, wo = wsel((0, 2), s)
        def wr(cbi):
            o = wo + kk * 8192
            L.append(f"ds_read_b64_tr_b16 v[{WF(st,cbi)}:{WF(st,cbi)+1}], v{vWR+wb+cbi} offset:{o}")
            L.append(f"ds_read_b64_tr_b16 v[{WF(st,cbi)+2}:{WF(st,cbi)+3}], v{vWR+wb+cbi} offset:{o + 1024}")
        def xr(tbi):
            L.append(f"ds_read_b128 {vr(XF(st,tbi))}, v{vXR+kk} offset:{LXS[s & 1] + (tbi >> 1) * 16384 + (tbi & 1) * 4096}")
        wr(0); xr(0); wr(1); xr(1); xr(2); xr(3)
        return L
    def mf1(isv, st, first):
        L = []
        for tbi in range(4):
            for cbi in range(2):
                a = ACC(tbi, cbi)
                c = "0" if first else vr(a, 16)
                if isv:
                    L.append(f"{MF} {vr(a,16)}, {vr(XF(st,tbi))}, {vr(WF(st,cbi))}, {c}")
                else:
                    L.append(f"{MF} {vr(a,16)}, {vr(WF(st,cbi))}, {vr(XF(st,tbi))}, {c}")
        return L
    F2 = lambda st: 112 + 36 * st
    BQ, BK, BV = 64, 80, 96
    def reads2(s, kk, st, withb):
        L = []
        wb, wo = wsel((0, 4), s)
        b = F2(st)
        def tr(dst, d, extra):
            o = wo + kk * 8192 + extra
            L.append(f"ds_read_b64_tr_b16 v[{dst}:{dst+1}], v{vWQ+wb+d} offset:{o}")
            L.append(f"ds_read_b64_tr_b16 v[{dst+2}:{dst+3}], v{vWQ+wb+d} offset:{o + 1024}")
        L.append(f"ds_read_b128 {vr(b)}, v{vXR2+kk} offset:{LXS[s & 1]}")
        for d in range(4):
            tr(b + 8 + d * 4, d, 0)

        if withb:
            L.append(f"ds_read_b128 {vr(b+4)}, v{vXB+kk} offset:{LXS[s & 1]}")
            for sg in range(3):
                tr(b + 24 + sg * 4, sg, 2048)
        return L
    def mf2(st, first, withb):
        b = F2(st)
        c = lambda a: "0" if first else vr(a, 16)
        L = [f"{MF} {vr(d*16,16)}, {vr(b+8+d*4)}, {vr(b)}, {c(d*16)}" for d in range(4)]
        if withb:
            L += [f"{MF} {vr(BQ,16)}, {vr(b+24)}, {vr(b+4)}, {c(BQ)}",
                  f"{MF} {vr(BK,16)}, {vr(b+4)}, {vr(b+28)}, {c(BK)}",
                  f"{MF} {vr(BV,16)}, {vr(b+4)}, {vr(b+32)}, {c(BV)}"]
        return L
    def step(g, s, kk, extra=()):
        st = (kk + 1) & 1
        ns, nk = (s, kk + 1) if kk < 3 else (s + 1, 0)
        if s < 8:
            M = mf2(st, s == 0 and kk == 0, g == 1)
            per = 3
        else:
            M = mf1(g == 1, st, s == 8 and kk == 0)
            per = 2
        if ns < 8: Rd = reads2(ns, nk, st ^ 1, g == 1)
        elif ns < 16: Rd = reads1(ns, nk, st ^ 1)
        else: Rd = []
        ex = spread(list(extra), len(M))
        p("s_waitcnt lgkmcnt(0)")
        for i, m in enumerate(M):
            p(m)
            for r in Rd[per * i:per * i + per]:
                p(r)
            for x in ex[i]:
                p(x)
        for r in Rd[per * len(M):]:
            p(r)

    QR = 176
    PQ = 208
    STASH = 216
    def qcvt():
        p("s_mov_b32 s52, 0x3e0293ee")
        for i in range(64):
            p(f"v_mul_f32 v{i}, s52, v{i}")
        for i in range(32):
            p(f"v_cvt_pk_bf16_f32 v{QR+i}, v{2*i}, v{2*i+1}")
    def bpost(vm):
        TB = 0
        def phi(src, dst):
            a, b, c = TB, TB + 8, TB + 24
            for i in range(8):
                p(f"v_cvt_pk_bf16_f32 v{a+i}, v{src+2*i}, v{src+2*i+1}")
            for i in range(8):
                p(f"v_lshlrev_b32 v{b+2*i}, 16, v{a+i}")
                p(f"v_and_b32 v{b+1+2*i}, 0xffff0000, v{a+i}")
            for i in range(16):
                p(f"v_min_f32 v{c+i}, 0, v{b+i}")
            for i in range(16):
                p(f"v_mul_f32 v{c+i}, {LOG2E:#x}, v{c+i}")
            for i in range(16):
                p(f"v_exp_f32 v{c+i}, v{c+i}")
            for i in range(16):
                p(f"v_max_f32 v{b+i}, 0, v{b+i}")
            for i in range(16):
                p(f"v_add_f32 v{b+i}, 0x358637bd, v{b+i}")
            for i in range(16):
                p(f"v_add_f32 v{b+i}, v{b+i}, v{c+i}")
            for i in range(8):
                p(f"v_cvt_pk_bf16_f32 v{dst+i}, v{b+2*i}, v{b+1+2*i}")
        PK, VBf, ONE, OUT = 40, 48, 56, 112
        phi(BK, PK)
        for i in range(8):
            p(f"v_cvt_pk_bf16_f32 v{VBf+i}, v{BV+2*i}, v{BV+2*i+1}")
        for i in range(4):
            p(f"v_mov_b32 v{ONE+i}, 0x3f803f80")
        p("s_nop 1")
        p(f"{MF} {vr(BK,16)}, {vr(PK)}, {vr(VBf)}, 0")
        p(f"{MF} {vr(BV,16)}, {vr(PK)}, {vr(ONE)}, 0")
        p(f"{MF} {vr(BK,16)}, {vr(PK+4)}, {vr(VBf+4)}, {vr(BK,16)}")
        p(f"{MF} {vr(BV,16)}, {vr(PK+4)}, {vr(ONE)}, {vr(BV,16)}")
        phi(BQ, PQ)
        p(f"v_and_b32 v{TB}, 16, v{vL}")
        p(f"v_cmp_ne_u32 vcc, 0, v{TB}")
        p(f"s_lshl_b32 s{t0}, s{sL}, 2")
        p(f"s_add_u32 s{t0}, s{t0}, s{sW4}")
        p(f"s_lshl_b32 s{t0}, s{t0}, 12")
        p(f"s_add_u32 s{t0}, s{t0}, {KVP}")
        for i in range(8):
            p(f"v_cndmask_b32 v{OUT+i}, v{BK+i}, v{BK+8+i}, vcc")
        for i in range(8):
            p(f"v_cndmask_b32 v{OUT+8+i}, v{BV+i}, v{BV+8+i}, vcc")
        for q in range(4):
            vm.issue("PT", f"buffer_store_dwordx4 {vr(OUT + q*4)}, v{vST}, {WS}, s{t0} offen offset:{q*1024} sc1")
        p("s_nop 1")

    RL, RA, RB_, RC = 216, 232, 233, 234
    def red_slice_base(dst, base):
        p(f"s_and_b32 s{dst}, s{sL}, 15")
        p(f"s_lshl_b32 s{dst}, s{dst}, 2")
        p(f"s_add_u32 s{dst}, s{dst}, s{sW4}")
        p(f"s_lshl_b32 s{dst}, s{dst}, 6")
        p(f"s_add_u32 s{dst}, s{dst}, {base}")
    def g1_slot(vm, s, kk):
        extra = []
        if (s, kk) == (HS, 2):
            skip = newlab("nofl")
            p(f"s_cmp_lg_u32 s{sW}, 7")
            p(f"s_cbranch_scc1 {skip}")
            p("s_waitcnt vmcnt(0)")
            p(f"v_mov_b32 v{vPD}, 1")
            p(f"s_lshl_b32 s{t0}, s{sI}, 5")
            p(f"v_mov_b32 v{vPE}, s{t0}")
            p("s_mov_b64 exec, 1")
            p(f"buffer_atomic_add v{vPD}, v{vPE}, {sr(S_DBG)}, 0 offen sc1")
            p("s_mov_b64 exec, -1")
            p.label(skip)
        if (s, kk) == (GS, 1):
            p(f"s_lshl_b32 s{t0}, s{sH}, 3")
            p(f"s_lshl_b32 s{t1}, s{sW4}, 1")
            p(f"s_add_u32 s{t0}, s{t0}, s{t1}")
            p(f"s_and_b32 s{t1}, s{t0}, 127")
            p(f"s_lshl_b32 s{t1}, s{t1}, 10")
            p(f"s_lshl_b32 s{t2}, s{sW4}, 15")
            p(f"s_cmp_lt_u32 s{t0}, 128")
            p(f"s_cselect_b32 s{t0}, s{sXb}, s{sXc}")
            p(f"s_sub_u32 s{t0}, s{t0}, s{t2}")
            p(f"s_add_u32 s{t0}, s{t0}, s{t1}")
            vm.issue("G", f"buffer_load_dwordx4 {vr(GW_)}, v{vST}, {sr(S_GATE)}, 0 offen")
            for r in range(2):
                vm.issue("G", f"buffer_load_dwordx4 {vr(GX + 4*r)}, v{vST}, {sr(S_X)}, s{t0} offen offset:{r*1024}")
        if (s, kk) == (GS + 1, 0):
            vm.wait_all()
            W8, T2, R2 = 184, GT, GT + 4
            for i in range(4):
                extra.append(f"v_lshlrev_b32 v{W8+2*i}, 16, v{GW_+i}")
                extra.append(f"v_and_b32 v{W8+1+2*i}, 0xffff0000, v{GW_+i}")
            for i in range(4):
                for r in range(2):
                    extra.append(f"v_lshlrev_b32 v{T2+2*r}, 16, v{GX+4*r+i}")
                    extra.append(f"v_and_b32 v{T2+2*r+1}, 0xffff0000, v{GX+4*r+i}")
                for r in range(2):
                    if i == 0:
                        extra.append(f"v_mul_f32 v{R2+r}, v{T2+2*r}, v{W8}")
                    else:
                        extra.append(f"v_fmac_f32 v{R2+r}, v{T2+2*r}, v{W8+2*i}")
                for r in range(2):
                    extra.append(f"v_fmac_f32 v{R2+r}, v{T2+2*r+1}, v{W8+2*i+1}")
        if (s, kk) == (GS + 1, 1):
            R2 = GT + 4
            for sh in ("row_shr:1 row_mask:0xf bank_mask:0xf bound_ctrl:0", "row_shr:2 row_mask:0xf bank_mask:0xf bound_ctrl:0",
                       "row_shr:4 row_mask:0xf bank_mask:0xf bound_ctrl:0", "row_shr:8 row_mask:0xf bank_mask:0xf bound_ctrl:0",
                       "row_bcast:15 row_mask:0xa bank_mask:0xf", "row_bcast:31 row_mask:0xc bank_mask:0xf"):
                for r in range(2):
                    extra.append(f"v_add_f32_dpp v{R2+r}, v{R2+r}, v{R2+r} {sh}")
                extra.append("s_nop 0")
            for op in ("v_mul_f32 v{0}, 0xbfb8aa3b, v{0}", "v_exp_f32 v{0}, v{0}", "v_add_f32 v{0}, 1.0, v{0}", "v_rcp_f32 v{0}, v{0}", "v_add_f32 v{0}, 1.0, v{0}"):
                for r in range(2):
                    extra.append(op.format(R2 + r))
        if (s, kk) == (GS + 1, 2):
            R2 = GT + 4
            p(f"v_mov_b32 v{GT}, 0")
            p(f"s_lshl_b32 s{t0}, s{sL}, 7")
            p(f"s_lshl_b32 s{t1}, s{sW4}, 3")
            p(f"s_add_u32 s{t0}, s{t0}, s{t1}")
            p(f"s_add_u32 s{t0}, s{t0}, {FLG + 4*F_G}")
            p("s_mov_b32 exec_lo, 0")
            p("s_mov_b32 exec_hi, 0x80000000")
            vm.issue("G", f"buffer_store_dwordx2 v[{R2}:{R2+1}], v{GT}, {WS}, s{t0} offen sc1")
            p("s_mov_b64 exec, -1")
        if (s, kk) == (8, 2):
            vm.wait_all()
            flag_store(vPD, vPE, F_B, sW4, vm)
        if (s, kk) == (10, 1):
            p(f"v_lshrrev_b32 v{RA}, 2, v{vL}")
            p(f"v_lshlrev_b32 v{RB_}, 12, v{RA}")
            p(f"v_lshlrev_b32 v{RA}, 7, v{RA}")
            p(f"v_and_b32 v{RC}, 3, v{vL}")
            p(f"v_lshl_add_u32 v{RA}, v{RC}, 2, v{RA}")
            p(f"v_lshlrev_b32 v{RC}, 4, v{RC}")
            p(f"v_add_u32 v{RB_}, v{RB_}, v{RC}")
            p(f"s_lshl_b32 s{t0}, s{sHP}, 11")
            p(f"s_add_u32 s{t0}, s{t0}, {FLG + 4*F_B}")
            vm.issue("P", f"buffer_load_dword v{vPD}, v{RA}, {WS}, s{t0} offen sc1")
            vm.issue("P", f"buffer_load_dword v{vPE}, v{vPB}, {sr(S_DBG)}, 0 offen sc1")
        if (s, kk) == (11, 1):
            vm.wait_all()
            p(f"s_lshl_b32 s{t0}, s{sHP}, 11")
            p(f"s_add_u32 s{t0}, s{t0}, {FLG + 4*F_B}")
            loads = [(vPD, RA, S_WS, f"s{t0}", 1), (vPE, vPB, S_DBG, 0, 32)]
            ok = newlab("fbok")
            poll_check(p, loads)
            p(f"s_cbranch_vccz {ok}")
            poll_block(p, loads, "fb")
            p.label(ok)
            red_slice_base(t0, KVP)
            p(f"s_lshl_b32 s{t1}, s{sHP}, 18")
            p(f"s_add_u32 s{t0}, s{t0}, s{t1}")
            for k in range(4):
                vm.issue("R", f"buffer_load_dwordx4 {vr(RL + 4*k)}, v{RB_}, {WS}, s{t0} offen sc1")
                if k < 3: p(f"s_add_u32 s{t0}, s{t0}, 65536")
        if (s, kk) == (12, 1):
            vm.wait_all()
            for i in range(4):
                extra.append(f"v_add_f32 v{RL+i}, v{RL+i}, v{RL+4+i}")
                extra.append(f"v_add_f32 v{RL+8+i}, v{RL+8+i}, v{RL+12+i}")
            for i in range(4):
                extra.append(f"v_add_f32 v{RL+i}, v{RL+i}, v{RL+8+i}")
            for sh in ("row_shr:4", "row_shr:8"):
                for i in range(4):
                    extra.append(f"v_add_f32_dpp v{RL+i}, v{RL+i}, v{RL+i} {sh} row_mask:0xf bank_mask:0xf bound_ctrl:0")
            for sw in ("v_permlane16_swap_b32", "v_permlane32_swap_b32"):
                for i in range(4):
                    extra.append(f"v_mov_b32 v{RL+4+i}, v{RL+i}")
                for i in range(4):
                    extra.append(f"{sw} v{RL+i}, v{RL+4+i}")
                for i in range(4):
                    extra.append(f"v_add_f32 v{RL+i}, v{RL+i}, v{RL+4+i}")
        if (s, kk) == (12, 2):
            red_slice_base(t0, KVT)
            p(f"s_lshl_b32 s{t1}, s{sHP}, 12")
            p(f"s_add_u32 s{t0}, s{t0}, s{t1}")
            p("s_mov_b64 exec, 0xf000")
            vm.issue("R", f"buffer_store_dwordx4 {vr(RL)}, v{RC}, {WS}, s{t0} offen sc1")
            p("s_mov_b64 exec, -1")
        if (s, kk) == (13, 2):
            vm.wait_all()
            flag_store(vPD, vPE, F_K, sW4, vm)
        return extra
    def gemm_phases(g, vm):
        for s in range(16):
            p.seg(f"g{g}_s{s}")
            if s == 0:
                for r in reads2(0, 0, 1, g == 1):
                    p(r)
            extra = []
            for kk in range(3):
                step(g, s, kk, extra)
                extra = g1_slot(vm, s, kk) if g == 1 else []
            if not (X('ATTST') or X('CST')): stamp(p, 34 + s)
            if g == 0:
                if s == 14:
                    vm.wait_all()
                    loads = [(vPE, vPB, S_DBG, 0, 32)]
                    ok = newlab("cntok")
                    poll_check(p, loads)
                    p(f"s_cbranch_vccz {ok}")
                    poll_block(p, loads, "c0")
                    p.label(ok)
                    p("s_waitcnt lgkmcnt(0)")
                elif s == 15:
                    p("s_waitcnt lgkmcnt(0)")
                else:
                    vm.wait([("X", s + 1), ("W", s + 1)], "lgkmcnt(0)")
            else:
                if s < 2:
                    vm.wait([("X", s + 1), ("W", s + 1)], "lgkmcnt(0)")
                else:
                    p("s_waitcnt lgkmcnt(0)")
            p("s_barrier")
            stamp(p, 2 + s)
            if g == 0:
                if s + 2 < 16: dma_x(vm, s + 2)
                if s + 3 < 16: dma_w(vm, s + 3)
                if s == 13:
                    vm.issue("P", f"buffer_load_dword v{vPE}, v{vPB}, {sr(S_DBG)}, 0 offen sc1")
                if s == 15:
                    p(f"v_lshrrev_b32 v{PQ}, 2, v{vL}")
                    p(f"v_lshlrev_b32 v{PQ}, 7, v{PQ}")
                    p(f"v_and_b32 v{PQ+1}, 3, v{vL}")
                    p(f"v_lshl_add_u32 v{PQ}, v{PQ+1}, 2, v{PQ}")
                    p(f"s_lshl_b32 s{t0}, s{sHP}, 11")
                    p(f"s_add_u32 s{t0}, s{t0}, {FLG + 4*F_K}")
                    vm.issue("P", f"buffer_load_dword v{vPK}, v{PQ}, {WS}, s{t0} offen sc1")
            step(g, s, 3)
            if s == 7:
                p("s_nop 7")
                p("s_nop 3")
                qcvt()
                if g == 1:
                    bpost(vm)
                stamp(p, 20)
        p.seg(f"g{g}_tr")
        A4 = 128
        p(f"s_bfe_u32 s{t5}, s{sW}, 0x10001")
        p(f"s_and_b32 s{t6}, s{sW}, 1")
        p(f"s_lshl_b32 s{t6}, s{t6}, 12")
        p(f"s_lshl_b32 s{t5}, s{t5}, 14")
        if g == 0:
            p(f"s_sub_u32 s{t4}, s{t6}, s{t5}")
            p(f"s_add_u32 s{t0}, s{t4}, {KB[1] + 3 * 8192}")
            p(f"s_add_u32 s{t1}, s{t4}, {KB[1] + 2 * 8192}")
            p(f"s_add_u32 s{t2}, s{t4}, {KB[0] + 3 * 8192}")
            p(f"s_add_u32 s{t3}, s{t4}, {KB[0] + 2 * 8192}")
        else:
            p(f"s_sub_u32 s{t4}, s{t6}, s{t5}")
            p(f"s_add_u32 s{t0}, s{t4}, {VB_[1] + 4 * 8192}")
            p(f"s_add_u32 s{t1}, s{t4}, {VB_[1] + 3 * 8192}")
            p(f"s_add_u32 s{t2}, s{t4}, {VB_[0] + 4 * 8192}")
            p(f"s_add_u32 s{t3}, s{t4}, {VB_[0] + 3 * 8192}")
            p(f"s_add_u32 s{t7}, s{t6}, {VB_[0]}")
            p(f"s_add_u32 s{t8}, s{t6}, {VB_[1]}")
            p(f"s_cmp_eq_u32 s{t5}, 0")
            p(f"s_cselect_b32 s{t0}, s{t7}, s{t0}")
            p(f"s_cselect_b32 s{t2}, s{t8}, s{t2}")
        p(f"s_add_u32 s{t9}, s{sSTl}, 8192")
        p("s_nop 1")
        for k in range(4):
            p(f"v_add_u32 v{A4+k}, s{t0+k}, v{vST}")
        gate_addr(A4 + 5, A4 + 6, False)
        p(f"buffer_load_dword v{vG}, v{A4+5}, {WS}, s{t0} offen sc1")
        if g == 0:
            gate_addr(A4 + 5, A4 + 6, True)
            p(f"buffer_load_dword v{vPB}, v{A4+5}, {WS}, s{t0} offen sc1")
        if g == 1:
            p(f"s_lshl_b32 s{t0}, s{sW4}, 11")
            p(f"s_add_u32 s{t0}, s{t0}, {MISC}")
            p(f"v_add_u32 v{A4+4}, s{t0}, v{vST}")
            for s in range(2):
                p(f"ds_write_b128 v{A4+4}, {vr(PQ + 4*s)} offset:{s*1024}")
        for tbi in range(4):
            for cbi in range(2):
                a = ACC(tbi, cbi)
                d = a if tbi < 2 else STASH + ((tbi - 2) * 2 + cbi) * 8
                for i in range(8):
                    p(f"v_cvt_pk_bf16_f32 v{d+i}, v{a+2*i}, v{a+2*i+1}")
                for half in range(2):
                    if tbi < 2 and not X('NOST'):
                        p(f"buffer_store_dwordx4 {vr(d + half*4)}, v{vST}, {WS}, s{sSTl if tbi == 0 else t9} offen offset:{cbi*2048 + half*1024} sc1")
                    p(f"ds_write_b128 v{A4+tbi}, {vr(d + half*4)} offset:{cbi*2048 + half*1024}")
        p(f"s_branch L_apro")

    def stash_stores(which=range(4)):
        p(f"s_add_u32 s{t9}, s{sSTh}, 8192")
        for tb in range(2):
            for cbi in range(2):
                if tb * 2 + cbi not in which: continue
                d = STASH + (tb * 2 + cbi) * 8
                for half in range(2):
                    if not X('NOST'):
                        p(f"buffer_store_dwordx4 {vr(d + half*4)}, v{vST}, {WS}, s{sSTh if tb == 0 else t9} offen offset:{cbi*2048 + half*1024} sc1")

    p.seg("g0_pro")
    vm0 = VM(p)
    dma_x(vm0, 0); dma_w(vm0, 0)
    setup2()
    stamp(p, 30)
    vm0.wait([("X", 0), ("W", 0)])
    stamp(p, 31)
    p("s_barrier")
    stamp(p, 1)
    gemm_phases(0, vm0)

    p.seg("g1_pro")
    p.label("L_g1")
    vm1 = VM(p)
    dma_x(vm1, 1); dma_w(vm1, 1); dma_w(vm1, 2)
    p(f"v_and_b32 v{vT}, 31, v{vL}")
    p(f"v_lshlrev_b32 v{vT}, 2, v{vT}")
    p(f"v_mov_b32 v{vT+5}, 0")
    p(f"s_lshl_b32 s{t0}, s{sL}, 7")
    p(f"s_add_u32 s{t0}, s{t0}, {FLG}")
    p(f"s_cmp_lg_u32 s{sW}, 7")
    p("s_cbranch_scc1 L_noclr")
    p(f"buffer_store_dword v{vT+5}, v{vT}, {WS}, s{t0} offen sc1")
    p.label("L_noclr")
    setup2()
    stamp(p, 19)
    p("s_barrier")
    stamp(p, 1)
    gemm_phases(1, vm1)

    if X('LB'):
        p.seg("lb")
        p.label("L_lb")
        setup2()
        p(f"s_mul_i32 s{t0}, s{sW}, {20 * 1024}")
        for k in range(20):
            p(f"s_add_u32 m0, s{t0}, {k * 1024}")
            p(f"s_add_u32 s{t1}, s{t0}, {k * 1024}")
            p(f"buffer_load_dwordx4 v{vST}, {sr(S_CKV)}, s{t1} offen lds")
        for k in range(8):
            p(f"buffer_load_dwordx4 {vr(QR + 4 * k)}, v{vST}, {sr(S_X)}, s{t0} offen offset:{(k & 3) * 1024}")
        p(f"s_mov_b32 s{sHK}, 0")
        p(f"s_mov_b32 s{sLAST}, 14")
        p(f"s_mov_b32 s{sN}, 0")
        p(f"s_mov_b32 s{sQ4}, 3")
        p("s_waitcnt vmcnt(0)")
        p("s_barrier")
        if os.environ['LB'] == 'solo':
            p(f"s_cmp_eq_u32 s{sG}, 0")
            p("s_cbranch_scc1 L_end")
        stamp_real(p, 30)
    O = lambda d: d * 16
    S = lambda b: 64 + b * 16
    NEGM = 96
    Q = lambda kc: QR + kc * 4
    P = lambda b: 112 + b * 8
    F = lambda n: 128 + (n % 8) * 4
    T = [160, 161, 162, 163]
    LS = [164, 165, 166, 167]
    vRK, vRV, vD0, vNINF, vU = 169, 170, 171, 172, 208
    D = int(os.environ.get('DEPTH', 7))
    SM = [t0, t2, t4, t6]
    def kread(k, n):
        return f"ds_read_b128 {vr(F(n))}, v{vRK} offset:{k*8192 + n*1024}"
    def vread(k, m, ring):
        kh, d = m >> 2, m & 3
        return f"ds_read_b128 {vr(F(ring))}, v{vRV} offset:{k*8192 + (d*2+kh)*1024}"
    def fread(k, n):
        return kread(k, n) if n < 8 else vread(k, n - 8, n)
    def mqk(n, sb, first_c):
        c = first_c if n == 0 else vr(S(sb), 16)
        return f"{MF} {vr(S(sb),16)}, {vr(F(n))}, {vr(Q(n))}, {c}"
    def mpv(m, ring, pb):
        kh, d = m >> 2, m & 3
        return f"{MF} {vr(O(d),16)}, {vr(F(ring))}, {vr(P(pb)+kh*4)}, {vr(O(d),16)}"
    E0 = int(os.environ.get('E0', 9))
    CK = float(os.environ.get('CK', 1.5))
    BK_ = float(os.environ.get('BK', -2))
    def sm_ops(sb, line=False):
        L = []
        for e in range(16):
            t = T[e & 3]
            L.append((E0 + e, -1 if line else 2, f"v_exp_f32 v{t}, v{S(sb)+e}"))
            half = e >> 3
            lin, lout = LS[(2 * sb + half) & 3], LS[(2 * sb + half + 1) & 3]
            L.append((E0 + 1 + e, 0, f"v_add_f32 v{lout}, v{lin if (e & 7) == 0 else lout}, v{t}"))
            if e & 1:
                L.append((E0 + 2 + e, 1, f"v_cvt_pk_bf16_f32 v{P(sb)+(e>>1)}, v{T[(e-1)&3]}, v{t}"))
        CD = int(os.environ.get('CD', 1))
        for half, sg in ((0, E0 + 9), (1, E0 + 17)):
            L.append((sg, CK, f"v_cmp_lt_f32 vcc, s{sTHR}, v{LS[(2 * sb + half + 1) & 3]}"))
            L.append((sg + CD, BK_, "CHECK" + "ab"[half]))
        L.sort(key=lambda x: (x[0], x[1]))
        return L
    tramps = []
    def emit_op(txt, sb):
        if txt.startswith("CHECK"):
            half = 0 if txt[-1] == 'a' else 1
            k = len(tramps)
            p(f"s_cbranch_vccnz L_tr{k}")
            p.label(f"L_bk{k}")
            tramps.append((k, sb, half))
        else:
            p(txt)
    def gap_ops(n, cur, nxt, with_cur=True, with_nxt=True):
        L = []
        if with_cur: L += [(k, t, cur) for (s_, k, t) in sm_ops(cur) if s_ == n + 16]
        if with_nxt: L += [(k, t, nxt) for (s_, k, t) in sm_ops(nxt) if s_ == n]
        L.sort(key=lambda x: x[0])
        return [(t, sb) for (k, t, sb) in L]
    def mask_ops(sb, vD):
        L = []
        cs = [(r & 3) + 8 * (r >> 2) for r in range(16)]
        for r in range(16 + 3):
            if r < 16:
                m = SM[r % 4]
                L.append(f"v_cmp_le_i32 s[{m}:{m+1}], {cs[r]}, v{vD}")
            if r >= 3:
                q = r - 3
                m = SM[q % 4]
                L.append(f"v_cndmask_b32 v{S(sb)+q}, v{vNINF}, v{S(sb)+q}, s[{m}:{m+1}]")
        return L
    def dstamp(base):
        if not (STAMPS and X('ATTST')): return
        p("s_memtime s[100:101]")
        p(f"s_min_u32 s{t11}, s{sR}, 14")
        p(f"s_add_u32 m0, s{t11}, {base}")
        p("s_waitcnt lgkmcnt(0)")
        p(f"v_writelane_b32 v{vSTAMP}, s100, m0")
    def round_end(tag):
        dstamp(32)
        p("s_waitcnt vmcnt(0) lgkmcnt(0)")
        p("s_barrier")
        dstamp(47)
        p(f"v_xor_b32 v{vRK}, 0x8000, v{vRK}")
        p(f"v_xor_b32 v{vRV}, 0x38000, v{vRV}")
        p(f"s_add_u32 s{sR}, s{sR}, 1")
        skip = newlab("nohook")
        p(f"s_cmp_eq_u32 s{sHK}, 0")
        p(f"s_cbranch_scc1 {skip}")
        p(f"s_call_b64 s[{LKB}:{LKB+1}], L_hook")
        p.seg(tag + "_b")
        p.label(skip)
    RE = 12
    def iteration(k, last, tag):
        nxt, cur = k & 1, (k & 1) ^ 1
        def ahead(n):
            q = n + D
            if q < 16:
                return fread(k, q)
            q -= 16
            kn = (k + 1) & 3
            return vread(kn, q, q) if last else fread(kn, q)
        issued = D
        for n in range(16):
            if k == 3 and n == RE:
                round_end(tag)
                while issued < n + D:
                    p(ahead(issued - D)); issued += 1
            elif n % 2 == 0 and not X('NOWAIT'):
                p(f"s_waitcnt lgkmcnt({issued - (n + 2)})")
            p(mqk(n, nxt, vr(NEGM, 16)) if n < 8 else mpv(n - 8, n, cur))
            if not (k == 3 and n < RE and n + D >= 16):
                if not X('NORD'): p(ahead(n))
                issued += 1
            elif n == E0:
                p("s_nop 0")
            for t, sb in gap_ops(n, cur, nxt):
                if X('NOSM'): continue
                if X('NOCHK') and t.startswith("CHECK"): continue
                if X('NOADD') and t.startswith("v_add"): continue
                if X('NOCVT') and t.startswith("v_cvt"): continue
                if X('NOEXP') and t.startswith("v_exp"): continue
                emit_op(t, sb)
    def tail():
        cur = 1
        ops = [(s_, t) for (s_, k, t) in sm_ops(cur, True) if s_ >= 16]
        ka = [t for s_, t in ops].index("CHECKa")
        first = [t for s_, t in ops[:ka + 1]]
        rest = [t for s_, t in ops[ka + 1:]]
        for q in range(D, 8):
            p(vread(0, q, q))
        for t in first:
            emit_op(t, cur)
        fr = spread(rest, 4)
        for m in range(8):
            if m == 4: p("s_nop 1")
            p(f"s_waitcnt lgkmcnt({7 - m})")
            p(mpv(m, m, cur))
            if m < 4:
                for t in fr[m]:
                    emit_op(t, cur)
    def maxtree(sb, dst, extra=None):
        s = S(sb)
        p(f"v_max3_f32 v{dst}, v{s}, v{s+1}, v{s+2}")
        p(f"v_max3_f32 v{dst+1}, v{s+3}, v{s+4}, v{s+5}")
        p(f"v_max3_f32 v{dst}, v{dst}, v{s+6}, v{s+7}")
        p(f"v_max3_f32 v{dst+1}, v{dst+1}, v{s+8}, v{s+9}")
        p(f"v_max3_f32 v{dst}, v{dst}, v{s+10}, v{s+11}")
        p(f"v_max3_f32 v{dst+1}, v{dst+1}, v{s+12}, v{s+13}")
        p(f"v_max3_f32 v{dst}, v{dst}, v{s+14}, v{s+15}")
        if extra is not None:
            p(f"v_max3_f32 v{dst}, v{dst}, v{dst+1}, v{extra}")
        else:
            p(f"v_max_f32 v{dst}, v{dst}, v{dst+1}")
        p(f"v_mov_b32 v{dst+1}, v{dst}")
        p("s_nop 1")
        p(f"v_permlane32_swap_b32 v{dst}, v{dst+1}")
        p("s_nop 1")
        p(f"v_max_f32 v{dst}, v{dst}, v{dst+1}")

    p.seg("apro")
    p.label("L_apro")
    p(f"s_cmp_eq_u32 s{sG}, 0")
    p(f"s_cselect_b32 s{t0}, {KB[1]}, {KB[0]}")
    p(f"s_add_u32 s{t1}, s{t0}, {VB_[0]}")
    p(f"v_add_u32 v{vRK}, s{t0}, v{vST}")
    p(f"v_add_u32 v{vRV}, s{t1}, v{vST}")
    p(f"v_and_b32 v{T[0]}, 31, v{vL}")
    p(f"v_lshrrev_b32 v{T[1]}, 5, v{vL}")
    p(f"v_lshlrev_b32 v{T[1]}, 2, v{T[1]}")
    p(f"v_sub_u32 v{vD0}, v{T[0]}, v{T[1]}")
    p(f"v_mov_b32 v{vNINF}, 0xff800000")
    p(f"v_mov_b32 v{LS[0]}, 0")
    p(f"v_mov_b32 v{LS[2]}, 0")
    p(f"s_mov_b32 s{sHK2}, 0")
    if X('PRIO'):
        p(f"s_cmp_eq_u32 s{sG}, 0")
        p("s_cbranch_scc1 L_noprio")
        p(f"s_setprio {os.environ['PRIO']}")
        p.label("L_noprio")
    stamp(p, 18)
    p("s_waitcnt lgkmcnt(0)")
    p("s_barrier")
    stamp(p, 21)
    for p0 in range(1, 4):
        p(f"s_cmp_eq_u32 s{sQ4}, {3 - p0}")
        p(f"s_cbranch_scc1 L_pro{p0}")
    for p0 in range(4):
        sb = p0 & 1
        p.seg(f"pro{p0}")
        p.label(f"L_pro{p0}")
        for n in range(8):
            p(kread(p0, n))
        for n in range(8):
            p(f"s_waitcnt lgkmcnt({7 - n})")
            p(mqk(n, sb, "0"))
            for i in range(8):
                p(f"v_mov_b32 v{8*n+i}, 0")
        if p0 < 3:
            for n in range(D):
                p(fread(p0 + 1, n))
        else:
            p("s_nop 4")
        for x in mask_ops(sb, vD0):
            p(x)
        maxtree(sb, vU)
        for i in range(16):
            p(f"v_sub_f32 v{S(sb)+i}, v{S(sb)+i}, v{vU}")
        for i in range(16):
            p(f"v_sub_f32 v{NEGM+i}, 0, v{vU}")
        for s_, k, t in sm_ops(sb, True):
            if s_ < 16:
                emit_op(t, sb)
        if p0 < 3:
            p(f"s_branch L_it{p0 + 1}")
        else:
            p(f"s_cmp_eq_u32 s{sR}, s{sLAST}")
            p("s_cbranch_scc1 L_pro3L")
            round_end("pro3")
            for n in range(D):
                p(fread(0, n))
            p("s_branch L_it0")
            p.seg("pro3L")
            p.label("L_pro3L")
            round_end("pro3L")
            for n in range(D):
                p(vread(0, n, n))
            p("s_branch L_tail")
    for k in range(4):
        p.seg(f"it{k}")
        p.label(f"L_it{k}")
        if k == 3:
            p(f"s_cmp_eq_u32 s{sR}, s{sLAST}")
            p("s_cbranch_scc1 L_it3L")
        if k in (1, 2):
            p(f"s_cmp_lg_u32 s{sHK2}, 0")
            p(f"s_cbranch_scc1 L_h2c{k}")
            p.label(f"L_h2b{k}")
        iteration(k, False, f"it{k}")
    p("s_branch L_it0")
    p.seg("it3L")
    p.label("L_it3L")
    iteration(3, True, "it3L")
    p.seg("tail")
    p.label("L_tail")
    tail()
    p.seg("epi")
    stamp(p, 22)
    if X('LB'):
        stamp_real(p, 31)
        p(f"s_lshl_b32 s{t0}, s{sL}, 3")
        p(f"s_add_u32 s{t0}, s{t0}, s{sW}")
        p(f"s_lshl_b32 s{t0}, s{t0}, 8")
        p(f"s_add_u32 s{t0}, s{t0}, {DBGOFF}")
        p(f"v_lshlrev_b32 v{vU}, 2, v{vL}")
        p(f"buffer_store_dword v{vSTAMP}, v{vU}, {WS}, s{t0} offen")
        p("s_endpgm")
    vLs = LS[0]
    gate_check(vG, vU, vU + 1, False, "e")
    p(f"v_add_f32 v{vG}, -1.0, v{vG}")
    p(f"v_mov_b32 v{vU}, v{vLs}")
    p(f"s_lshl_b32 s{t0}, s{sQB}, 2")
    p(f"s_add_u32 s{t0}, s{t0}, s{sQ4}")
    p(f"v_permlane32_swap_b32 v{vLs}, v{vU}")
    p(f"s_mul_i32 s{t0}, s{t0}, 288")
    p(f"s_lshl_b32 s{t1}, s{sH}, 3")
    p(f"v_add_f32 v{vLs}, v{vLs}, v{vU}")
    p(f"s_add_u32 s{t0}, s{t0}, s{t1}")
    p(f"v_rcp_f32 v{vLs}, v{vLs}")
    p(f"s_lshl_b32 s{t0}, s{t0}, 10")
    p(f"s_add_u32 s{t0}, s{t0}, {AWS}")
    p(f"s_add_u32 s{t1}, s{t0}, 4096")
    p(f"v_mul_f32 v{vLs}, v{vLs}, v{vG}")
    p("s_nop 2")
    for d in range(4):
        for i in range(16):
            p(f"v_mul_f32 v{O(d)+i}, v{O(d)+i}, v{vLs}")
        for i in range(8):
            p(f"v_cvt_pk_bf16_f32 v{64+8*d+i}, v{O(d)+2*i}, v{O(d)+2*i+1}")
        for half in range(2):
            p(f"buffer_store_dwordx4 {vr(64+8*d+4*half)}, v{vST}, {WS}, s{t0 if d < 2 else t1} offen offset:{(d&1)*2048 + half*1024} sc1")
    if not X('NOBX'):
        p(f"s_mov_b32 s{sHK2}, 0")
        p(f"s_cmp_lt_u32 s{sR}, s{sN}")
        p("s_cbranch_scc1 L_help")
        p("s_barrier")
        p(f"s_mov_b32 s{sHK2}, 1")
    p.seg("help")
    p.label("L_help")
    p("s_waitcnt vmcnt(0)")
    p(f"s_cmp_eq_u32 s{sPEND}, 0")
    p("s_cbranch_scc1 L_hnf")
    p(f"s_lshl_b32 s{t2}, s{sG}, 2")
    p(f"s_add_u32 s{t2}, s{t2}, s{sQ4}")
    flag_store(vU, vU + 1, F_CS, t2)
    p(f"s_mov_b32 s{sPEND}, 0")
    p.label("L_hnf")
    p(f"s_cmp_ge_u32 s{sR}, s{sN}")
    p("s_cbranch_scc1 L_hx")
    p("s_barrier")
    p(f"s_add_u32 s{sR}, s{sR}, 1")
    p(f"s_call_b64 s[{LKB}:{LKB+1}], L_hook")
    p("s_branch L_help")
    p.seg("hx")
    p.label("L_hx")
    stamp(p, 23)

    p.seg("cpro")
    sRING, sA0, sA1, sWK, sBK, sVN, sVO = 64, 65, 66, 67, 68, 69, 70
    AA = lambda cb, tb: (cb * 2 + tb) * 16
    NS = 8
    AF = lambda s, tb: 128 + (s % NS) * 8 + tb * 4
    WFc = lambda s, cb: 192 + (s & 1) * 8 + cb * 4
    vWD, vR, vFA, vFD, vFO, vFE, vC = 208, 209, 213, 214, 215, 216, 217
    p(f"s_lshr_b32 s{t0}, s{sTB}, 4")
    p(f"s_and_b32 s{t1}, s{sTB}, 1")
    p(f"s_lshl_b32 s{t1}, s{t1}, 3")
    p(f"s_lshl_b32 s{t2}, s{sW}, 12")
    p(f"s_lshl_b32 s{t3}, s{sI}, 7")
    p(f"s_add_u32 s{t2}, s{t2}, s{t3}")
    p(f"s_add_u32 s{t2}, s{t2}, s{t1}")
    p(f"s_add_u32 s{t2}, s{t2}, {FLG}")
    p(f"s_lshl_b32 s{t3}, s{t0}, 4")
    p(f"s_add_u32 s{t3}, s{t3}, s{t2}")
    p(f"v_and_b32 v{vC+4}, 3, v{vL}")
    p(f"v_lshlrev_b32 v{vC}, 10, v{vC+4}")
    p(f"v_bfe_u32 v{vC+3}, v{vL}, 2, 1")
    p(f"v_lshl_add_u32 v{vC}, v{vC+3}, 2, v{vC}")
    p(f"v_add_u32 v{vFA}, s{t3}, v{vC}")
    p(f"v_add_u32 v{vFA}, {4*F_CS}, v{vFA}")
    p(f"s_lshl_b32 s{t3}, s{t0}, 10")
    p(f"s_add_u32 s{t3}, s{t3}, s{t2}")
    p(f"v_and_b32 v{vC}, 1, v{vL}")
    p(f"v_lshlrev_b32 v{vC}, 11, v{vC}")
    p(f"v_bfe_u32 v{vC+3}, v{vL}, 1, 1")
    p(f"v_lshl_add_u32 v{vC}, v{vC+3}, 2, v{vC}")
    p(f"v_add_u32 v{vFO}, s{t3}, v{vC}")
    p(f"v_add_u32 v{vFO}, {4*F_O}, v{vFO}")
    vmc = VM(p)
    vmc.issue("FO", f"buffer_load_dword v{vFE}, v{vFO}, {WS}, 0 offen sc1")
    vmc.issue("FC", f"buffer_load_dword v{vFD}, v{vFA}, {WS}, 0 offen sc1")
    p(f"s_and_b32 s{t0}, s{sN}, 1")
    p(f"s_lshl_b32 s{t0}, s{t0}, 15")
    p(f"s_add_u32 s{sVN}, s{t0}, {LWS[1] + 8192}")
    p(f"s_sub_u32 s{sVO}, {LWS[2]}, s{t0}")
    p(f"s_lshl_b32 s{t3}, s{sW4}, 14")
    p(f"s_add_u32 s{t2}, s{sVO}, s{t3}")
    p(f"s_cmp_eq_u32 s{sW}, 6")
    p(f"s_cselect_b32 s{t2}, s{sVN}, s{t2}")
    p(f"s_cmp_eq_u32 s{sW}, 7")
    p(f"s_cselect_b32 s{t2}, {MISC + 8192}, s{t2}")
    p(f"s_cmp_eq_u32 s{sG}, 0")
    p(f"s_cselect_b32 s{sRING}, s{t3}, s{t2}")
    p(f"v_lshrrev_b32 v{vC}, 3, v{vL}")
    p(f"v_lshlrev_b32 v{vC}, 10, v{vC}")
    p(f"v_bfe_u32 v{vC+1}, v{vL}, 4, 1")
    p(f"v_lshlrev_b32 v{vC+2}, 2, v{vC+1}")
    p(f"v_and_b32 v{vC+3}, 7, v{vL}")
    p(f"v_xor_b32 v{vC+3}, v{vC+3}, v{vC+2}")
    p(f"v_lshl_add_u32 v{vC}, v{vC+3}, 4, v{vC}")
    p(f"s_lshl_b32 s{t0}, s{sCB}, 7")
    p(f"v_add_u32 v{vWD}, s{t0}, v{vC}")
    p(f"s_lshl_b32 s{sWK}, s{sW}, 19")
    p(f"s_lshl_b32 s{sBK}, s{sW}, 16")
    def wload(s):
        if s >= 4:
            wb, wo_, S_ = sWK, (s - 4) * 16384, S_WO
        else:
            wb, wo_, S_ = sBK, s * 16384, S_BWO
        p(f"s_add_u32 m0, s{sRING}, {(s % NS) * 2048}")
        p(f"s_add_u32 s{t0}, s{wb}, {wo_}")
        p(f"s_add_u32 s{t1}, s{wb}, {wo_ + 8192 - 1024}")
        vmc.issue(("W", s), f"buffer_load_dwordx4 v{vWD}, {sr(S_)}, s{t0} offen lds")
        vmc.issue(("W", s), f"buffer_load_dwordx4 v{vWD}, {sr(S_)}, s{t1} offen offset:1024 lds")
    def aload(s):
        ab, ao = (sA0, (s - 4) * 1024) if s >= 4 else (sA1, s * 1024)
        p(f"s_add_u32 s{t2}, s{ab}, {ao}")
        p(f"s_add_u32 s{t3}, s{ab}, {ao + 288 * 1024}")
        vmc.issue(("A", s), f"buffer_load_dwordx4 {vr(AF(s,0))}, v{vST}, {WS}, s{t2} offen sc1")
        vmc.issue(("A", s), f"buffer_load_dwordx4 {vr(AF(s,1))}, v{vST}, {WS}, s{t3} offen sc1")
    for s in range(4):
        wload(s)
    p(f"v_lshrrev_b32 v{vC+2}, 5, v{vL}")
    p(f"v_bfe_u32 v{vC+3}, v{vL}, 2, 2")
    p(f"v_lshl_add_u32 v{vC}, v{vC+2}, 2, v{vC+3}")
    p(f"v_lshlrev_b32 v{vC}, 7, v{vC}")
    p(f"v_lshl_add_u32 v{vC}, v{vC+1}, 5, v{vC}")
    p(f"v_lshl_add_u32 v{vC}, v{vC+4}, 3, v{vC}")
    p(f"v_add_u32 v{vC}, s{sRING}, v{vC}")
    p(f"v_lshrrev_b32 v{vC+3}, 1, v{vC+3}")
    p(f"v_lshl_add_u32 v{vR}, v{vC+3}, 6, v{vC}")
    p(f"v_xor_b32 v{vC+3}, 1, v{vC+3}")
    p(f"v_lshl_add_u32 v{vR+1}, v{vC+3}, 6, v{vC}")
    p(f"s_mul_i32 s{t0}, s{sTB}, {2 * 288 * 1024}")
    p(f"s_add_u32 s{t0}, s{t0}, {AWS}")
    p(f"s_lshl_b32 s{t1}, s{sW}, 15")
    p(f"s_add_u32 s{sA0}, s{t0}, s{t1}")
    p(f"s_lshl_b32 s{t1}, s{sW}, 12")
    p(f"s_add_u32 s{sA1}, s{t0}, s{t1}")
    p(f"s_add_u32 s{sA1}, s{sA1}, {256 * 1024}")
    p.seg("cmain")
    cstamp(p, 41)
    vmc.wait(["FO", "FC"])
    loads = [(vFE, vFO, S_WS, 0, 1)]
    poll_check(p, loads)
    p("s_cbranch_vccz L_fook")
    poll_block(p, loads, "fo")
    p.label("L_fook")
    for s in range(4):
        aload(s)
    for s in range(4, NS):
        wload(s)
    if not X('NOBX'):
        p(f"s_cmp_lg_u32 s{sHK2}, 0")
        p("s_cbranch_scc1 L_nobx")
        p("s_barrier")
        p.label("L_nobx")
    cstamp(p, 42)
    loads = [(vFD, vFA, S_WS, 0, 1)]
    poll_check(p, loads)
    p("s_cbranch_vccz L_fcok")
    poll_block(p, loads, "fc")
    p.label("L_fcok")
    cstamp(p, 43)
    for s in range(4, NS):
        aload(s)
    def treads(s):
        for cb in range(2):
            o = (s % NS) * 2048
            p(f"ds_read_b64_tr_b16 v[{WFc(s,cb)}:{WFc(s,cb)+1}], v{vR+cb} offset:{o}")
            p(f"ds_read_b64_tr_b16 v[{WFc(s,cb)+2}:{WFc(s,cb)+3}], v{vR+cb} offset:{o + 1024}")
    vmc.wait([("W", 0)])
    treads(0)
    NST = 36
    for s in range(NST):
        if s + 1 < NST:
            vmc.wait([("W", s + 1), ("A", s)])
            treads(s + 1)
            p("s_waitcnt lgkmcnt(4)")
        else:
            vmc.wait([("A", s)], "lgkmcnt(0)")
        if s % 4 == 0: cstamp(p, 32 + s // 4)
        for cb in range(2):
            for tb in range(2):
                a = AA(cb, tb)
                c = "0" if s == 0 else vr(a, 16)
                p(f"{MF} {vr(a,16)}, {vr(WFc(s,cb))}, {vr(AF(s,tb))}, {c}")
        if s + NS < NST:
            wload(s + NS)
            aload(s + NS)
    stamp(p, 26)
    p(f"v_add_u32 v{vC}, s{sRING}, v{vST}")
    p(f"s_lshl_b32 s{t0}, s{sW}, 11")
    p(f"v_add_u32 v{vC+1}, s{t0}, v{vST}")
    p(f"v_add_u32 v{vC+2}, s{sVO}, v{vC+1}")
    p(f"v_add_u32 v{vC+3}, s{sVN}, v{vC+1}")
    p(f"v_add_u32 v{vC+4}, {MISC + 8192}, v{vC+1}")
    p("s_nop 2")
    for q in range(16):
        p(f"ds_write_b128 v{vC}, {vr(q*4)} offset:{q*1024}")
    p(f"s_lshr_b32 s{t0}, s{sW}, 1")
    p(f"s_and_b32 s{t1}, s{t0}, 1")
    p(f"s_lshr_b32 s{t0}, s{t0}, 1")
    p(f"s_lshl_b32 s{t2}, s{sTB}, 1")
    p(f"s_add_u32 s{t2}, s{t2}, s{t1}")
    p(f"s_lshl_b32 s{t2}, s{t2}, 15")
    p(f"s_lshl_b32 s{t3}, s{sCB}, 7")
    p(f"s_add_u32 s{t2}, s{t2}, s{t3}")
    p(f"s_lshl_b32 s{t3}, s{t0}, 6")
    p(f"s_add_u32 s{t2}, s{t2}, s{t3}")
    p(f"s_and_b32 s{t3}, s{sW}, 1")
    p(f"s_lshl_b32 s{t3}, s{t3}, 5")
    p(f"s_add_u32 s{t2}, s{t2}, s{t3}")
    p(f"v_and_b32 v{vC+5}, 31, v{vL}")
    p(f"v_lshlrev_b32 v{vC+5}, 10, v{vC+5}")
    p(f"v_lshrrev_b32 v{vC+6}, 5, v{vL}")
    p(f"v_lshl_add_u32 v{vC+5}, v{vC+6}, 4, v{vC+5}")
    p("s_waitcnt lgkmcnt(0)")
    p("s_barrier")
    for w in range(8):
        a, o = ((vC + 1, w * 16384) if w < 4 else (vC + 2, (w - 4) * 16384) if w < 6 else (vC + 3, 0) if w == 6 else (vC + 4, 0))
        for q in range(2):
            p(f"ds_read_b128 {vr(64 + w*8 + q*4)}, v{a} offset:{o + q * 1024}")
    for w in range(1, 8):
        p(f"s_waitcnt lgkmcnt({2 * (7 - w)})")
        for i in range(8):
            p(f"v_add_f32 v{64+i}, v{64+i}, v{64 + w*8 + i}")
    for i in range(4):
        p(f"v_cvt_pk_bf16_f32 v{i}, v{64+2*i}, v{65+2*i}")
    p("s_nop 1")
    p("v_permlane32_swap_b32 v0, v2")
    p("v_permlane32_swap_b32 v1, v3")
    p("s_nop 1")
    p(f"buffer_store_dwordx4 v[0:3], v{vC+5}, {sr(S_OUT)}, s{t2} offen")
    if STAMPS:
        stamp(p, 27)
        p("s_waitcnt vmcnt(0)")
        stamp(p, 28); stamp_real(p, 63)
        p(f"s_lshl_b32 s{t0}, s{sL}, 3")
        p(f"s_add_u32 s{t0}, s{t0}, s{sW}")
        p(f"s_lshl_b32 s{t0}, s{t0}, 8")
        p(f"s_add_u32 s{t0}, s{t0}, {DBGOFF}")
        p(f"v_lshlrev_b32 v{vC}, 2, v{vL}")
        p(f"buffer_store_dword v{vSTAMP}, v{vC}, {WS}, s{t0} offen")
    p.label("L_end")
    p("s_endpgm")
    def need_check(mask_sgpr, tag):
        top, ok = newlab("nd" + tag), newlab("ndok" + tag)
        p.label(top)
        p(f"v_cmp_ne_u32 vcc, 1, v{vPD}")
        p("s_nop 1")
        p(f"s_and_b32 s{t9}, vcc_lo, s{mask_sgpr}")
        p(f"s_cmp_eq_u32 s{t9}, 0")
        p(f"s_cbranch_scc1 {ok}")
        p("s_sleep 1")
        p(f"buffer_load_dword v{vPD}, v{vPA}, {WS}, 0 offen sc1")
        p("s_waitcnt vmcnt(0)")
        p(f"s_sub_u32 s{sTO}, s{sTO}, 1")
        p(f"s_cbranch_scc0 {top}")
        p(f"s_mov_b32 s{sTO}, 0")
        p.label(ok)
    def loader(tag):
        def piece(src, k):
            return f"buffer_load_dwordx4 v{vST}, {WS}, s{src} offen offset:{(k & 3) * 1024} lds"
        skipk, skipv, allok, dov = newlab("skipk"), newlab("skipv"), newlab("allok"), newlab("dov")
        p(f"s_mov_b32 s{t7}, s{sT}")
        p(f"s_sub_u32 s{sT}, s{sR}, 1")
        p(f"s_cmp_ge_u32 s{sT}, s{sI}")
        p(f"s_addc_u32 s{sT}, s{sT}, 0")
        p(f"s_add_u32 s{t8}, s{sR}, 1")
        p(f"s_cmp_ge_u32 s{t8}, s{sN}")
        p(f"s_cbranch_scc1 {skipk}")
        p(f"s_cmp_lg_u32 s{sALL}, 0")
        p(f"s_cbranch_scc1 {allok}")
        p(f"s_lshl_b32 s{t6}, 1, s{sT}")
        need_check(t6, tag)
        if tag == "i": cstamp(p, 48)
        p(f"s_sub_u32 s{t6}, s{sN}, 1")
        p(f"s_lshl_b32 s{t6}, 1, s{t6}")
        p(f"s_sub_u32 s{t6}, s{t6}, 1")
        p(f"s_and_b32 s{t9}, vcc_lo, s{t6}")
        p(f"s_cmp_eq_u32 s{t9}, 0")
        p(f"s_cselect_b32 s{sALL}, 1, 0")
        p.label(allok)
        p(f"s_lshl_b32 s{t6}, s{sT}, 15")
        p(f"s_add_u32 s{t5}, s{sKB}, s{t6}")
        p(f"s_mov_b32 m0, s{sKM}")
        p(f"s_add_u32 s{t9}, s{t5}, 4096")
        for k in range(8):
            if k == 4:
                p("s_add_u32 m0, m0, 4096"); p("s_nop 0")
            p(piece(t5 if k < 4 else t9, k))
        p.label(skipk)
        p(f"s_cmp_lg_u32 s{sW4}, 0")
        p(f"s_cselect_b32 s{t6}, s{sT}, s{t7}")
        p(f"s_cselect_b32 s{t9}, 1, 0")
        p(f"s_cselect_b32 s{t5}, 99, s{t8}")
        p(f"s_add_u32 s{t9}, s{t8}, s{t9}")
        p(f"s_cmp_gt_u32 s{t9}, s{sN}")
        p(f"s_cbranch_scc1 {skipv}")
        p(f"s_cmp_lt_u32 s{t5}, 3")
        p(f"s_cbranch_scc1 {skipv}")
        p(f"s_lshl_b32 s{t6}, s{t6}, 15")
        p(f"s_add_u32 s{t5}, s{sVB}, s{t6}")
        p(f"s_mov_b32 m0, s{sVM}")
        p(f"s_add_u32 s{t9}, s{t5}, 4096")
        for k in range(8):
            if k == 4:
                p("s_add_u32 m0, m0, 4096"); p("s_nop 0")
            p(piece(t5 if k < 4 else t9, k))
        p.label(skipv)
        p(f"s_xor_b32 s{sKM}, s{sKM}, 0x8000")
        p(f"s_xor_b32 s{sVM}, s{sVM}, 0x38000")
        nop = newlab("nopoll")
        p(f"s_cmp_lg_u32 s{sALL}, 0")
        p(f"s_cbranch_scc1 {nop}")
        p(f"buffer_load_dword v{vPD}, v{vPA}, {WS}, 0 offen sc1")
        p.label(nop)
    p.seg("hook")
    p.label("L_hook")
    p(f"s_cmp_lg_u32 s{sG}, 0")
    p("s_cbranch_scc1 L_hook1")
    p(f"s_cmp_lg_u32 s{sR}, 1")
    p("s_cbranch_scc1 L_hookld")
    p.seg("idle")
    stamp(p, 24)
    KV, XA, va, vb, vc, vn, vgo = 128, NEGM, 173, 174, 175, vPE, vPB
    p(f"s_cmp_lg_u32 s{sW}, 0")
    p("s_cbranch_scc1 L_nolo")
    flag_store(va, vb, F_LO)
    p.label("L_nolo")
    p(f"v_cmp_ne_u32 vcc, 1, v{vPK}")
    p(f"s_lshl_b32 s{t0}, s{sW4}, 11")
    p(f"s_add_u32 s{t0}, s{t0}, {MISC}")
    p(f"v_add_u32 v{vc}, s{t0}, v{vST}")
    p("s_cbranch_vccz L_fkok")
    p(f"v_lshrrev_b32 v{va}, 2, v{vL}")
    p(f"v_lshlrev_b32 v{va}, 7, v{va}")
    p(f"v_and_b32 v{vb}, 3, v{vL}")
    p(f"v_lshl_add_u32 v{va}, v{vb}, 2, v{va}")
    p(f"s_lshl_b32 s{t0}, s{sHP}, 11")
    p(f"s_add_u32 s{t0}, s{t0}, {FLG + 4*F_K}")
    poll_block(p, [(vPK, va, S_WS, f"s{t0}", 1)], "fk")
    p.label("L_fkok")
    p(f"s_lshl_b32 s{t0}, s{sHP}, 12")
    p(f"s_add_u32 s{t0}, s{t0}, {KVT}")
    for q in range(4):
        p(f"buffer_load_dwordx4 {vr(KV + q*4)}, v{vST}, {WS}, s{t0} offen offset:{q*1024} sc1")
    p(f"buffer_load_dword v{vPD}, v{vPA}, {WS}, 0 offen sc1")
    for s in range(2):
        p(f"ds_read_b128 {vr(PQ + 4*s)}, v{vc} offset:{s*1024}")
    p(f"v_mov_b32 v{vn}, v{NEGM}")
    cstamp(p, 44)
    p("s_waitcnt vmcnt(0) lgkmcnt(0)")
    cstamp(p, 45)
    loader("i")
    cstamp(p, 49)
    gate_check(vgo, va, vb, True, "o")
    p(f"v_and_b32 v{va}, 16, v{vL}")
    p(f"v_cmp_ne_u32 vcc, 0, v{va}")
    for i in range(8):
        p(f"v_cvt_pk_bf16_f32 v{XA+i}, v{KV+2*i}, v{KV+2*i+1}")
    for i in range(8):
        p(f"v_cndmask_b32 v{KV+i}, v{XA+i}, 0, vcc")
    for i in range(8):
        p(f"v_cndmask_b32 v{KV+8+i}, 0, v{XA+i}, vcc")
    p("s_nop 1")
    p(f"{MF} {vr(XA,16)}, {vr(KV+4)}, {vr(PQ)}, 0")
    p(f"{MF} {vr(XA,16)}, {vr(KV+12)}, {vr(PQ+4)}, {vr(XA,16)}")
    p(f"s_lshl_b32 s{t0}, s{sRB}, 2")
    p(f"s_add_u32 s{t0}, s{t0}, s{sW4}")
    p(f"s_mul_i32 s{t0}, s{t0}, 288")
    p(f"s_lshl_b32 s{t1}, s{sHP}, 1")
    p(f"s_add_u32 s{t0}, s{t0}, s{t1}")
    p(f"s_add_u32 s{t0}, s{t0}, 256")
    p(f"s_lshl_b32 s{t0}, s{t0}, 10")
    p(f"s_add_u32 s{t0}, s{t0}, {AWS}")
    p("s_nop 7")
    p(f"v_add_f32 v{va}, 0x358637bd, v{XA}")
    p(f"v_add_f32 v{vb}, 0x358637bd, v{XA+8}")
    p(f"{MF} {vr(XA,16)}, {vr(KV)}, {vr(PQ)}, 0")
    p(f"{MF} {vr(XA,16)}, {vr(KV+8)}, {vr(PQ+4)}, {vr(XA,16)}")
    p(f"v_rcp_f32 v{va}, v{va}")
    p(f"v_rcp_f32 v{vb}, v{vb}")
    p(f"v_sub_f32 v{vgo}, 2.0, v{vgo}")
    p(f"v_mul_f32 v{va}, v{va}, v{vgo}")
    p(f"v_mul_f32 v{vb}, v{vb}, v{vgo}")
    p("s_nop 8")
    for i in range(16):
        p(f"v_mul_f32 v{XA+i}, v{XA+i}, v{va if i < 8 else vb}")
    for i in range(8):
        p(f"v_cvt_pk_bf16_f32 v{KV+i}, v{XA+2*i}, v{XA+1+2*i}")
    for s in range(2):
        p(f"buffer_store_dwordx4 {vr(KV + 4*s)}, v{vST}, {WS}, s{t0} offen offset:{s*1024} sc1")
    for i in range(16):
        p(f"v_mov_b32 v{NEGM+i}, v{vn}")
    cstamp(p, 50)
    p("s_waitcnt vmcnt(2)")
    stamp(p, 25)
    p("s_barrier")
    p(f"s_mov_b32 s{sR}, 2")
    loader("j")
    stash_stores()
    p(f"s_setpc_b64 s[{LKB}:{LKB+1}]")
    p.seg("hookld")
    p.label("L_hookld")
    p(f"s_cmp_lg_u32 s{sR}, 3")
    p("s_cbranch_scc1 L_nohi")
    flag_store(va, vb, F_O, sW4)
    p(f"s_cmp_lg_u32 s{sW}, 0")
    p("s_cbranch_scc1 L_nohi")
    flag_store(va, vb, F_HI)
    p.label("L_nohi")
    loader("r")
    if not X('NOPF'):
        p(f"s_add_u32 s{t0}, s{sR}, {PFD}")
        p(f"s_cmp_lg_u32 s{t0}, s{sN}")
        p("s_cbranch_scc1 L_nopf")
        p(f"s_lshl_b32 s{t0}, s{sCB}, 7")
        p(f"v_lshlrev_b32 v{vc}, 10, v{vL}")
        p(f"v_add_u32 v{vc}, s{t0}, v{vc}")
        p(f"s_lshl_b32 s{t0}, s{sI}, 19")
        p(f"s_lshl_b32 s{t1}, s{sW4}, 17")
        p(f"s_add_u32 s{t0}, s{t0}, s{t1}")
        p(f"s_add_u32 s{t1}, s{t0}, 65536")
        p(f"buffer_load_dword v{va}, v{vc}, {sr(S_WO)}, s{t0} offen")
        p(f"buffer_load_dword v{vb}, v{vc}, {sr(S_WO)}, s{t1} offen")
        p(f"s_cmp_lg_u32 s{sW4}, 3")
        p("s_cbranch_scc1 L_nopf")
        p(f"s_lshl_b32 s{t0}, s{sI}, 16")
        p(f"buffer_load_dword v{vn}, v{vc}, {sr(S_BWO)}, s{t0} offen")
        p.label("L_nopf")
    p(f"s_setpc_b64 s[{LKB}:{LKB+1}]")
    p.seg("hook1")
    p.label("L_hook1")
    p(f"s_mov_b32 s{sHK2}, 4")
    p(f"s_mov_b32 s{sHK}, 0")
    p(f"s_setpc_b64 s[{LKB}:{LKB+1}]")
    for k in (1, 2):
        p.seg(f"h2c{k}")
        p.label(f"L_h2c{k}")
        p(f"s_sub_u32 s{sHK2}, s{sHK2}, 1")
        p(f"s_cmp_lt_u32 s{sHK2}, 2")
        p(f"s_cbranch_scc1 L_h2d{k}")
        stash_stores([k - 1])
        p(f"s_branch L_h2b{k}")
        p.label(f"L_h2d{k}")
        stash_stores([k + 1])
        p(f"s_branch L_h2b{k}")
    p.seg("tramps")
    for k, sb, half in tramps:
        p.label(f"L_tr{k}")
        p(f"s_call_b64 s[{LKA}:{LKA+1}], L_rare{sb}{half}")
        p(f"s_branch L_bk{k}")
    for sb in range(2):
        for half in range(2):
            p.seg(f"rare{sb}{half}")
            p.label(f"L_rare{sb}{half}")
            lin = LS[(2 * sb + half) & 3]
            p(f"v_log_f32 v{vU+4}, v{lin}")
            p("s_nop 15")
            p("s_nop 7")
            maxtree(sb, vU + 2, vU + 4)
            p(f"v_max_f32 v{vU+2}, 0, v{vU+2}")
            p(f"v_exp_f32 v{vU+3}, -v{vU+2}")
            for i in range(32):
                p(f"v_sub_f32 v{S(0)+i}, v{S(0)+i}, v{vU+2}")
            for i in range(16):
                p(f"v_sub_f32 v{NEGM+i}, v{NEGM+i}, v{vU+2}")
            for i in range(64):
                p(f"v_mul_f32 v{i}, v{i}, v{vU+3}")
            p(f"v_mul_f32 v{lin}, v{lin}, v{vU+3}")
            seq = []
            for n in range(E0, 32):
                seq += gap_ops(n, None, sb, with_cur=False) if n < 16 else gap_ops(n - 16, sb, sb ^ 1)
            chk = "CHECK" + "ab"[half]
            for t, b in seq:
                if t == chk and b == sb: break
                if t.startswith("CHECK") or t.startswith("v_cmp"): continue
                if half == 1 and b == sb and t.startswith("v_add_f32") and f"v_add_f32 v{lin}," in t:
                    continue
                p(t)
                if t.startswith("v_exp"): p("s_nop 0")
            p("s_nop 1")
            p(f"s_setpc_b64 s[{LKA}:{LKA+1}]")
    errs = []
    G0 = ["pro", "g0_pro"] + [f"g0_s{s}" for s in range(16)] + ["g0_tr", "apro"]
    G1 = ["pro", "g1_pro"] + [f"g1_s{s}" for s in range(16)] + ["g1_tr", "apro"]
    post = ["tail", "epi", "help", "hook", "hookld", "help", "hx", "cpro", "cmain"]
    H0 = ["hook", "idle"]
    errs += p.check(G0 + ["pro3", "pro3L"] + H0 + ["pro3L_b"] + post)
    errs += p.check(G1 + ["pro0", "it1", "it2", "it3", "hook", "hook1", "it3_b", "it0", "it1", "it2", "it3L", "it3L_b"] + post)
    errs += p.check(["apro", "pro1", "it2", "it3"] + H0 + ["it3_b", "it0", "it1", "it2", "it3", "hook", "hookld", "it3_b", "it0"])
    errs += p.check(["apro", "pro2", "it3L"] + H0 + ["it3L_b", "tail", "epi"])
    errs += p.check(["apro", "pro3"] + H0 + ["pro3_b", "it0", "it1"])
    for sb in range(2):
        for half in range(2):
            errs += p.check([f"rare{sb}{half}", "it0"][:1])
    return p, errs


def main():
    global STAMPS
    if '--stamps' in sys.argv:
        STAMPS = True; sys.argv.remove('--stamps')
    hdr = open(f'cdna_kernels/{NAME}.s.ref').read().split("; Override launch")[0]
    p, errs = gen()
    for e in errs:
        print("HAZARD", e)
    n = "fused_kernel"
    out = [hdr, f"; @launch kernel={n} grid=(256,1,1) block=(512,1,1) lds=163840\n",
           '.amdgcn_target "amdgcn-amd-amdhsa--gfx950"\n.text\n',
           f".globl {n}\n.p2align 8\n.type {n},@function\n{n}:\n", p.text(),
           '.section .rodata,"a"\n', f""".p2align 6
.amdhsa_kernel {n}
  .amdhsa_next_free_vgpr 256
  .amdhsa_next_free_sgpr 102
  .amdhsa_accum_offset 256
  .amdhsa_group_segment_fixed_size 0
  .amdhsa_kernarg_size 104
  .amdhsa_user_sgpr_count 2
  .amdhsa_user_sgpr_kernarg_segment_ptr 1
  .amdhsa_system_sgpr_workgroup_id_x 1
.end_amdhsa_kernel
"""]
    dst = sys.argv[1] if len(sys.argv) > 1 else f'cdna_kernels/{NAME}.s'
    open(dst, 'w').write("".join(out))
    print("wrote", dst, "errs", len(errs))

if __name__ == '__main__':
    main()
```

```python
import sys, os
from asmlib import Prog

NAME = 'gated_mix__compressed_kv_cla__linear_attn_block__prompt'
KWS, VWS, AWS = 0, 16 << 20, 32 << 20
KVP, KVT, GW, FLG = 52 << 20, 56 << 20, 57 << 20, 58 << 20
DBGOFF = 60 << 20
WS_BYTES = 64 << 20
LOG2E = 0x3fb8aa3b
MF = "v_mfma_f32_32x32x16_bf16"
X = lambda k: bool(os.environ.get(k))
STAMPS = False

def vr(b, n=4):
    return f"v[{b}:{b+n-1}]"
def sr(b):
    return f"s[{b}:{b+3}]"

P_X, P_CKV, P_WQ, P_WUK, P_WUV, P_WO, P_BX, P_WQKV, P_BWO, P_GATE, P_OUT, P_DBG, P_WS = [64 + 2 * i for i in range(13)]
S_CKV, S_WUK, S_WUV, S_X, S_WQ, S_WQKV, S_WS, S_WO, S_BWO, S_OUT, S_GATE, S_DBG = [4 + 4 * i for i in range(12)]
WS = sr(S_WS)
sH, sI, sW, sG, sW4, sHP, sL, sN, sRB, sTO = range(90, 100)
t0, t1, t2, t3, t4, t5, t6, t7, t8, t9, t10, t11 = range(52, 64)
vSTAMP, vL, vST = 255, 254, 253
F_LO, F_HI, F_B, F_K, F_CS, F_CL, F_O = 0, 1, 4, 20, 8, 12, 16
LXS = [0, 32768]
LWS = [65536, 98304, 131072]
MISC = 65536
TIMEOUT = 1 << 18
GS = int(os.environ.get('GS', 4))
PFD = int(os.environ.get('PFD', 6))
FL2 = FLG + 32768
UR = int(os.environ.get('UR', 2))
FLAG0 = int(os.environ.get('FLAG0', 10))
HS = int(os.environ.get('HS', 2))
TRS = int(os.environ.get('TRS', 6))
need_check_fn = [None]


class VM:
    def __init__(self, p):
        self.p, self.q = p, []
    def issue(self, tag, text, cond=False):
        self.p(text)
        if not cond:
            self.q += [tag] * len(text.strip().split("\n"))
    def count_after(self, tags):
        idx = [k for k, t in enumerate(self.q) if t in tags]
        if not idx:
            return None
        return len(self.q) - 1 - max(idx)
    def wait(self, tags, extra=""):
        n = self.count_after(tags)
        if n is None:
            if extra: self.p(f"s_waitcnt {extra}")
            return
        assert n <= 63, n
        self.p(f"s_waitcnt vmcnt({n}) {extra}".rstrip())
        self.q = self.q[len(self.q) - n:] if n else []
    def wait_all(self, extra=""):
        self.p(f"s_waitcnt vmcnt(0) {extra}".rstrip()); self.q = []


REALS = {1: 56, 9: 57, 17: 58, 23: 59, 26: 60}
def stamp(p, idx):
    if not STAMPS: return
    p("s_memtime s[100:101]")
    p("s_waitcnt lgkmcnt(0)")
    p(f"v_writelane_b32 v{vSTAMP}, s100, {idx}")
    if idx in REALS and X('CST'): stamp_real(p, REALS[idx])
def cstamp(p, idx):
    if X('CST'): stamp(p, idx)
def stamp_real(p, idx):
    if not STAMPS: return
    p("s_memrealtime s[100:101]")
    p("s_waitcnt lgkmcnt(0)")
    p(f"v_writelane_b32 v{vSTAMP}, s100, {idx}")

def srd(p, s, lo, nbytes):
    p(f"s_mov_b32 s{s}, s{lo}")
    p(f"s_and_b32 s{s+1}, s{lo+1}, 0xffff")
    p(f"s_mov_b32 s{s+2}, {nbytes}")
    p(f"s_mov_b32 s{s+3}, 0x20000")

def spread(fill, nslots):
    out = [[] for _ in range(nslots)]
    k = len(fill); fi = 0
    for i in range(nslots):
        tgt = (k * (i + 1) + nslots - 1) // nslots
        while fi < tgt:
            out[i].append(fill[fi]); fi += 1
    return out

_lab = [0]
def newlab(s):
    _lab[0] += 1
    return f"L_{s}_{_lab[0]}"

def poll_block(p, loads, tag):
    top, done = newlab("poll" + tag), newlab("pdone" + tag)
    p.label(top)
    for vd, va, s, so, e in loads:
        p(f"buffer_load_dword v{vd}, v{va}, {sr(s)}, {so} offen sc1")
    p("s_waitcnt vmcnt(0)")
    poll_check(p, loads)
    p(f"s_cbranch_vccz {done}")
    p("s_sleep 4")
    p(f"s_sub_u32 s{sTO}, s{sTO}, 1")
    p(f"s_cbranch_scc0 {top}")
    p(f"s_mov_b32 s{sTO}, 0")
    p.label(done)

def poll_check(p, loads):
    for k, (vd, va, s, so, e) in enumerate(loads):
        if k == 0:
            p(f"v_cmp_ne_u32 vcc, {e}, v{vd}")
        else:
            p(f"v_cmp_ne_u32 s[{t10}:{t11}], {e}, v{vd}")
            p("s_nop 0")
            p(f"s_or_b64 vcc, vcc, s[{t10}:{t11}]")
    p("s_nop 1")


def gen():
    p = Prog()
    vXD, vWA, vWB2, vXR2, vXB, vWQ, vXR, vWR = 208, 212, 214, 160, 164, 168, 240, 244
    AOFF = 56
    vPA, vPB, vPD, vPE, vPK = 248, 249, 250, 251, 252
    vT = 184
    vG, GX, GW_, GT = 168, 192, 200, 204
    F_G = 24
    (sXb, sXc, sWa, sWb, sM4, sSTl, sSTh, sTB, sCB, sKB, sVB, sKM, sVM, sR, sLAST, sQB, sQ4, sPEND, sT, sTHR,
     sHK, sALL) = range(64, 86)
    sHK2 = 3
    sBX, sOUT, sCX, sFH, sR1, sRO, sJOB = 2, 64, 65, 66, 67, 68, 85
    LKA, LKB = 86, 88
    KB = [0, 32768]
    VB_ = [LWS[1], LWS[2]]
    p.seg("pro")
    p("s_cmp_ge_u32 s2, 256")
    p("s_cbranch_scc1 L_end")
    if STAMPS: p(f"v_mov_b32 v{vSTAMP}, 0")
    stamp(p, 0); stamp_real(p, 62)
    p("s_load_dwordx16 s[64:79], s[0:1], 0")
    p("s_load_dwordx8 s[80:87], s[0:1], 64")
    p("s_load_dwordx2 s[88:89], s[0:1], 96")
    p(f"v_and_b32 v{vL}, 63, v0")
    p(f"v_lshrrev_b32 v{vT}, 6, v0")
    p(f"s_and_b32 s{t0}, s2, 7")
    p(f"s_lshr_b32 s{t1}, s2, 3")
    p(f"v_readfirstlane_b32 s{sW}, v{vT}")
    p(f"s_lshl_b32 s{sH}, s{t0}, 2")
    p(f"s_and_b32 s{t2}, s{t1}, 3")
    p(f"s_add_u32 s{sH}, s{sH}, s{t2}")
    p(f"s_lshr_b32 s{sI}, s{t1}, 2")
    p(f"s_lshr_b32 s{sG}, s{sW}, 2")
    p(f"s_and_b32 s{sW4}, s{sW}, 3")
    p(f"s_lshr_b32 s{sHP}, s{sH}, 1")
    p(f"s_lshl_b32 s{sL}, s{sH}, 3")
    p(f"s_add_u32 s{sL}, s{sL}, s{sI}")
    p(f"s_sub_u32 s{sN}, 16, s{sI}")
    p(f"s_sub_u32 s{t3}, 15, s{sI}")
    p(f"s_and_b32 s{t4}, s{sH}, 1")
    p(f"s_cmp_eq_u32 s{t4}, 0")
    p(f"s_cselect_b32 s{sRB}, s{sI}, s{t3}")
    p(f"s_mov_b32 s{sTO}, {TIMEOUT}")
    p(f"s_sub_u32 s{t10}, 3, s{sW4}")
    p(f"s_cmp_eq_u32 s{sG}, 0")
    p(f"s_cselect_b32 s{t10}, s{sW4}, s{t10}")
    p(f"v_lshlrev_b32 v{vST}, 4, v{vL}")
    l4, hi, r4 = vT + 1, vT + 2, vT + 3
    p(f"v_lshrrev_b32 v{l4}, 4, v{vL}")
    p(f"v_lshrrev_b32 v{hi}, 5, v{vL}")
    p(f"v_bfe_u32 v{r4}, v{vL}, 2, 2")
    p(f"v_lshrrev_b32 v{vT}, 3, v{vL}")
    p(f"v_lshlrev_b32 v{vT}, 10, v{vT}")
    p(f"v_and_b32 v{vT+5}, 7, v{vL}")
    p(f"v_xor_b32 v{vT+5}, v{vT+5}, v{l4}")
    p(f"v_lshlrev_b32 v{vT+5}, 4, v{vT+5}")
    p(f"v_xor_b32 v{vT+6}, 64, v{vT+5}")
    p(f"v_add_u32 v{vXD}, v{vT}, v{vT+5}")
    p(f"v_add_u32 v{vXD+1}, v{vT}, v{vT+6}")
    p(f"v_add_u32 v{vXD+1}, 7168, v{vXD+1}")
    p(f"v_add_u32 v{vXD+2}, {2*7168}, v{vXD}")
    p(f"v_add_u32 v{vXD+3}, {2*7168}, v{vXD+1}")
    p(f"s_lshl_b32 s{t5}, s{sH}, 8")
    p(f"v_lshlrev_b32 v{vT}, 13, v{l4}")
    p(f"v_add_u32 v{vT}, s{t5}, v{vT}")
    p(f"v_and_b32 v{vT+5}, 15, v{vL}")
    p(f"v_lshlrev_b32 v{vT+6}, 2, v{l4}")
    p(f"v_xor_b32 v{vT+5}, v{vT+5}, v{vT+6}")
    p(f"v_lshl_add_u32 v{vWA}, v{vT+5}, 4, v{vT}")
    p(f"v_add_u32 v{vWA+1}, {4*8192 - 1024}, v{vWA}")
    p(f"v_mul_u32_u24 v{vT}, 3072, v{l4}")
    p(f"v_lshrrev_b32 v{vT+6}, 2, v{vT+5}")
    p(f"v_min_u32 v{vT+6}, 2, v{vT+6}")
    p(f"v_lshl_add_u32 v{vT}, v{vT+6}, 10, v{vT}")
    p(f"v_and_b32 v{vT+6}, 3, v{vT+5}")
    p(f"v_lshl_add_u32 v{vT}, v{vT+6}, 4, v{vT}")
    p(f"s_lshl_b32 s{t5}, s{sHP}, 6")
    p(f"v_add_u32 v{vWB2}, s{t5}, v{vT}")
    p(f"v_add_u32 v{vWB2+1}, {4*3072 - 1024}, v{vWB2}")
    p(f"v_bfe_u32 v{vT}, v{vL}, 2, 2")
    p(f"v_xor_b32 v{vT}, v{vT}, v{l4}")
    p(f"v_cmp_ne_u32 s[2:3], 3, v{vT}")
    p("s_waitcnt lgkmcnt(0)")
    stamp(p, 29)
    srd(p, S_X, P_X, 2 << 20)
    srd(p, S_WQ, P_WQ, 4 << 20)
    srd(p, S_WQKV, P_WQKV, 512 * 1536 * 2)
    srd(p, S_CKV, P_CKV, 2 << 20)
    srd(p, S_WUK, P_WUK, 4 << 20)
    srd(p, S_WUV, P_WUV, 4 << 20)
    srd(p, S_WS, P_WS, WS_BYTES)
    srd(p, S_WO, P_WO, 4 << 20)
    srd(p, S_BWO, P_BWO, 512 * 1024)
    srd(p, S_OUT, P_OUT, 2 << 20)
    srd(p, S_GATE, P_GATE, 1024)
    srd(p, S_DBG, P_DBG, 256)
    p(f"s_mov_b32 s{sQ4}, s{t10}")
    p(f"s_lshl_b32 s{t5}, s{sW4}, 15")
    p(f"s_lshl_b32 s{sXb}, s{sI}, 17")
    p(f"s_add_u32 s{sXb}, s{sXb}, s{t5}")
    p(f"s_lshl_b32 s{sXc}, s{t3}, 17")
    p(f"s_add_u32 s{sXc}, s{sXc}, s{t5}")
    p(f"s_lshl_b32 s{sWa}, s{sW4}, 16")
    p(f"s_mul_i32 s{sWb}, s{sW4}, {8*3072}")
    p(f"s_lshl_b32 s{sM4}, s{sW4}, 12")
    ROT = int(os.environ.get('ROT', 3))
    sROT = 0
    p(f"s_and_b32 s{sROT}, s{sH}, 3")
    p(f"s_lshl_b32 s{sROT}, s{sROT}, 1")
    if ROT == 0: p(f"s_mov_b32 s{sROT}, 0")
    if ROT == 1: p(f"s_mov_b32 s{sROT}, s{sI}")
    if ROT == 3: p(f"s_add_u32 s{sROT}, s{sROT}, s{sI}")
    NC = int(os.environ.get('NC', 2))
    sRO6 = 1
    p(f"s_and_b32 s{sRO6}, s{sROT}, 7")
    if NC:
        p(f"s_sub_u32 s{t0}, s{sRO6}, {8 - NC}")
        p(f"s_cmp_ge_u32 s{sRO6}, {8 - NC}")
        p(f"s_cselect_b32 s{sRO6}, s{t0}, s{sRO6}")
    def chunk(dst, s):
        if s >= 8 or NC == 0:
            p(f"s_add_u32 s{dst}, s{sROT}, {s}")
            p(f"s_and_b32 s{dst}, s{dst}, 7")
        elif s < NC:
            p(f"s_mov_b32 s{dst}, {s}")
        else:
            p(f"s_add_u32 s{dst}, s{sRO6}, {s}")
            p(f"s_sub_u32 s{t0}, s{dst}, {8 - NC}")
            p(f"s_cmp_ge_u32 s{dst}, 8")
            p(f"s_cselect_b32 s{dst}, s{t0}, s{dst}")
    if X('LB'): p("s_branch L_lb")
    p(f"s_cmp_lg_u32 s{sG}, 0")
    p("s_cbranch_scc1 L_g1")

    def setup2():
        p(f"s_sub_u32 s{t3}, 15, s{sI}")
        p(f"s_and_b32 s{t4}, s{sH}, 1")
        p(f"s_lshr_b32 s{t5}, s{sW}, 1")
        p(f"s_and_b32 s{t5}, s{t5}, 1")
        p(f"s_lshl_b32 s{t6}, s{t5}, 13")
        p(f"s_lshl_b32 s{t7}, s{sG}, 2")
        p(f"s_add_u32 s{t7}, s{t7}, s{sQ4}")
        p(f"s_lshl_b32 s{t7}, s{t7}, 12")
        p(f"s_lshl_b32 s{t8}, s{t4}, 2")
        p(f"s_add_u32 s{t8}, s{t8}, s{sW4}")
        p(f"s_lshl_b32 s{t8}, s{t8}, 12")
        p(f"v_and_b32 v{vT}, 31, v{vL}")
        p(f"v_lshlrev_b32 v{vT}, 7, v{vT}")
        p(f"v_bfe_u32 v{vT+5}, v{vL}, 1, 3")
        p(f"v_xor_b32 v{vT+5}, v{vT+5}, v{hi}")
        p(f"v_lshlrev_b32 v{vT+5}, 4, v{vT+5}")
        for kk in range(4):
            p(f"v_xor_b32 v{vT+6}, {kk*32}, v{vT+5}")
            p(f"v_add_u32 v{vT+6}, v{vT}, v{vT+6}")
            p(f"v_add_u32 v{vXR+kk}, s{t6}, v{vT+6}")
            p(f"v_add_u32 v{vXR2+AOFF+kk}, s{t7}, v{vT+6}")
            p(f"v_add_u32 v{vXB+AOFF+kk}, s{t8}, v{vT+6}")
        p(f"v_lshlrev_b32 v{vT}, 12, v{hi}")
        p(f"v_lshl_add_u32 v{vT}, v{r4}, 8, v{vT}")
        p(f"v_and_b32 v{vT+5}, 1, v{l4}")
        p(f"v_lshl_add_u32 v{vT}, v{vT+5}, 5, v{vT}")
        p(f"v_and_b32 v{vT+5}, 3, v{vL}")
        p(f"v_lshl_add_u32 v{vT}, v{vT+5}, 3, v{vT}")
        p(f"v_add_u32 v{vT}, 0x10000, v{vT}")
        for d in range(4):
            p(f"v_xor_b32 v{vT+5}, {d}, v{r4}")
            p(f"v_lshl_add_u32 v{vWQ+AOFF+d}, v{vT+5}, 6, v{vT}")
            p(f"v_add_u32 v{vWQ+AOFF+4+d}, 0x10000, v{vWQ+AOFF+d}")
        p(f"s_and_b32 s{t6}, s{sW}, 1")
        p(f"s_lshl_b32 s{t7}, s{t6}, 1")
        p(f"s_lshl_b32 s{t8}, s{sG}, 11")
        p(f"v_add_u32 v{vT}, s{t8}, v{vT}")
        p(f"v_xor_b32 v{vT+5}, s{t7}, v{r4}")
        p(f"v_lshl_add_u32 v{vWR}, v{vT+5}, 6, v{vT}")
        p(f"v_xor_b32 v{vT+5}, 1, v{vT+5}")
        p(f"v_lshl_add_u32 v{vWR+1}, v{vT+5}, 6, v{vT}")
        p(f"v_add_u32 v{vWR+2}, 0x10000, v{vWR}")
        p(f"v_add_u32 v{vWR+3}, 0x10000, v{vWR+1}")
        p(f"s_lshl_b32 s{t9}, s{sH}, 19")
        p(f"s_lshl_b32 s{t7}, s{t5}, 14")
        p(f"s_add_u32 s{t9}, s{t9}, s{t7}")
        p(f"s_lshl_b32 s{t7}, s{t6}, 12")
        p(f"s_add_u32 s{t9}, s{t9}, s{t7}")
        p(f"s_lshl_b32 s{t7}, s{sG}, 24")
        p(f"s_add_u32 s{t9}, s{t9}, s{t7}")
        p(f"s_lshl_b32 s{t7}, s{sI}, 15")
        p(f"s_add_u32 s{sSTl}, s{t9}, s{t7}")
        p(f"s_lshl_b32 s{t7}, s{t3}, 15")
        p(f"s_add_u32 s{sSTh}, s{t9}, s{t7}")
        p(f"s_lshr_b32 s{sTB}, s{sH}, 3")
        p(f"s_and_b32 s{sCB}, s{sH}, 7")
        p(f"v_and_b32 v{vT}, 7, v{vL}")
        p(f"v_lshlrev_b32 v{vPB}, 5, v{vT}")
        p(f"v_lshrrev_b32 v{vT+5}, 3, v{vL}")
        p(f"v_lshlrev_b32 v{vT+5}, 7, v{vT+5}")
        p(f"v_lshl_add_u32 v{vT+5}, v{vT}, 2, v{vT+5}")
        p(f"s_lshl_b32 s{t0}, s{sH}, 10")
        p(f"s_add_u32 s{t0}, s{t0}, {FL2}")
        p(f"v_add_u32 v{vPA}, s{t0}, v{vT+5}")
        p(f"s_lshl_b32 s{t0}, s{sW4}, 13")
        p(f"s_lshl_b32 s{t1}, s{sH}, 19")
        p(f"s_sub_u32 s{sKB}, {3 * 8192}, s{t0}")
        p(f"s_add_u32 s{sKB}, s{sKB}, s{t1}")
        p(f"s_sub_u32 s{sVB}, {4 * 8192}, s{t0}")
        p(f"s_and_b32 s{sVB}, s{sVB}, 0x7fff")
        p(f"s_add_u32 s{sVB}, s{sVB}, s{t1}")
        p(f"s_add_u32 s{sVB}, s{sVB}, {VWS}")
        p(f"s_add_u32 s{sKM}, s{t0}, {KB[0]}")
        p(f"s_add_u32 s{sVM}, s{t0}, {VB_[0]}")
        p(f"s_cmp_eq_u32 s{sG}, 0")
        p(f"s_cselect_b32 s{sQB}, s{sI}, s{t3}")
        p(f"s_add_u32 s{t1}, s{sI}, 1")
        p(f"s_cselect_b32 s{sLAST}, s{t1}, s{t3}")
        p(f"s_cmp_eq_u32 s{sG}, 0")
        p(f"s_cselect_b32 s{sLAST}, s{t1}, s{t3}")
        p(f"s_cmp_eq_u32 s{sLAST}, 1")
        p(f"s_cselect_b32 s{sLAST}, 0, s{sLAST}")
        p(f"s_mov_b32 s{sR}, 0")
        p(f"s_mov_b32 s{sPEND}, 1")
        p(f"s_mov_b32 s{sALL}, 0")
        p(f"s_mov_b32 s{sHK}, 1")
        p(f"s_mov_b32 s{sT}, 0")
        p(f"s_mov_b32 s{sTHR}, {'0x7f800000' if X('NORARE') else ('0x00000000' if X('ALLRARE') else '0x47800000')}")

    def dma_x(vm, s):
        slot = LXS[s & 1]
        chunk(t1, s)
        p(f"s_lshl_b32 s{t1}, s{t1}, 7")
        for g2 in range(2):
            p(f"s_add_u32 m0, s{sM4}, {slot + g2 * 16384}")
            p(f"s_add_u32 s{t0}, s{sXc if g2 else sXb}, s{t1}")
            S = S_X if s >= 8 else S_CKV
            for i4 in range(4):
                vm.issue(("X", s), f"buffer_load_dwordx4 v{vXD+i4}, {sr(S)}, s{t0} offen offset:{1024*i4} lds")
    def dma_w(vm, s):
        slot = LWS[s % 3]
        chunk(t1, s)
        if s >= 8:
            p(f"s_mul_i32 s{t2}, s{t1}, 196608")
            p(f"s_add_u32 s{t2}, s{t2}, s{sWb}")
        p(f"s_lshl_b32 s{t1}, s{t1}, 19")
        p(f"s_add_u32 s{t1}, s{t1}, s{sWa}")
        for g2 in range(2):
            p(f"s_add_u32 m0, s{sM4}, {slot + g2 * 16384}")
            p(f"s_add_u32 s{t0}, s{t1}, {g2 * 262144}")
            for i2 in range(2):
                vm.issue(("W", s), f"buffer_load_dwordx4 v{vWA+i2}, {sr(S_WQ if s >= 8 else S_WUK)}, s{t0} offen offset:{1024*i2} lds")
            p("s_add_u32 m0, m0, 2048")
            if s >= 8:
                p(f"s_add_u32 s{t0}, s{t2}, {g2 * 98304}")
                p("s_mov_b64 exec, s[2:3]")
            else:
                p("s_nop 0")
            for i2 in range(2):
                if s < 8:
                    vm.issue(("W", s), f"buffer_load_dwordx4 v{vWA+i2}, {sr(S_WUV)}, s{t0} offen offset:{1024*i2} lds")
                else:
                    vm.issue(("W", s), f"buffer_load_dwordx4 v{vWB2+i2}, {sr(S_WQKV)}, s{t0} offen offset:{1024*i2} lds")
            if s >= 8: p("s_mov_b64 exec, -1")
    def flag_store(va, vb, dword, per_wave=None, vm=None, base=FLG, lanes=1):
        p(f"v_mov_b32 v{va}, 1")
        p(f"v_mov_b32 v{vb}, 0" if lanes == 1 else f"v_lshlrev_b32 v{vb}, 2, v{vL}")
        p(f"s_lshl_b32 s{t0}, s{sL}, 7")
        if per_wave is not None:
            p(f"s_lshl_b32 s{t1}, s{per_wave}, 2")
            p(f"s_add_u32 s{t0}, s{t0}, s{t1}")
        p(f"s_add_u32 s{t0}, s{t0}, {base}")
        p(f"s_mov_b64 exec, {(1 << lanes) - 1}")
        t = f"buffer_store_dword v{va}, v{vb}, {WS}, s{t0} offen offset:{4*dword} sc1"
        vm.issue("FL", t) if vm else p(t)
        p("s_mov_b64 exec, -1")

    def gate_addr(va, vb, orow):
        p(f"v_bfe_u32 v{va}, v{vL}, 3, 2")
        p(f"v_lshlrev_b32 v{va}, 10, v{va}")
        p(f"v_and_b32 v{vb}, 7, v{vL}")
        p(f"v_lshl_add_u32 v{va}, v{vb}, 2, v{va}")
        if orow:
            p(f"s_and_b32 s{t0}, s{sH}, 1")
            p(f"s_lshl_b32 s{t0}, s{t0}, 2")
            p(f"s_add_u32 s{t0}, s{t0}, s{sW4}")
        else:
            p(f"s_lshl_b32 s{t0}, s{sG}, 2")
            p(f"s_add_u32 s{t0}, s{t0}, s{sQ4}")
        p(f"s_lshl_b32 s{t0}, s{t0}, 12")
        p(f"s_lshl_b32 s{t1}, s{sI}, 7")
        p(f"s_add_u32 s{t0}, s{t0}, s{t1}")
        p(f"s_add_u32 s{t0}, s{t0}, {FLG + 4*F_G}")
    def gate_check(vd, va, vb, orow, tag):
        ok, top = newlab("gok" + tag), newlab("gtop" + tag)
        p(f"v_cmp_eq_u32 vcc, 0, v{vd}")
        p("s_nop 1")
        p(f"s_cbranch_vccz {ok}")
        gate_addr(va, vb, orow)
        p.label(top)
        p(f"buffer_load_dword v{vd}, v{va}, {WS}, s{t0} offen sc1")
        p("s_waitcnt vmcnt(0)")
        p(f"v_cmp_eq_u32 vcc, 0, v{vd}")
        p("s_nop 1")
        p(f"s_cbranch_vccz {ok}")
        p("s_sleep 4")
        p(f"s_sub_u32 s{sTO}, s{sTO}, 1")
        p(f"s_cbranch_scc0 {top}")
        p(f"s_mov_b32 s{sTO}, 0")
        p.label(ok)

    ACC = lambda tbi, cbi: (tbi * 2 + cbi) * 16
    XF = lambda st, tbi: 128 + st * 24 + tbi * 4
    WF = lambda st, cbi: 128 + st * 24 + 16 + cbi * 4
    def wsel(base, s):
        sl = s % 3
        return (base[1], 0) if sl == 2 else (base[0], sl * 32768)
    def reads1(s, kk, st):
        L = []
        wb, wo = wsel((0, 2), s)
        def wr(cbi):
            o = wo + kk * 8192
            L.append(f"ds_read_b64_tr_b16 v[{WF(st,cbi)}:{WF(st,cbi)+1}], v{vWR+wb+cbi} offset:{o}")
            L.append(f"ds_read_b64_tr_b16 v[{WF(st,cbi)+2}:{WF(st,cbi)+3}], v{vWR+wb+cbi} offset:{o + 1024}")
        def xr(tbi):
            L.append(f"ds_read_b128 {vr(XF(st,tbi))}, v{vXR+kk} offset:{LXS[s & 1] + (tbi >> 1) * 16384 + (tbi & 1) * 4096}")
        wr(0); xr(0); wr(1); xr(1); xr(2); xr(3)
        return L
    def mf1(isv, st, first):
        L = []
        for tbi in range(4):
            for cbi in range(2):
                a = ACC(tbi, cbi)
                c = "0" if first else vr(a, 16)
                if isv:
                    L.append(f"{MF} {vr(a,16)}, {vr(XF(st,tbi))}, {vr(WF(st,cbi))}, {c}")
                else:
                    L.append(f"{MF} {vr(a,16)}, {vr(WF(st,cbi))}, {vr(XF(st,tbi))}, {c}")
        return L
    F2 = lambda st: 96 + 32 * st
    BQ, BK, BV = 64, 64, 80
    QR = 176
    PQ = 208
    STASH = 216
    HELD = lambda tbi, cbi: (QR if tbi < 2 else STASH) + ((tbi & 1) * 2 + cbi) * 8
    def reads2(s, kk, st, g):
        L = []
        wb, wo = wsel((0, 4), s)
        b = F2(st)
        def tr(dst, d, extra):
            o = wo + kk * 8192 + extra
            L.append(f"ds_read_b64_tr_b16 v[{dst}:{dst+1}], v{vWQ+wb+d} offset:{o}")
            L.append(f"ds_read_b64_tr_b16 v[{dst+2}:{dst+3}], v{vWQ+wb+d} offset:{o + 1024}")
        L.append(f"ds_read_b128 {vr(b)}, v{vXR2+kk} offset:{LXS[s & 1]}")
        for d in range(4):
            tr(b + 8 + d * 4, d, 0)
        L.append(f"ds_read_b128 {vr(b+4)}, v{vXB+kk} offset:{LXS[s & 1]}")
        for k, sg in enumerate((1, 2) if g else (0,)):
            tr(b + 24 + k * 4, sg, 2048)
        return L
    def mf2(st, first, g):
        b = F2(st)
        c = lambda a: "0" if first else vr(a, 16)
        L = [f"{MF} {vr(d*16,16)}, {vr(b+8+d*4)}, {vr(b)}, {c(d*16)}" for d in range(4)]
        if g == 0:
            L += [f"{MF} {vr(BQ,16)}, {vr(b+24)}, {vr(b+4)}, {c(BQ)}"]
        else:
            L += [f"{MF} {vr(BK,16)}, {vr(b+4)}, {vr(b+24)}, {c(BK)}",
                  f"{MF} {vr(BV,16)}, {vr(b+4)}, {vr(b+28)}, {c(BV)}"]
        return L
    def step(g, s, kk, extra=(), exact=None):
        st = (kk + 1) & 1
        ns, nk = (s, kk + 1) if kk < 3 else (s + 1, 0)
        if s >= 8:
            M = mf2(st, s == 8 and kk == 0, g)
            per = 3
        else:
            M = mf1(g == 1, st, s == 0 and kk == 0)
            per = 2
        late = []
        if ns < 8: Rd = reads1(ns, nk, st ^ 1)
        elif (ns, nk) == (8, 0): Rd, late = [], reads2(8, 0, st ^ 1, g)
        elif ns < 16: Rd = reads2(ns, nk, st ^ 1, g)
        else: Rd = []
        ex = exact if exact is not None else spread(list(extra), len(M))
        p("s_waitcnt lgkmcnt(0)")
        for i, m in enumerate(M):
            p(m)
            for r in Rd[per * i:per * i + per]:
                p(r)
            for x in ex[i]:
                p(x)
        for r in Rd[per * len(M):] + late:
            p(r)
    def pack(t):
        a, d = t * 16, HELD(t >> 1, t & 1)
        return [f"v_cvt_pk_bf16_f32 v{d+i}, v{a+2*i}, v{a+2*i+1}" for i in range(8)]
    def qcvt():
        p("s_mov_b32 s52, 0x3e0293ee")
        p("s_mov_b32 s53, 0x3e0293ee")
        for i in range(32):
            p(f"v_pk_mul_f32 v[{2*i}:{2*i+1}], v[{2*i}:{2*i+1}], s[52:53]")
        for i in range(32):
            p(f"v_cvt_pk_bf16_f32 v{QR+i}, v{2*i}, v{2*i+1}")
    def phi_inplace(r, n, TB):
        b, c = TB, TB + 2 * n
        for i in range(n):
            p(f"v_lshlrev_b32 v{b+2*i}, 16, v{r+i}")
            p(f"v_and_b32 v{b+1+2*i}, 0xffff0000, v{r+i}")
        for i in range(2 * n):
            p(f"v_min_f32 v{c+i}, 0, v{b+i}")
        for i in range(2 * n):
            p(f"v_mul_f32 v{c+i}, {LOG2E:#x}, v{c+i}")
        for i in range(2 * n):
            p(f"v_exp_f32 v{c+i}, v{c+i}")
        for i in range(2 * n):
            p(f"v_max_f32 v{b+i}, 0, v{b+i}")
        for i in range(2 * n):
            p(f"v_add_f32 v{b+i}, 0x358637bd, v{b+i}")
        for i in range(2 * n):
            p(f"v_add_f32 v{b+i}, v{b+i}, v{c+i}")
        for i in range(n):
            p(f"v_cvt_pk_bf16_f32 v{r+i}, v{b+2*i}, v{b+1+2*i}")
    def red_slice_base(dst, base):
        p(f"s_and_b32 s{dst}, s{sL}, 15")
        p(f"s_lshl_b32 s{dst}, s{dst}, 2")
        p(f"s_add_u32 s{dst}, s{dst}, s{sW4}")
        p(f"s_lshl_b32 s{dst}, s{dst}, 6")
        p(f"s_add_u32 s{dst}, s{dst}, {base}")
    LOWAT = [(8, 0)] * 8
    if X('LOWAT'): LOWAT = eval(os.environ['LOWAT'])
    def low_slot(vm, s, kk):
        for k in range(len(LOWAT)):
            if LOWAT[k] != (s, kk): continue
            tbi, cbi, half = k >> 2, (k >> 1) & 1, k & 1
            if tbi: p(f"s_add_u32 s{t9}, s{sSTl}, 8192")
            vm.issue("ST", f"buffer_store_dwordx4 {vr(HELD(tbi, cbi) + half*4)}, v{vST}, {WS}, s{t9 if tbi else sSTl} offen offset:{cbi*2048 + half*1024} sc1")
    vTA, vTD = 232, vPK
    def touch_job(job):
        if job[0] == 'x':
            p(f"v_lshlrev_b32 v{vTA}, 7, v{vL}")
            p(f"s_bitcmp1_b32 s{sH}, 1")
            p(f"s_cselect_b32 s{t0}, s{sXc}, s{sXb}")
            p(f"s_lshl_b32 s{t1}, s{sW4}, 15")
            p(f"s_sub_u32 s{t0}, s{t0}, s{t1}")
            p(f"s_and_b32 s{t1}, s{sH}, 1")
            p(f"s_lshl_b32 s{t1}, s{t1}, 16")
            p(f"s_add_u32 s{t0}, s{t0}, s{t1}")
            p(f"s_add_u32 s{t0}, s{t0}, {job[1] * 8192}")
            p(f"buffer_load_dword v{vTD}, v{vTA}, {sr(S_X)}, s{t0} offen")
        elif job[0] == 'wq':
            p(f"v_lshrrev_b32 v{vTA}, 3, v{vL}")
            p(f"v_lshlrev_b32 v{vTA}, 13, v{vTA}")
            p(f"v_and_b32 v{vTA+2}, 7, v{vL}")
            p(f"v_lshl_add_u32 v{vTA}, v{vTA+2}, 7, v{vTA}")
            p(f"s_and_b32 s{t0}, s{sL}, 31")
            p(f"s_lshl_b32 s{t0}, s{t0}, 17")
            p(f"s_lshr_b32 s{t1}, s{sH}, 2")
            p(f"s_lshl_b32 s{t1}, s{t1}, 10")
            p(f"s_add_u32 s{t0}, s{t0}, s{t1}")
            p(f"s_add_u32 s{t0}, s{t0}, {job[1] * 65536}")
            p(f"buffer_load_dword v{vTD}, v{vTA}, {sr(S_WQ)}, s{t0} offen")
        else:
            p(f"v_and_b32 v{vTA}, 15, v{vL}")
            p(f"v_mul_u32_u24 v{vTA}, 3072, v{vTA}")
            p(f"v_lshrrev_b32 v{vTA+2}, 4, v{vL}")
            p(f"v_min_u32 v{vTA+2}, 2, v{vTA+2}")
            p(f"v_lshl_add_u32 v{vTA}, v{vTA+2}, 10, v{vTA}")
            p(f"s_and_b32 s{t0}, s{sL}, 31")
            p(f"s_mul_i32 s{t0}, s{t0}, {16 * 3072}")
            p(f"s_lshr_b32 s{t1}, s{sH}, 2")
            p(f"s_lshl_b32 s{t1}, s{t1}, 7")
            p(f"s_add_u32 s{t0}, s{t0}, s{t1}")
            p(f"buffer_load_dword v{vTD}, v{vTA}, {sr(S_WQKV)}, s{t0} offen")
        p.cur[-1].nodst = True
    TJ = [('wq', 0), ('wq', 1), ('wb',)] + [('x', c) for c in range(8)]
    TS = eval(os.environ.get('TS', '[3,3,3,4,4,4,5,5,5,6,6]'))
    def touch_slot(s, kk):
        for j, job in enumerate(TJ):
            if j < len(TS) and TS[j] == s and kk == 1 + (j & 1):
                sk = newlab("notch")
                p(f"s_cmp_lg_u32 s{sW4}, {j % 3}")
                p(f"s_cbranch_scc1 {sk}")
                touch_job(job)
                p.label(sk)
    def g1_slot(vm, s, kk):
        extra = []
        touch_slot(s, kk)
        if (s, kk) == (HS, 2):
            skip = newlab("nofl")
            p(f"s_cmp_lg_u32 s{sW}, 7")
            p(f"s_cbranch_scc1 {skip}")
            p("s_waitcnt vmcnt(0)")
            p(f"v_mov_b32 v{vPD}, 1")
            p(f"s_lshl_b32 s{t0}, s{sI}, 5")
            p(f"v_mov_b32 v{vPE}, s{t0}")
            p("s_mov_b64 exec, 1")
            p(f"buffer_atomic_add v{vPD}, v{vPE}, {sr(S_DBG)}, 0 offen sc1")
            p("s_mov_b64 exec, -1")
            p.label(skip)
        if (s, kk) == (GS, 1):
            p(f"s_lshl_b32 s{t0}, s{sH}, 3")
            p(f"s_lshl_b32 s{t1}, s{sW4}, 1")
            p(f"s_add_u32 s{t0}, s{t0}, s{t1}")
            p(f"s_and_b32 s{t1}, s{t0}, 127")
            p(f"s_lshl_b32 s{t1}, s{t1}, 10")
            p(f"s_lshl_b32 s{t2}, s{sW4}, 15")
            p(f"s_cmp_lt_u32 s{t0}, 128")
            p(f"s_cselect_b32 s{t0}, s{sXb}, s{sXc}")
            p(f"s_sub_u32 s{t0}, s{t0}, s{t2}")
            p(f"s_add_u32 s{t0}, s{t0}, s{t1}")
            vm.issue("G", f"buffer_load_dwordx4 {vr(GW_)}, v{vST}, {sr(S_GATE)}, 0 offen")
            for r in range(2):
                vm.issue("G", f"buffer_load_dwordx4 {vr(GX + 4*r)}, v{vST}, {sr(S_X)}, s{t0} offen offset:{r*1024}")
        if (s, kk) == (GS + 1, 0):
            vm.wait_all()
            W8, T2, R2 = 184, GT, GT + 4
            for i in range(4):
                extra.append(f"v_lshlrev_b32 v{W8+2*i}, 16, v{GW_+i}")
                extra.append(f"v_and_b32 v{W8+1+2*i}, 0xffff0000, v{GW_+i}")
            for i in range(4):
                for r in range(2):
                    extra.append(f"v_lshlrev_b32 v{T2+2*r}, 16, v{GX+4*r+i}")
                    extra.append(f"v_and_b32 v{T2+2*r+1}, 0xffff0000, v{GX+4*r+i}")
                for r in range(2):
                    if i == 0:
                        extra.append(f"v_mul_f32 v{R2+r}, v{T2+2*r}, v{W8}")
                    else:
                        extra.append(f"v_fmac_f32 v{R2+r}, v{T2+2*r}, v{W8+2*i}")
                for r in range(2):
                    extra.append(f"v_fmac_f32 v{R2+r}, v{T2+2*r+1}, v{W8+2*i+1}")
        if (s, kk) == (GS + 1, 1):
            R2 = GT + 4
            for sh in ("row_shr:1 row_mask:0xf bank_mask:0xf bound_ctrl:0", "row_shr:2 row_mask:0xf bank_mask:0xf bound_ctrl:0",
                       "row_shr:4 row_mask:0xf bank_mask:0xf bound_ctrl:0", "row_shr:8 row_mask:0xf bank_mask:0xf bound_ctrl:0",
                       "row_bcast:15 row_mask:0xa bank_mask:0xf", "row_bcast:31 row_mask:0xc bank_mask:0xf"):
                for r in range(2):
                    extra.append(f"v_add_f32_dpp v{R2+r}, v{R2+r}, v{R2+r} {sh}")
                extra.append("s_nop 0")
            for op in ("v_mul_f32 v{0}, 0xbfb8aa3b, v{0}", "v_exp_f32 v{0}, v{0}", "v_add_f32 v{0}, 1.0, v{0}", "v_rcp_f32 v{0}, v{0}", "v_add_f32 v{0}, 1.0, v{0}"):
                for r in range(2):
                    extra.append(op.format(R2 + r))
        if (s, kk) == (GS + 1, 2):
            R2 = GT + 4
            p(f"v_mov_b32 v{GT}, 0")
            p(f"s_lshl_b32 s{t0}, s{sL}, 7")
            p(f"s_lshl_b32 s{t1}, s{sW4}, 3")
            p(f"s_add_u32 s{t0}, s{t0}, s{t1}")
            p(f"s_add_u32 s{t0}, s{t0}, {FLG + 4*F_G}")
            p("s_mov_b32 exec_lo, 0")
            p("s_mov_b32 exec_hi, 0x80000000")
            vm.issue("G", f"buffer_store_dwordx2 v[{R2}:{R2+1}], v{GT}, {WS}, s{t0} offen sc1")
            p("s_mov_b64 exec, -1")
        return extra
    def gemm_phases(g, vm):
        A4 = 128
        for s in range(16):
            p.seg(f"g{g}_s{s}")
            if s == 0:
                for r in reads1(0, 0, 1):
                    p(r)
            extra = []
            for kk in range(3):
                if (s, kk) == (8, 0):
                    n = 6 if g else 5
                    ex = [pack(t + 1) if t < 5 else [] for t in range(n)]
                    step(g, s, kk, exact=ex)
                else:
                    step(g, s, kk, extra)
                extra = g1_slot(vm, s, kk) if g == 1 else []
                low_slot(vm, s, kk)
            if not (X('ATTST') or X('CST')): stamp(p, 34 + s)
            if s == 14:
                vm.wait_all()
                if g == 0:
                    loads = [(vPE, vPB, S_DBG, 0, 32)]
                    ok = newlab("cntok")
                    poll_check(p, loads)
                    p(f"s_cbranch_vccz {ok}")
                    poll_block(p, loads, "c0")
                    p.label(ok)
                p("s_waitcnt lgkmcnt(0)")
            elif s == 15 or (g == 1 and s >= 2):
                p("s_waitcnt lgkmcnt(0)")
            else:
                vm.wait([("X", s + 1), ("W", s + 1)], "lgkmcnt(0)")
            p("s_barrier")
            stamp(p, 2 + s)
            extra = []
            if g == 0:
                if s + 2 < 16: dma_x(vm, s + 2)
                if s + 3 < 16: dma_w(vm, s + 3)
                if s == 13:
                    vm.issue("P", f"buffer_load_dword v{vPE}, v{vPB}, {sr(S_DBG)}, 0 offen sc1")
                if s == 14:
                    p(f"s_cmp_lg_u32 s{sW}, 0")
                    p("s_cbranch_scc1 L_nolo")
                    flag_store(vPD, vPK, 0, base=FL2, lanes=8)
                    p.label("L_nolo")
            if s == 7:
                extra = [f"v_mov_b32 v{160+i}, v{160+AOFF+i}" for i in range(16)]
            if s == 15:
                p(f"s_bfe_u32 s{t5}, s{sW}, 0x10001")
                p(f"s_and_b32 s{t6}, s{sW}, 1")
                p(f"s_lshl_b32 s{t6}, s{t6}, 12")
                p(f"s_lshl_b32 s{t5}, s{t5}, 14")
                p(f"s_sub_u32 s{t4}, s{t6}, s{t5}")
                if g == 0:
                    p(f"s_add_u32 s{t0}, s{t4}, {KB[1] + 3 * 8192}")
                    p(f"s_add_u32 s{t1}, s{t4}, {KB[1] + 2 * 8192}")
                    p(f"s_add_u32 s{t2}, s{t4}, {KB[0] + 3 * 8192}")
                    p(f"s_add_u32 s{t3}, s{t4}, {KB[0] + 2 * 8192}")
                else:
                    p(f"s_add_u32 s{t0}, s{t4}, {VB_[1] + 4 * 8192}")
                    p(f"s_add_u32 s{t1}, s{t4}, {VB_[1] + 3 * 8192}")
                    p(f"s_add_u32 s{t2}, s{t4}, {VB_[0] + 4 * 8192}")
                    p(f"s_add_u32 s{t3}, s{t4}, {VB_[0] + 3 * 8192}")
                    p(f"s_add_u32 s{t7}, s{t6}, {VB_[0]}")
                    p(f"s_add_u32 s{t8}, s{t6}, {VB_[1]}")
                    p(f"s_cmp_eq_u32 s{t5}, 0")
                    p(f"s_cselect_b32 s{t0}, s{t7}, s{t0}")
                    p(f"s_cselect_b32 s{t2}, s{t8}, s{t2}")
                p(f"s_lshl_b32 s{t4}, s{sW4}, {12 if g else 11}")
                p(f"s_add_u32 s{t4}, s{t4}, {MISC + (8192 if g else 0)}")
                for k in range(5):
                    p(f"v_add_u32 v{A4+k}, s{t0+k}, v{vST}")
                extra = [f"ds_write_b128 v{A4+tbi}, {vr(HELD(tbi, cbi) + half*4)} offset:{cbi*2048 + half*1024}"
                         for tbi in range(4) for cbi in range(2) for half in range(2)]
            step(g, s, 3, extra)
            if s == 7:
                for t in (0, 6, 7):
                    if t == 7: p("s_nop 1")
                    for x in pack(t): p(x)
                stamp(p, 20)
        p.seg(f"g{g}_tr")
        gate_addr(A4 + 5, A4 + 6, False)
        p(f"buffer_load_dword v{vG}, v{A4+5}, {WS}, s{t0} offen sc1")
        if g == 0:
            gate_addr(A4 + 5, A4 + 6, True)
            p(f"buffer_load_dword v{vPB}, v{A4+5}, {WS}, s{t0} offen sc1")
            p(f"buffer_load_dword v{vPD}, v{vPA}, {WS}, 0 offen sc1")
        qcvt()
        for k in range(2 if g else 1):
            for i in range(8):
                p(f"v_cvt_pk_bf16_f32 v{136+8*k+i}, v{64+16*k+2*i}, v{64+16*k+2*i+1}")
            for s in range(2):
                p(f"ds_write_b128 v{A4+4}, {vr(136 + 8*k + 4*s)} offset:{k*2048 + s*1024}")
        p(f"s_branch L_apro")

    def stash_stores(which=range(4)):
        p(f"s_add_u32 s{t9}, s{sSTh}, 8192")
        for tb in range(2):
            for cbi in range(2):
                if tb * 2 + cbi not in which: continue
                d = STASH + (tb * 2 + cbi) * 8
                for half in range(2):
                    if not X('NOST'):
                        p(f"buffer_store_dwordx4 {vr(d + half*4)}, v{vST}, {WS}, s{sSTh if tb == 0 else t9} offen offset:{cbi*2048 + half*1024} sc1")

    p.seg("g0_pro")
    vm0 = VM(p)
    dma_x(vm0, 0); dma_w(vm0, 0)
    setup2()
    stamp(p, 30)
    vm0.wait([("X", 0), ("W", 0)])
    stamp(p, 31)
    p("s_barrier")
    stamp(p, 1)
    gemm_phases(0, vm0)

    p.seg("g1_pro")
    p.label("L_g1")
    vm1 = VM(p)
    dma_x(vm1, 1); dma_w(vm1, 1); dma_w(vm1, 2)
    p(f"v_and_b32 v{vT}, 31, v{vL}")
    p(f"v_lshlrev_b32 v{vT}, 2, v{vT}")
    p(f"v_lshl_add_u32 v{vT}, v{hi}, 15, v{vT}")
    p(f"v_mov_b32 v{vT+5}, 0")
    p(f"s_lshl_b32 s{t0}, s{sL}, 7")
    p(f"s_add_u32 s{t0}, s{t0}, {FLG}")
    p(f"s_cmp_lg_u32 s{sW}, 7")
    p("s_cbranch_scc1 L_noclr")
    p(f"buffer_store_dword v{vT+5}, v{vT}, {WS}, s{t0} offen sc1")
    p.label("L_noclr")
    setup2()
    stamp(p, 19)
    p("s_barrier")
    stamp(p, 1)
    gemm_phases(1, vm1)

    if X('LB'):
        p.seg("lb")
        p.label("L_lb")
        setup2()
        p(f"s_mul_i32 s{t0}, s{sW}, {20 * 1024}")
        for k in range(20):
            p(f"s_add_u32 m0, s{t0}, {k * 1024}")
            p(f"s_add_u32 s{t1}, s{t0}, {k * 1024}")
            p(f"buffer_load_dwordx4 v{vST}, {sr(S_CKV)}, s{t1} offen lds")
        for k in range(8):
            p(f"buffer_load_dwordx4 {vr(QR + 4 * k)}, v{vST}, {sr(S_X)}, s{t0} offen offset:{(k & 3) * 1024}")
        p(f"s_mov_b32 s{sHK}, 0")
        p(f"s_mov_b32 s{sLAST}, 14")
        p(f"s_mov_b32 s{sN}, 0")
        p(f"s_mov_b32 s{sQ4}, 3")
        p("s_waitcnt vmcnt(0)")
        p("s_barrier")
        if os.environ['LB'] == 'solo':
            p(f"s_cmp_eq_u32 s{sG}, 0")
            p("s_cbranch_scc1 L_end")
        stamp_real(p, 30)
    O = lambda d: d * 16
    S = lambda b: 64 + b * 16
    NEGM = 96
    Q = lambda kc: QR + kc * 4
    P = lambda b: 112 + b * 8
    F = lambda n: 128 + (n % 8) * 4
    T = [160, 161, 162, 163]
    LS = [164, 165, 166, 167]
    vRK, vRV, vD0, vNINF, vU = 169, 170, 171, 172, 208
    D = int(os.environ.get('DEPTH', 7))
    SM = [t0, t2, t4, t6]
    def kread(k, n):
        return f"ds_read_b128 {vr(F(n))}, v{vRK} offset:{k*8192 + n*1024}"
    def vread(k, m, ring):
        kh, d = m >> 2, m & 3
        return f"ds_read_b128 {vr(F(ring))}, v{vRV} offset:{k*8192 + (d*2+kh)*1024}"
    def fread(k, n):
        return kread(k, n) if n < 8 else vread(k, n - 8, n)
    def mqk(n, sb, first_c):
        c = first_c if n == 0 else vr(S(sb), 16)
        return f"{MF} {vr(S(sb),16)}, {vr(F(n))}, {vr(Q(n))}, {c}"
    def mpv(m, ring, pb):
        kh, d = m >> 2, m & 3
        return f"{MF} {vr(O(d),16)}, {vr(F(ring))}, {vr(P(pb)+kh*4)}, {vr(O(d),16)}"
    E0 = int(os.environ.get('E0', 9))
    CK = float(os.environ.get('CK', 1.5))
    BK_ = float(os.environ.get('BK', -2))
    def sm_ops(sb, line=False):
        L = []
        for e in range(16):
            t = T[e & 3]
            L.append((E0 + e, -1 if line else 2, f"v_exp_f32 v{t}, v{S(sb)+e}"))
            half = e >> 3
            lin, lout = LS[(2 * sb + half) & 3], LS[(2 * sb + half + 1) & 3]
            L.append((E0 + 1 + e, 0, f"v_add_f32 v{lout}, v{lin if (e & 7) == 0 else lout}, v{t}"))
            if e & 1:
                L.append((E0 + 2 + e, 1, f"v_cvt_pk_bf16_f32 v{P(sb)+(e>>1)}, v{T[(e-1)&3]}, v{t}"))
        CD = int(os.environ.get('CD', 1))
        for half, sg in ((0, E0 + 9), (1, E0 + 17)):
            L.append((sg, CK, f"v_cmp_lt_f32 vcc, s{sTHR}, v{LS[(2 * sb + half + 1) & 3]}"))
            L.append((sg + CD, BK_, "CHECK" + "ab"[half]))
        L.sort(key=lambda x: (x[0], x[1]))
        return L
    tramps = []
    def emit_op(txt, sb):
        if txt.startswith("CHECK"):
            half = 0 if txt[-1] == 'a' else 1
            k = len(tramps)
            p(f"s_cbranch_vccnz L_tr{k}")
            p.label(f"L_bk{k}")
            tramps.append((k, sb, half))
        else:
            p(txt)
    def gap_ops(n, cur, nxt, with_cur=True, with_nxt=True):
        L = []
        if with_cur: L += [(k, t, cur) for (s_, k, t) in sm_ops(cur) if s_ == n + 16]
        if with_nxt: L += [(k, t, nxt) for (s_, k, t) in sm_ops(nxt) if s_ == n]
        L.sort(key=lambda x: x[0])
        return [(t, sb) for (k, t, sb) in L]
    def mask_ops(sb, vD):
        L = []
        cs = [(r & 3) + 8 * (r >> 2) for r in range(16)]
        for r in range(16 + 3):
            if r < 16:
                m = SM[r % 4]
                L.append(f"v_cmp_le_i32 s[{m}:{m+1}], {cs[r]}, v{vD}")
            if r >= 3:
                q = r - 3
                m = SM[q % 4]
                L.append(f"v_cndmask_b32 v{S(sb)+q}, v{vNINF}, v{S(sb)+q}, s[{m}:{m+1}]")
        return L
    def dstamp(base):
        if not (STAMPS and X('ATTST')): return
        p("s_memtime s[100:101]")
        p(f"s_min_u32 s{t11}, s{sR}, 14")
        p(f"s_add_u32 m0, s{t11}, {base}")
        p("s_waitcnt lgkmcnt(0)")
        p(f"v_writelane_b32 v{vSTAMP}, s100, m0")
    def round_end(tag):
        dstamp(32)
        p("s_waitcnt vmcnt(0) lgkmcnt(0)")
        p("s_barrier")
        dstamp(47)
        p(f"v_xor_b32 v{vRK}, 0x8000, v{vRK}")
        p(f"v_xor_b32 v{vRV}, 0x38000, v{vRV}")
        p(f"s_add_u32 s{sR}, s{sR}, 1")
        skip = newlab("nohook")
        p(f"s_cmp_eq_u32 s{sHK}, 0")
        p(f"s_cbranch_scc1 {skip}")
        p(f"s_call_b64 s[{LKB}:{LKB+1}], L_hook")
        p.seg(tag + "_b")
        p.label(skip)
    RE = 12
    def iteration(k, last, tag):
        nxt, cur = k & 1, (k & 1) ^ 1
        def ahead(n):
            q = n + D
            if q < 16:
                return fread(k, q)
            q -= 16
            kn = (k + 1) & 3
            return vread(kn, q, q) if last else fread(kn, q)
        issued = D
        for n in range(16):
            if k == 3 and n == RE:
                round_end(tag)
                while issued < n + D:
                    p(ahead(issued - D)); issued += 1
            elif n % 2 == 0 and not X('NOWAIT'):
                p(f"s_waitcnt lgkmcnt({issued - (n + 2)})")
            p(mqk(n, nxt, vr(NEGM, 16)) if n < 8 else mpv(n - 8, n, cur))
            if not (k == 3 and n < RE and n + D >= 16):
                if not X('NORD'): p(ahead(n))
                issued += 1
            elif n == E0:
                p("s_nop 0")
            for t, sb in gap_ops(n, cur, nxt):
                if X('NOSM'): continue
                if X('NOCHK') and t.startswith("CHECK"): continue
                if X('NOADD') and t.startswith("v_add"): continue
                if X('NOCVT') and t.startswith("v_cvt"): continue
                if X('NOEXP') and t.startswith("v_exp"): continue
                emit_op(t, sb)
    def tail():
        cur = 1
        ops = [(s_, t) for (s_, k, t) in sm_ops(cur, True) if s_ >= 16]
        ka = [t for s_, t in ops].index("CHECKa")
        first = [t for s_, t in ops[:ka + 1]]
        rest = [t for s_, t in ops[ka + 1:]]
        for q in range(D, 8):
            p(vread(0, q, q))
        for t in first:
            emit_op(t, cur)
        fr = spread(rest, 4)
        for m in range(8):
            if m == 4: p("s_nop 1")
            p(f"s_waitcnt lgkmcnt({7 - m})")
            p(mpv(m, m, cur))
            if m < 4:
                for t in fr[m]:
                    emit_op(t, cur)
    def maxtree(sb, dst, extra=None):
        s = S(sb)
        p(f"v_max3_f32 v{dst}, v{s}, v{s+1}, v{s+2}")
        p(f"v_max3_f32 v{dst+1}, v{s+3}, v{s+4}, v{s+5}")
        p(f"v_max3_f32 v{dst}, v{dst}, v{s+6}, v{s+7}")
        p(f"v_max3_f32 v{dst+1}, v{dst+1}, v{s+8}, v{s+9}")
        p(f"v_max3_f32 v{dst}, v{dst}, v{s+10}, v{s+11}")
        p(f"v_max3_f32 v{dst+1}, v{dst+1}, v{s+12}, v{s+13}")
        p(f"v_max3_f32 v{dst}, v{dst}, v{s+14}, v{s+15}")
        if extra is not None:
            p(f"v_max3_f32 v{dst}, v{dst}, v{dst+1}, v{extra}")
        else:
            p(f"v_max_f32 v{dst}, v{dst}, v{dst+1}")
        p(f"v_mov_b32 v{dst+1}, v{dst}")
        p("s_nop 1")
        p(f"v_permlane32_swap_b32 v{dst}, v{dst+1}")
        p("s_nop 1")
        p(f"v_max_f32 v{dst}, v{dst}, v{dst+1}")

    p.seg("apro")
    p.label("L_apro")
    p(f"s_cmp_eq_u32 s{sG}, 0")
    p(f"s_cselect_b32 s{t0}, {KB[1]}, {KB[0]}")
    p(f"s_mov_b32 s{sHK2}, 0")
    p(f"s_add_u32 s{t1}, s{t0}, {VB_[0]}")
    p(f"v_add_u32 v{vRK}, s{t0}, v{vST}")
    p(f"v_add_u32 v{vRV}, s{t1}, v{vST}")
    p(f"v_and_b32 v{T[0]}, 31, v{vL}")
    p(f"v_lshrrev_b32 v{T[1]}, 5, v{vL}")
    p(f"v_lshlrev_b32 v{T[1]}, 2, v{T[1]}")
    p(f"v_sub_u32 v{vD0}, v{T[0]}, v{T[1]}")
    p(f"v_mov_b32 v{vNINF}, 0xff800000")
    p(f"v_mov_b32 v{LS[0]}, 0")
    p(f"v_mov_b32 v{LS[2]}, 0")
    p(f"s_mov_b32 s{sOUT}, 0")
    p(f"s_mov_b32 s{sBX}, 0")
    p(f"s_cmp_lt_u32 s{sI}, 2")
    p(f"s_cselect_b32 s{sFH}, 5, 4")
    p(f"s_mov_b32 s{sR1}, s{sFH}")
    p(f"s_sub_u32 s{sRO}, s{sN}, 5")
    p(f"s_max_u32 s{sRO}, s{sRO}, 6")
    if os.environ.get('PRIO', '1') != '0':
        p(f"s_cmp_eq_u32 s{sG}, 0")
        p("s_cbranch_scc1 L_noprio")
        p(f"s_setprio {os.environ.get('PRIO', '1')}")
        p.label("L_noprio")
    stamp(p, 18)
    p("s_waitcnt lgkmcnt(0)")
    p("s_barrier")
    stamp(p, 21)
    for p0 in range(1, 4):
        p(f"s_cmp_eq_u32 s{sQ4}, {3 - p0}")
        p(f"s_cbranch_scc1 L_pro{p0}")
    for p0 in range(4):
        sb = p0 & 1
        p.seg(f"pro{p0}")
        p.label(f"L_pro{p0}")
        for n in range(8):
            p(kread(p0, n))
        NEWST = False
        if NEWST:
            la = newlab("late")
            p(f"s_cmp_ge_u32 s{sI}, {UR}")
            p(f"s_cbranch_scc1 {la}")
            low_stores()
            p.label(la)
        for n in range(8):
            p(f"s_waitcnt lgkmcnt({7 - n})")
            p(mqk(n, sb, "0"))
            if NEWST:
                for i in range(4):
                    p(f"v_mov_b32 v{16*(n>>1) + 8 + 4*(n&1) + i}, 0")
            else:
                for i in range(8):
                    p(f"v_mov_b32 v{8*n+i}, 0")
        if p0 < 3:
            for n in range(D):
                p(fread(p0 + 1, n))
        else:
            p("s_nop 4")
        for x in mask_ops(sb, vD0):
            p(x)
        maxtree(sb, vU)
        for i in range(16):
            p(f"v_sub_f32 v{S(sb)+i}, v{S(sb)+i}, v{vU}")
        for i in range(16):
            p(f"v_sub_f32 v{NEGM+i}, 0, v{vU}")
        for s_, k, t in sm_ops(sb, True):
            if s_ < 16:
                emit_op(t, sb)
        if NEWST:
            lb, lc = newlab("early"), newlab("stdone")
            p(f"s_cmp_lt_u32 s{sI}, {UR}")
            p(f"s_cbranch_scc1 {lb}")
            low_stores()
            p(f"s_branch {lc}")
            p.label(lb)
        if NEWST:
            p.label(lc)
            p("s_nop 1")
            for i in range(32):
                p(f"v_mov_b32 v{16*(i>>3) + (i&7)}, 0")
        if p0 < 3:
            p(f"s_branch L_it{p0 + 1}")
        else:
            p(f"s_cmp_eq_u32 s{sR}, s{sLAST}")
            p("s_cbranch_scc1 L_pro3L")
            round_end("pro3")
            for n in range(D):
                p(fread(0, n))
            p("s_branch L_it0")
            p.seg("pro3L")
            p.label("L_pro3L")
            round_end("pro3L")
            for n in range(D):
                p(vread(0, n, n))
            p("s_branch L_tail")
    for k in range(4):
        p.seg(f"it{k}")
        p.label(f"L_it{k}")
        if k == 3:
            p(f"s_cmp_eq_u32 s{sR}, s{sLAST}")
            p("s_cbranch_scc1 L_it3L")
        if k in (1, 2):
            p(f"s_cmp_lg_u32 s{sHK2}, 0")
            p(f"s_cbranch_scc1 L_h2c{k}")
            p.label(f"L_h2b{k}")
        iteration(k, False, f"it{k}")
    p("s_branch L_it0")
    p.seg("it3L")
    p.label("L_it3L")
    iteration(3, True, "it3L")
    p.seg("tail")
    p.label("L_tail")
    tail()
    p.seg("epi")
    stamp(p, 22)
    if X('LB'):
        stamp_real(p, 31)
        p(f"s_lshl_b32 s{t0}, s{sL}, 3")
        p(f"s_add_u32 s{t0}, s{t0}, s{sW}")
        p(f"s_lshl_b32 s{t0}, s{t0}, 8")
        p(f"s_add_u32 s{t0}, s{t0}, {DBGOFF}")
        p(f"v_lshlrev_b32 v{vU}, 2, v{vL}")
        p(f"buffer_store_dword v{vSTAMP}, v{vU}, {WS}, s{t0} offen")
        p("s_endpgm")
    vLs = LS[0]
    gate_check(vG, vU, vU + 1, False, "e")
    p(f"v_add_f32 v{vG}, -1.0, v{vG}")
    p(f"v_mov_b32 v{vU}, v{vLs}")
    p(f"s_lshl_b32 s{t0}, s{sQB}, 2")
    p(f"s_add_u32 s{t0}, s{t0}, s{sQ4}")
    p(f"v_permlane32_swap_b32 v{vLs}, v{vU}")
    p(f"s_mul_i32 s{t0}, s{t0}, 288")
    p(f"s_lshl_b32 s{t1}, s{sH}, 3")
    p(f"v_add_f32 v{vLs}, v{vLs}, v{vU}")
    p(f"s_add_u32 s{t0}, s{t0}, s{t1}")
    p(f"v_rcp_f32 v{vLs}, v{vLs}")
    p(f"s_lshl_b32 s{t0}, s{t0}, 10")
    p(f"s_add_u32 s{t0}, s{t0}, {AWS}")
    p(f"s_add_u32 s{t1}, s{t0}, 4096")
    p(f"v_mul_f32 v{vLs}, v{vLs}, v{vG}")
    p(f"s_mov_b32 s{sCX}, s{t0}")
    p(f"s_cmp_lt_u32 s{sR}, s{sN}")
    p("s_cbranch_scc1 L_epi2")
    def ctx_store(d, half):
        return f"buffer_store_dwordx4 {vr(64+8*d+4*half)}, v{vST}, {WS}, s{sCX if d < 2 else t1} offen offset:{(d&1)*2048 + half*1024} sc1"
    def epi_body(st):
        for d in range(4):
            for i in range(16):
                p(f"v_mul_f32 v{O(d)+i}, v{O(d)+i}, v{vLs}")
            for i in range(8):
                p(f"v_cvt_pk_bf16_f32 v{64+8*d+i}, v{O(d)+2*i}, v{O(d)+2*i+1}")
            if st:
                for half in range(2):
                    p(ctx_store(d, half))
    p.seg("epi1")
    epi_body(True)
    if not X('NOBX'):
        p("s_barrier")
        p(f"s_mov_b32 s{sBX}, 1")
    p(f"s_mov_b32 s{sOUT}, 0")
    p("s_branch L_help")
    p.seg("epi2")
    p.label("L_epi2")
    epi_body(False)
    p(f"s_mov_b32 s{sPEND}, 3")
    p.seg("help0")
    p.label("L_help0")
    p(f"s_cmp_eq_u32 s{sHK2}, 0")
    p("s_cbranch_scc1 L_hs1")
    p(f"s_mov_b32 s{sOUT}, 4")
    p(f"s_sub_u32 s{sHK2}, s{sHK2}, 2")
    p(f"s_cmp_eq_u32 s{sHK2}, 0")
    p("s_cbranch_scc1 L_hs0")
    stash_stores([0, 1])
    p("s_branch L_help")
    p.label("L_hs0")
    stash_stores([2, 3])
    p("s_branch L_help")
    p.label("L_hs1")
    p(f"s_cmp_lt_u32 s{sPEND}, 2")
    p("s_cbranch_scc1 L_help")
    p(f"s_mov_b32 s{sOUT}, 4")
    p(f"s_sub_u32 s{sPEND}, s{sPEND}, 1")
    p(f"s_cmp_eq_u32 s{sPEND}, 1")
    p("s_cbranch_scc1 L_hs2")
    for d in range(2):
        for half in range(2):
            p(ctx_store(d, half))
    p("s_branch L_help")
    p.label("L_hs2")
    p(f"s_add_u32 s{t1}, s{sCX}, 4096")
    for d in range(2, 4):
        for half in range(2):
            p(ctx_store(d, half))
    p.seg("help")
    p.label("L_help")
    p("s_waitcnt vmcnt(4)")
    p(f"s_cmp_eq_u32 s{sOUT}, 4")
    p("s_cbranch_scc1 L_hnf")
    p("s_waitcnt vmcnt(1)")
    p(f"s_cmp_eq_u32 s{sOUT}, 1")
    p("s_cbranch_scc1 L_hw1")
    p("s_waitcnt vmcnt(0)")
    p.label("L_hw1")
    p(f"s_cmp_eq_u32 s{sPEND}, 0")
    p("s_cbranch_scc1 L_hnf")
    p(f"s_lshl_b32 s{t2}, s{sG}, 2")
    p(f"s_add_u32 s{t2}, s{t2}, s{sQ4}")
    flag_store(vU, vU + 1, F_CS, t2)
    p(f"s_mov_b32 s{sPEND}, 0")
    p.label("L_hnf")
    p(f"s_mov_b32 s{sOUT}, 0")
    p(f"s_cmp_ge_u32 s{sR}, s{sN}")
    p("s_cbranch_scc1 L_hy")
    p("s_barrier")
    p(f"s_add_u32 s{sR}, s{sR}, 1")
    p(f"s_call_b64 s[{LKB}:{LKB+1}], L_hook")
    p("s_branch L_help0")
    p.label("L_hy")
    p(f"s_cmp_lg_u32 s{sPEND}, 0")
    p("s_cbranch_scc1 L_help0")
    p.seg("hx")
    p.label("L_hx")
    stamp(p, 23)

    p.seg("cpro")
    sRING, sAS, sAL, sWK, sBK, sVN, sVO = 64, 65, 66, 67, 68, 69, 70
    AA = lambda cb, tb: (cb * 2 + tb) * 16
    NS = 8
    HH = int(os.environ.get('HH', 16))
    DMAX = int(os.environ.get('DMAX', 16))
    vWD, vR, vFA, vFD, vC = 244, 245, 247, 172, 64
    p(f"s_lshl_b32 s{t2}, s{sW}, 12")
    p(f"s_lshl_b32 s{t3}, s{sI}, 7")
    p(f"s_add_u32 s{t2}, s{t2}, s{t3}")
    p(f"s_lshl_b32 s{t1}, s{sTB}, 2")
    p(f"s_add_u32 s{t2}, s{t2}, s{t1}")
    p(f"s_add_u32 s{t2}, s{t2}, {FLG + 4*F_CS}")
    p(f"v_and_b32 v{vC+4}, 3, v{vL}")
    p(f"v_lshlrev_b32 v{vC}, 10, v{vC+4}")
    p(f"v_bfe_u32 v{vC+3}, v{vL}, 2, 2")
    p(f"v_min_u32 v{vC+2}, 2, v{vC+3}")
    p(f"v_lshl_add_u32 v{vC}, v{vC+2}, 4, v{vC}")
    p(f"v_add_u32 v{vFA}, s{t2}, v{vC}")
    vmc = VM(p)
    if X('FAKEC'):
        _iss = vmc.issue
        cnt = [0]
        def fake(tag, text, cond=False):
            cnt[0] += 1
            if tag == "F" or cnt[0] & 1: _iss(tag, text, cond)
        vmc.issue = fake
    FPOLL = f"buffer_load_dword v{vFD}, v{vFA}, {WS}, 0 offen sc1"
    vmc.issue("F", FPOLL)
    def fcheck(mask, tag):
        top, ok = newlab("fc" + tag), newlab("fcok" + tag)
        p.label(top)
        p(f"v_cmp_ne_u32 vcc, 1, v{vFD}")
        p("s_nop 1")
        p(f"s_and_b32 s{t9}, vcc_lo, {mask}")
        p(f"s_cbranch_scc0 {ok}")
        p("s_sleep 2")
        p(FPOLL)
        p("s_waitcnt vmcnt(0)")
        p(f"s_sub_u32 s{sTO}, s{sTO}, 1")
        p(f"s_cbranch_scc0 {top}")
        p(f"s_mov_b32 s{sTO}, 0")
        p.label(ok)
    p(f"s_and_b32 s{t0}, s{sN}, 1")
    p(f"s_lshl_b32 s{t0}, s{t0}, 15")
    p(f"s_add_u32 s{sVN}, s{t0}, {LWS[1] + 8192}")
    p(f"s_sub_u32 s{sVO}, {LWS[2]}, s{t0}")
    p(f"s_lshl_b32 s{t3}, s{sW4}, 14")
    p(f"s_add_u32 s{t2}, s{sVO}, s{t3}")
    p(f"s_cmp_eq_u32 s{sW}, 6")
    p(f"s_cselect_b32 s{t2}, s{sVN}, s{t2}")
    p(f"s_cmp_eq_u32 s{sW}, 7")
    p(f"s_cselect_b32 s{t2}, {MISC + 8192}, s{t2}")
    p(f"s_cmp_eq_u32 s{sG}, 0")
    p(f"s_cselect_b32 s{sRING}, s{t3}, s{t2}")
    p(f"v_lshrrev_b32 v{vC}, 3, v{vL}")
    p(f"v_lshlrev_b32 v{vC}, 10, v{vC}")
    p(f"v_bfe_u32 v{vC+1}, v{vL}, 4, 1")
    p(f"v_lshlrev_b32 v{vC+2}, 2, v{vC+1}")
    p(f"v_and_b32 v{vC+3}, 7, v{vL}")
    p(f"v_xor_b32 v{vC+3}, v{vC+3}, v{vC+2}")
    p(f"v_lshl_add_u32 v{vC}, v{vC+3}, 4, v{vC}")
    p(f"s_lshl_b32 s{t0}, s{sCB}, 7")
    p(f"v_add_u32 v{vWD}, s{t0}, v{vC}")
    p(f"s_lshl_b32 s{sWK}, s{sW}, 19")
    p(f"s_lshl_b32 s{sBK}, s{sW}, 16")
    def wload(j):
        if j >= 4:
            wb, wo_, S_ = sWK, (j - 4) * 16384, S_WO
        else:
            wb, wo_, S_ = sBK, j * 16384, S_BWO
        p(f"s_add_u32 m0, s{sRING}, {(j % NS) * 2048}")
        p(f"s_add_u32 s{t0}, s{wb}, {wo_}")
        p(f"s_add_u32 s{t1}, s{wb}, {wo_ + 8192 - 1024}")
        vmc.issue(("W", j), f"buffer_load_dwordx4 v{vWD}, {sr(S_)}, s{t0} offen lds")
        vmc.issue(("W", j), f"buffer_load_dwordx4 v{vWD}, {sr(S_)}, s{t1} offen offset:1024 lds")
    for j in range(4):
        wload(j)
    p(f"v_lshrrev_b32 v{vC+2}, 5, v{vL}")
    p(f"v_bfe_u32 v{vC+3}, v{vL}, 2, 2")
    p(f"v_lshl_add_u32 v{vC}, v{vC+2}, 2, v{vC+3}")
    p(f"v_lshlrev_b32 v{vC}, 7, v{vC}")
    p(f"v_lshl_add_u32 v{vC}, v{vC+1}, 5, v{vC}")
    p(f"v_lshl_add_u32 v{vC}, v{vC+4}, 3, v{vC}")
    p(f"v_add_u32 v{vC}, s{sRING}, v{vC}")
    p(f"v_lshrrev_b32 v{vC+3}, 1, v{vC+3}")
    p(f"v_lshl_add_u32 v{vR}, v{vC+3}, 6, v{vC}")
    p(f"v_xor_b32 v{vC+3}, 1, v{vC+3}")
    p(f"v_lshl_add_u32 v{vR+1}, v{vC+3}, 6, v{vC}")
    p(f"s_lshl_b32 s{t0}, s{sI}, 2")
    p(f"s_sub_u32 s{t1}, 60, s{t0}")
    p(f"s_add_u32 s{t0}, s{t0}, s{sTB}")
    p(f"s_add_u32 s{t1}, s{t1}, s{sTB}")
    p(f"s_mul_i32 s{t0}, s{t0}, {288 * 1024}")
    p(f"s_mul_i32 s{t1}, s{t1}, {288 * 1024}")
    p(f"s_lshl_b32 s{t2}, s{sW}, 15")
    p(f"s_add_u32 s{t2}, s{t2}, {AWS}")
    p(f"s_add_u32 s{sAS}, s{t0}, s{t2}")
    p(f"s_add_u32 s{sAL}, s{t1}, s{t2}")
    p(f"s_mul_i32 s{t4}, s{sW}, {28 * 1024}")
    p(f"s_sub_u32 s{t4}, {256 * 1024}, s{t4}")
    p(f"s_add_u32 s{t5}, s{sAL}, s{t4}")
    p(f"s_add_u32 s{t4}, s{sAS}, s{t4}")
    p.seg("cmain")
    items = [(j, 'temp', (0, 1), True) for j in range(4)]
    items += [(j, 'hold', (0,), True) for j in range(4, 4 + HH)]
    items += [(j, 'temp', (0,), False) for j in range(4 + HH, 12 + HH)]
    NPRE = len(items)
    items += [(j, 'temp', (1,), True) for j in range(4 + HH, 12 + HH)]
    items += [(j, 'held', (1,), False) for j in range(4, 4 + HH)]
    items += [(j, 'temp', (0, 1), True) for j in range(12 + HH, 36)]
    NI = len(items)
    pool = [q for q in range(64, 244, 4) if q != 172]
    WT = [[pool.pop(), pool.pop()], [pool.pop(), pool.pop()]]
    NPOOL = len(pool)
    heldq = [0] * (NI + 2)
    for n in range(NI):
        heldq[n] = 2 * (sum(1 for m in range(min(n + 2, NI)) if items[m][1] == 'hold') - sum(1 for m in range(n) if items[m][1] == 'held'))
    alist = [(n, tb) for n in range(NI) for tb in items[n][2]]
    areg, wreg = {}, {}
    st = {'a': 0, 'polled': False, 'checked': False, 'tcount': 0}
    firstL = next(k for k, (n, tb) in enumerate(alist) if n >= NPRE)
    PD = int(os.environ.get('PDIST', 8))
    def feasible(cur, k):
        x = alist[k][0]
        if sum(1 for q in range(k + 1) if alist[q][0] >= cur) > DMAX: return False
        for tau in range(cur, x + 1):
            if heldq[tau] + sum(1 for q in range(k + 1) if alist[q][0] >= tau) > NPOOL: return False
        return True
    def aissue(cur, limit=None):
        while st['a'] < len(alist) and (limit is None or st['a'] < limit) and feasible(cur, st['a']):
            k = st['a']
            if k == firstL - PD:
                vmc.issue("F", FPOLL)
            if k == firstL:
                vmc.wait(["F"])
                cstamp(p, 44)
                fcheck(0xf0, "l")
                cstamp(p, 45)
            n, tb = alist[k]
            j = items[n][0]
            r = pool.pop(0)
            areg[(n, tb)] = r
            if j < 4:
                vmc.issue(("A", n), f"buffer_load_dwordx4 {vr(r)}, v{vST}, {WS}, s{t5 if tb else t4} offen offset:{j * 1024} sc1")
            else:
                p(f"s_add_u32 s{t2}, s{sAL if tb else sAS}, {((j - 4) >> 2) * 4096}")
                vmc.issue(("A", n), f"buffer_load_dwordx4 {vr(r)}, v{vST}, {WS}, s{t2} offen offset:{((j - 4) & 3) * 1024} sc1")
            st['a'] += 1
    def treads(n):
        j, wm = items[n][:2]
        if wm == 'held':
            return 0
        if wm == 'hold':
            wreg[j] = [pool.pop(0), pool.pop(0)]
        else:
            wreg[j] = WT[st['tcount'] & 1]; st['tcount'] += 1
        for cb in range(2):
            o = (j % NS) * 2048
            w = wreg[j][cb]
            p(f"ds_read_b64_tr_b16 v[{w}:{w+1}], v{vR+cb} offset:{o}")
            p(f"ds_read_b64_tr_b16 v[{w+2}:{w+3}], v{vR+cb} offset:{o + 1024}")
        return 4
    cstamp(p, 41)
    for j in range(4, NS):
        wload(j)
    if not X('NOBX'):
        p(f"s_cmp_lg_u32 s{sBX}, 0")
        p("s_cbranch_scc1 L_nobx")
        p("s_barrier")
        p.label("L_nobx")
    cstamp(p, 42)
    vmc.wait(["F"])
    fcheck(0xf0f, "s")
    cstamp(p, 43)
    aissue(0)
    vmc.wait([("W", 0)])
    treads(0)
    for n in range(NI):
        j, wm, rows, rel = items[n]
        w = wreg[j]
        if n + 1 < NI:
            vmc.wait([("W", items[n + 1][0]), ("A", n)])
            k = treads(n + 1)
            p(f"s_waitcnt lgkmcnt({k})")
        else:
            vmc.wait([("A", n)], "lgkmcnt(0)")
        if n % 8 == 0: cstamp(p, 32 + n // 8)
        for cb in range(2):
            for tb in rows:
                a = AA(cb, tb)
                c = "0" if n == 0 else vr(a, 16)
                p(f"{MF} {vr(a,16)}, {vr(w[cb])}, {vr(areg[(n, tb)])}, {c}")
        for tb in rows:
            pool.append(areg[(n, tb)])
        if wm == 'held':
            pool.extend(w)
        if rel and j + NS < 36:
            wload(j + NS)
        aissue(n + 1)
    vC = 217
    stamp(p, 26)
    p(f"v_add_u32 v{vC}, s{sRING}, v{vST}")
    p(f"s_lshl_b32 s{t0}, s{sW}, 11")
    p(f"v_add_u32 v{vC+1}, s{t0}, v{vST}")
    p(f"v_add_u32 v{vC+2}, s{sVO}, v{vC+1}")
    p(f"v_add_u32 v{vC+3}, s{sVN}, v{vC+1}")
    p(f"v_add_u32 v{vC+4}, {MISC + 8192}, v{vC+1}")
    p("s_nop 2")
    for q in range(16):
        p(f"ds_write_b128 v{vC}, {vr(q*4)} offset:{q*1024}")
    p(f"s_lshr_b32 s{t0}, s{sW}, 1")
    p(f"s_and_b32 s{t1}, s{t0}, 1")
    p(f"s_lshr_b32 s{t0}, s{t0}, 1")
    p(f"s_sub_u32 s{t2}, 15, s{sI}")
    p(f"s_cmp_eq_u32 s{t1}, 0")
    p(f"s_cselect_b32 s{t2}, s{sI}, s{t2}")
    p(f"s_lshl_b32 s{t2}, s{t2}, 2")
    p(f"s_add_u32 s{t2}, s{t2}, s{sTB}")
    p(f"s_lshl_b32 s{t2}, s{t2}, 15")
    p(f"s_lshl_b32 s{t3}, s{sCB}, 7")
    p(f"s_add_u32 s{t2}, s{t2}, s{t3}")
    p(f"s_lshl_b32 s{t3}, s{t0}, 6")
    p(f"s_add_u32 s{t2}, s{t2}, s{t3}")
    p(f"s_and_b32 s{t3}, s{sW}, 1")
    p(f"s_lshl_b32 s{t3}, s{t3}, 5")
    p(f"s_add_u32 s{t2}, s{t2}, s{t3}")
    p(f"v_and_b32 v{vC+5}, 31, v{vL}")
    p(f"v_lshlrev_b32 v{vC+5}, 10, v{vC+5}")
    p(f"v_lshrrev_b32 v{vC+6}, 5, v{vL}")
    p(f"v_lshl_add_u32 v{vC+5}, v{vC+6}, 4, v{vC+5}")
    p("s_waitcnt lgkmcnt(0)")
    p("s_barrier")
    for w in range(8):
        a, o = ((vC + 1, w * 16384) if w < 4 else (vC + 2, (w - 4) * 16384) if w < 6 else (vC + 3, 0) if w == 6 else (vC + 4, 0))
        for q in range(2):
            p(f"ds_read_b128 {vr(64 + w*8 + q*4)}, v{a} offset:{o + q * 1024}")
    for w in range(1, 8):
        p(f"s_waitcnt lgkmcnt({2 * (7 - w)})")
        for i in range(8):
            p(f"v_add_f32 v{64+i}, v{64+i}, v{64 + w*8 + i}")
    for i in range(4):
        p(f"v_cvt_pk_bf16_f32 v{i}, v{64+2*i}, v{65+2*i}")
    p("s_nop 1")
    p("v_permlane32_swap_b32 v0, v2")
    p("v_permlane32_swap_b32 v1, v3")
    p("s_nop 1")
    p(f"buffer_store_dwordx4 v[0:3], v{vC+5}, {sr(S_OUT)}, s{t2} offen")
    if STAMPS:
        stamp(p, 27)
        p("s_waitcnt vmcnt(0)")
        stamp(p, 28); stamp_real(p, 63)
        p(f"s_lshl_b32 s{t0}, s{sL}, 3")
        p(f"s_add_u32 s{t0}, s{t0}, s{sW}")
        p(f"s_lshl_b32 s{t0}, s{t0}, 8")
        p(f"s_add_u32 s{t0}, s{t0}, {DBGOFF}")
        p(f"v_lshlrev_b32 v{vC}, 2, v{vL}")
        p(f"buffer_store_dword v{vSTAMP}, v{vC}, {WS}, s{t0} offen")
    p.label("L_end")
    p("s_endpgm")
    def need_check(tile, tag):
        top, ok = newlab("nd" + tag), newlab("ndok" + tag)
        p(f"s_sub_u32 s{t9}, 15, s{tile}")
        p(f"s_min_u32 s{t9}, s{t9}, s{tile}")
        p(f"s_lshl_b32 s{t9}, s{t9}, 3")
        p(f"s_lshl_b64 s[{t2}:{t3}], 0xff, s{t9}")
        p(f"s_lshr_b32 s{t9}, s{tile}, 3")
        p(f"s_lshl_b32 s{t9}, s{t9}, 5")
        p.label(top)
        p(f"v_cmp_ne_u32 vcc, 1, v{vPD}")
        p("s_nop 1")
        p(f"s_and_b64 s[{t10}:{t11}], vcc, s[{t2}:{t3}]")
        p(f"s_cbranch_scc0 {ok}")
        p("s_sleep 1")
        p(f"buffer_load_dword v{vPD}, v{vPA}, {WS}, s{t9} offen sc1")
        p("s_waitcnt vmcnt(0)")
        p(f"s_sub_u32 s{sTO}, s{sTO}, 1")
        p(f"s_cbranch_scc0 {top}")
        p(f"s_mov_b32 s{sTO}, 0")
        p.label(ok)
    def loader(tag):
        def piece(src, k):
            return f"buffer_load_dwordx4 v{vST}, {WS}, s{src} offen offset:{(k & 3) * 1024} sc1 lds"
        skipk, skipv = newlab("skipk"), newlab("skipv")
        p(f"s_mov_b32 s{t7}, s{sT}")
        p(f"s_sub_u32 s{sT}, s{sR}, 1")
        p(f"s_cmp_ge_u32 s{sT}, s{sI}")
        p(f"s_addc_u32 s{sT}, s{sT}, 0")
        p(f"s_add_u32 s{t8}, s{sR}, 1")
        p(f"s_cmp_ge_u32 s{t8}, s{sN}")
        p(f"s_cbranch_scc1 {skipk}")
        need_check(sT, tag)
        if tag == "i": cstamp(p, 48)
        p(f"s_lshl_b32 s{t6}, s{sT}, 15")
        p(f"s_add_u32 s{t5}, s{sKB}, s{t6}")
        p(f"s_mov_b32 m0, s{sKM}")
        p(f"s_add_u32 s{t9}, s{t5}, 4096")
        for k in range(8):
            if k == 4:
                p("s_add_u32 m0, m0, 4096"); p("s_nop 0")
            p(piece(t5 if k < 4 else t9, k))
        p.label(skipk)
        p(f"s_cmp_lg_u32 s{sW4}, 0")
        p(f"s_cselect_b32 s{t6}, s{sT}, s{t7}")
        p(f"s_cselect_b32 s{t9}, 1, 0")
        p(f"s_cselect_b32 s{t5}, 99, s{t8}")
        p(f"s_add_u32 s{t9}, s{t8}, s{t9}")
        p(f"s_cmp_gt_u32 s{t9}, s{sN}")
        p(f"s_cbranch_scc1 {skipv}")
        p(f"s_cmp_lt_u32 s{t5}, 3")
        p(f"s_cbranch_scc1 {skipv}")
        p(f"s_lshl_b32 s{t6}, s{t6}, 15")
        p(f"s_add_u32 s{t5}, s{sVB}, s{t6}")
        p(f"s_mov_b32 m0, s{sVM}")
        p(f"s_add_u32 s{t9}, s{t5}, 4096")
        for k in range(8):
            if k == 4:
                p("s_add_u32 m0, m0, 4096"); p("s_nop 0")
            p(piece(t5 if k < 4 else t9, k))
        p.label(skipv)
        p(f"s_xor_b32 s{sKM}, s{sKM}, 0x8000")
        p(f"s_xor_b32 s{sVM}, s{sVM}, 0x38000")
        p(f"s_cmp_ge_u32 s{sR}, s{sI}")
        p(f"s_addc_u32 s{t9}, s{sR}, 0")
        p(f"s_cmp_ge_u32 s{t9}, 8")
        p(f"s_cselect_b32 s{t9}, 32, 0")
        p(f"buffer_load_dword v{vPD}, v{vPA}, {WS}, s{t9} offen sc1")
    p.seg("hook")
    p.label("L_hook")
    p(f"s_cmp_lg_u32 s{sG}, 0")
    p("s_cbranch_scc1 L_hook1")
    p(f"s_cmp_lg_u32 s{sR}, 1")
    p("s_cbranch_scc1 L_hookld")
    p.seg("idle")
    stamp(p, 24)
    KV, XA, va, vb, vc, vn, vgo = 128, NEGM, 173, 174, 175, vPE, vPB
    p(f"s_lshl_b32 s{t0}, s{sW4}, 12")
    p(f"s_add_u32 s{t0}, s{t0}, {MISC + 8192}")
    p(f"v_add_u32 v{vc}, s{t0}, v{vST}")
    p(f"v_mov_b32 v{vn}, v{NEGM}")
    for s in range(2):
        p(f"ds_read_b128 {vr(PQ + 4*s)}, v{vc} offset:{s*1024}")
    loader("i")
    cstamp(p, 49)
    p("s_waitcnt lgkmcnt(0)")
    for s in range(2):
        p(f"ds_read_b128 {vr(KV + 4*s)}, v{vc} offset:{2048 + s*1024}")
    phi_inplace(PQ, 4, XA)
    phi_inplace(PQ + 4, 4, XA)
    ONE, OUT = KV + 8, KV
    for i in range(4):
        p(f"v_mov_b32 v{ONE+i}, 0x3f803f80")
    p(f"v_and_b32 v{va}, 16, v{vL}")
    p(f"v_cmp_ne_u32 vcc, 0, v{va}")
    p("s_waitcnt lgkmcnt(0)")
    p(f"{MF} {vr(XA,16)}, {vr(PQ)}, {vr(KV)}, 0")
    p(f"{MF} {vr(XA,16)}, {vr(PQ+4)}, {vr(KV+4)}, {vr(XA,16)}")
    p(f"s_lshl_b32 s{t0}, s{sL}, 2")
    p(f"s_add_u32 s{t0}, s{t0}, s{sW4}")
    p(f"s_lshl_b32 s{t0}, s{t0}, 12")
    p(f"s_add_u32 s{t0}, s{t0}, {KVP}")
    p("s_nop 7")
    for i in range(8):
        p(f"v_cndmask_b32 v{OUT+i}, v{XA+i}, v{XA+8+i}, vcc")
    p(f"{MF} {vr(XA,16)}, {vr(PQ)}, {vr(ONE)}, 0")
    p(f"{MF} {vr(XA,16)}, {vr(PQ+4)}, {vr(ONE)}, {vr(XA,16)}")
    for q in range(2):
        p(f"buffer_store_dwordx4 {vr(OUT + q*4)}, v{vST}, {WS}, s{t0} offen offset:{q*1024} sc1")
    p("s_nop 9")
    for i in range(8):
        p(f"v_cndmask_b32 v{OUT+8+i}, v{XA+i}, v{XA+8+i}, vcc")
    for q in range(2, 4):
        p(f"buffer_store_dwordx4 {vr(OUT + q*4)}, v{vST}, {WS}, s{t0} offen offset:{q*1024} sc1")
    for i in range(16):
        p(f"v_mov_b32 v{NEGM+i}, v{vn}")
    cstamp(p, 50)
    p("s_waitcnt vmcnt(4)")
    stamp(p, 25)
    p("s_barrier")
    p(f"s_mov_b32 s{sR}, 2")
    loader("j")
    p(f"s_mov_b32 s{sHK2}, 4")
    p(f"s_setpc_b64 s[{LKB}:{LKB+1}]")
    p.seg("hookld")
    p.label("L_hookld")
    def grp_flag_addr():
        p(f"v_lshrrev_b32 v{va}, 2, v{vL}")
        p(f"v_lshlrev_b32 v{vb}, 12, v{va}")
        p(f"v_lshlrev_b32 v{va}, 7, v{va}")
        p(f"v_and_b32 v{vc}, 3, v{vL}")
        p(f"v_lshl_add_u32 v{va}, v{vc}, 2, v{va}")
    p(f"s_sub_u32 s{t2}, s{sR}, s{sR1}")
    p(f"s_add_u32 s{t3}, s{t2}, 1")
    p(f"s_cmp_lt_u32 s{t2}, 2")
    p(f"s_cselect_b32 s{sJOB}, s{t3}, 0")
    p(f"s_sub_u32 s{t2}, s{sR}, s{sRO}")
    p(f"s_add_u32 s{t3}, s{t2}, 3")
    p(f"s_cmp_lt_u32 s{t2}, 2")
    p(f"s_cselect_b32 s{sJOB}, s{t3}, s{sJOB}")
    p(f"s_cmp_eq_u32 s{t2}, 2")
    p(f"s_cselect_b32 s{t2}, {F_O}, 0")
    p(f"s_cmp_eq_u32 s{sR}, 3")
    p(f"s_cselect_b32 s{t2}, {F_B}, s{t2}")
    p(f"s_cmp_eq_u32 s{t2}, 0")
    p("s_cbranch_scc1 L_nofo")
    p(f"s_add_u32 s{t2}, s{t2}, s{sW4}")
    flag_store(va, vb, 0, t2)
    p.label("L_nofo")
    p(f"s_cmp_lg_u32 s{sR}, s{sFH}")
    p("s_cbranch_scc1 L_nohi")
    p(f"s_cmp_lg_u32 s{sW}, 0")
    p("s_cbranch_scc1 L_nohi")
    flag_store(va, vb, 8, base=FL2, lanes=8)
    p.label("L_nohi")
    p(f"s_cmp_lg_u32 s{sJOB}, 0")
    p("s_cbranch_scc1 L_jpre")
    p.seg("hookl2")
    p.label("L_jpreb")
    loader("r")
    p(f"s_cmp_lg_u32 s{sJOB}, 0")
    p("s_cbranch_scc1 L_jpost")
    p.seg("hookl3")
    p.label("L_jpostb")
    if not X('NOPF'):
        p(f"s_add_u32 s{t0}, s{sR}, {PFD}")
        p(f"s_sub_u32 s{t2}, s{t0}, s{sN}")
        p(f"s_cmp_gt_u32 s{t2}, 2")
        p("s_cbranch_scc1 L_nopf")
        p(f"s_mov_b32 s{sOUT}, 1")
        p(f"s_lshl_b32 s{t0}, s{sCB}, 7")
        p(f"s_cmp_eq_u32 s{t2}, 2")
        p("s_cbranch_scc1 L_pf2")
        p(f"v_lshlrev_b32 v{vc}, 10, v{vL}")
        p(f"v_add_u32 v{vc}, s{t0}, v{vc}")
        p(f"s_lshl_b32 s{t0}, s{sI}, 19")
        p(f"s_lshl_b32 s{t1}, s{sW4}, 17")
        p(f"s_add_u32 s{t0}, s{t0}, s{t1}")
        p(f"s_lshl_b32 s{t1}, s{t2}, 16")
        p(f"s_add_u32 s{t0}, s{t0}, s{t1}")
        p(f"buffer_load_dword v{vn}, v{vc}, {sr(S_WO)}, s{t0} offen")
        p.cur[-1].nodst = True
        p("s_branch L_nopf")
        p.label("L_pf2")
        p(f"v_and_b32 v{vc}, 15, v{vL}")
        p(f"v_lshlrev_b32 v{vc}, 10, v{vc}")
        p(f"v_add_u32 v{vc}, s{t0}, v{vc}")
        p(f"s_lshl_b32 s{t0}, s{sI}, 16")
        p(f"s_lshl_b32 s{t1}, s{sW4}, 14")
        p(f"s_add_u32 s{t0}, s{t0}, s{t1}")
        p(f"buffer_load_dword v{vn}, v{vc}, {sr(S_BWO)}, s{t0} offen")
        p.cur[-1].nodst = True
        p.label("L_nopf")
    p(f"s_setpc_b64 s[{LKB}:{LKB+1}]")
    RL = KV
    def fbase(dst):
        p(f"s_cmp_eq_u32 s{sJOB}, 1")
        p(f"s_cselect_b32 s{dst}, {FLG + 4*F_B}, {FLG + 4*F_K}" if False else f"s_cselect_b32 s{dst}, {4*F_B}, {4*F_K}")
        p(f"s_lshl_b32 s{t1}, s{sHP}, 11")
        p(f"s_add_u32 s{dst}, s{dst}, s{t1}")
        p(f"s_add_u32 s{dst}, s{dst}, {FLG}")
    p.seg("jpre")
    p.label("L_jpre")
    p(f"s_cmp_eq_u32 s{sJOB}, 2")
    p("s_cbranch_scc1 L_red")
    p(f"s_cmp_eq_u32 s{sJOB}, 4")
    p("s_cbranch_scc1 L_jpreb")
    grp_flag_addr()
    fbase(t0)
    p(f"buffer_load_dword v{vPK}, v{va}, {WS}, s{t0} offen sc1")
    p("s_branch L_jpreb")
    p.seg("red")
    p.label("L_red")
    p(f"s_lshl_b32 s{t0}, s{sW4}, 12")
    p(f"s_add_u32 s{t0}, s{t0}, {MISC + 8192}")
    p(f"v_add_u32 v{vb}, s{t0}, v{vST}")
    p(f"v_and_b32 v{vc}, 3, v{vL}")
    p(f"v_lshlrev_b32 v{vc}, 4, v{vc}")
    for k in range(4):
        p(f"ds_read_b128 {vr(RL + 4*k)}, v{vb} offset:{k * 1024}")
    red_slice_base(t0, KVT)
    p(f"s_lshl_b32 s{t1}, s{sHP}, 12")
    p(f"s_add_u32 s{t0}, s{t0}, s{t1}")
    p("s_waitcnt lgkmcnt(0)")
    for i in range(4):
        p(f"v_add_f32 v{RL+i}, v{RL+i}, v{RL+4+i}")
        p(f"v_add_f32 v{RL+8+i}, v{RL+8+i}, v{RL+12+i}")
    for i in range(4):
        p(f"v_add_f32 v{RL+i}, v{RL+i}, v{RL+8+i}")
    for sh in ("row_shr:4", "row_shr:8"):
        for i in range(4):
            p(f"v_add_f32_dpp v{RL+i}, v{RL+i}, v{RL+i} {sh} row_mask:0xf bank_mask:0xf bound_ctrl:0")
    for sw in ("v_permlane16_swap_b32", "v_permlane32_swap_b32"):
        for i in range(4):
            p(f"v_mov_b32 v{RL+4+i}, v{RL+i}")
        for i in range(4):
            p(f"{sw} v{RL+i}, v{RL+4+i}")
        for i in range(4):
            p(f"v_add_f32 v{RL+i}, v{RL+i}, v{RL+4+i}")
    p("s_mov_b64 exec, 0xf000")
    p(f"buffer_store_dwordx4 {vr(RL)}, v{vc}, {WS}, s{t0} offen sc1")
    p("s_mov_b64 exec, -1")
    p("s_branch L_jpreb")
    p.seg("jpost")
    p.label("L_jpost")
    p(f"s_cmp_eq_u32 s{sJOB}, 4")
    p("s_cbranch_scc1 L_oph")
    p("s_waitcnt vmcnt(17)")
    p(f"s_cmp_eq_u32 s{sJOB}, 2")
    p("s_cbranch_scc1 L_fk")
    p(f"v_cmp_ne_u32 vcc, 1, v{vPK}")
    fbase(t0)
    p("s_cbranch_vccz L_jok")
    poll_block(p, [(vPK, va, S_WS, f"s{t0}", 1)], "fb")
    p.label("L_jok")
    p(f"s_cmp_eq_u32 s{sJOB}, 3")
    p("s_cbranch_scc1 L_kvt")
    p(f"v_lshl_add_u32 v{vb}, v{vc}, 4, v{vb}")
    red_slice_base(t0, KVP)
    p(f"s_lshl_b32 s{t1}, s{sHP}, 18")
    p(f"s_add_u32 s{t0}, s{t0}, s{t1}")
    p(f"s_lshl_b32 s{t1}, s{sW4}, 12")
    p(f"s_add_u32 m0, s{t1}, {MISC + 8192}")
    for k in range(4):
        p(f"s_add_u32 s{t1}, s{t0}, {k * (65536 - 1024)}")
        p(f"buffer_load_dwordx4 v{vb}, {WS}, s{t1} offen offset:{k * 1024} sc1 lds")
    p("s_branch L_jpostb")
    p.label("L_kvt")
    p(f"s_lshl_b32 s{t1}, s{sW4}, 10")
    p(f"s_add_u32 m0, s{t1}, {MISC + 8192}")
    p(f"s_lshl_b32 s{t0}, s{sHP}, 12")
    p(f"s_add_u32 s{t0}, s{t0}, s{t1}")
    p(f"s_add_u32 s{t0}, s{t0}, {KVT}")
    p(f"buffer_load_dwordx4 v{vST}, {WS}, s{t0} offen sc1 lds")
    p("s_branch L_jpostb")
    p.label("L_fk")
    flag_store(va, vb, F_K, sW4)
    p("s_branch L_jpostb")
    p.seg("oph")
    p.label("L_oph")
    vn = vPK
    p(f"s_lshl_b32 s{t1}, s{sW4}, 11")
    p(f"s_add_u32 s{t1}, s{t1}, {MISC}")
    p(f"v_add_u32 v{vc}, s{t1}, v{vST}")
    p(f"v_add_u32 v{va}, {MISC}, v{vST}")
    for s in range(2):
        p(f"ds_read_b128 {vr(PQ + 4*s)}, v{vc} offset:{s*1024}")
    for q in range(4):
        p(f"ds_read_b128 {vr(KV + q*4)}, v{va} offset:{8192 + q*1024}")
    p(f"v_mov_b32 v{vn}, v{NEGM}")
    p("s_waitcnt lgkmcnt(0)")
    phi_inplace(PQ, 4, XA)
    phi_inplace(PQ + 4, 4, XA)
    gate_check(vgo, va, vb, True, "o")
    p(f"v_and_b32 v{va}, 16, v{vL}")
    p(f"v_cmp_ne_u32 vcc, 0, v{va}")
    for i in range(8):
        p(f"v_cvt_pk_bf16_f32 v{XA+i}, v{KV+2*i}, v{KV+2*i+1}")
    for i in range(8):
        p(f"v_cndmask_b32 v{KV+i}, v{XA+i}, 0, vcc")
    for i in range(8):
        p(f"v_cndmask_b32 v{KV+8+i}, 0, v{XA+i}, vcc")
    p("s_nop 1")
    p(f"{MF} {vr(XA,16)}, {vr(KV+4)}, {vr(PQ)}, 0")
    p(f"{MF} {vr(XA,16)}, {vr(KV+12)}, {vr(PQ+4)}, {vr(XA,16)}")
    p(f"s_lshl_b32 s{t0}, s{sRB}, 2")
    p(f"s_add_u32 s{t0}, s{t0}, s{sW4}")
    p(f"s_mul_i32 s{t0}, s{t0}, 288")
    p(f"s_lshl_b32 s{t1}, s{sHP}, 1")
    p(f"s_add_u32 s{t0}, s{t0}, s{t1}")
    p(f"s_add_u32 s{t0}, s{t0}, 256")
    p(f"s_lshl_b32 s{t0}, s{t0}, 10")
    p(f"s_add_u32 s{t0}, s{t0}, {AWS}")
    p("s_nop 7")
    p(f"v_add_f32 v{va}, 0x358637bd, v{XA}")
    p(f"v_add_f32 v{vb}, 0x358637bd, v{XA+8}")
    p(f"{MF} {vr(XA,16)}, {vr(KV)}, {vr(PQ)}, 0")
    p(f"{MF} {vr(XA,16)}, {vr(KV+8)}, {vr(PQ+4)}, {vr(XA,16)}")
    p(f"v_rcp_f32 v{va}, v{va}")
    p(f"v_rcp_f32 v{vb}, v{vb}")
    p(f"v_sub_f32 v{vgo}, 2.0, v{vgo}")
    p(f"v_mul_f32 v{va}, v{va}, v{vgo}")
    p(f"v_mul_f32 v{vb}, v{vb}, v{vgo}")
    p("s_nop 8")
    for i in range(16):
        p(f"v_mul_f32 v{XA+i}, v{XA+i}, v{va if i < 8 else vb}")
    for i in range(8):
        p(f"v_cvt_pk_bf16_f32 v{KV+i}, v{XA+2*i}, v{XA+1+2*i}")
    for s in range(2):
        p(f"buffer_store_dwordx4 {vr(KV + 4*s)}, v{vST}, {WS}, s{t0} offen offset:{s*1024} sc1")
    for i in range(16):
        p(f"v_mov_b32 v{NEGM+i}, v{vn}")
    p("s_branch L_jpostb")
    p.seg("hook1")
    p.label("L_hook1")
    p(f"s_mov_b32 s{sHK2}, 4")
    p(f"s_mov_b32 s{sHK}, 0")
    p(f"s_setpc_b64 s[{LKB}:{LKB+1}]")
    for k in (1, 2):
        p.seg(f"h2c{k}")
        p.label(f"L_h2c{k}")
        p(f"s_sub_u32 s{sHK2}, s{sHK2}, 1")
        p(f"s_cmp_lt_u32 s{sHK2}, 2")
        p(f"s_cbranch_scc1 L_h2d{k}")
        stash_stores([k - 1])
        p(f"s_branch L_h2b{k}")
        p.label(f"L_h2d{k}")
        stash_stores([k + 1])
        p(f"s_branch L_h2b{k}")
    p.seg("tramps")
    for k, sb, half in tramps:
        p.label(f"L_tr{k}")
        p(f"s_call_b64 s[{LKA}:{LKA+1}], L_rare{sb}{half}")
        p(f"s_branch L_bk{k}")
    for sb in range(2):
        for half in range(2):
            p.seg(f"rare{sb}{half}")
            p.label(f"L_rare{sb}{half}")
            lin = LS[(2 * sb + half) & 3]
            p(f"v_log_f32 v{vU+4}, v{lin}")
            p("s_nop 15")
            p("s_nop 7")
            maxtree(sb, vU + 2, vU + 4)
            p(f"v_max_f32 v{vU+2}, 0, v{vU+2}")
            p(f"v_exp_f32 v{vU+3}, -v{vU+2}")
            for i in range(32):
                p(f"v_sub_f32 v{S(0)+i}, v{S(0)+i}, v{vU+2}")
            for i in range(16):
                p(f"v_sub_f32 v{NEGM+i}, v{NEGM+i}, v{vU+2}")
            for i in range(64):
                p(f"v_mul_f32 v{i}, v{i}, v{vU+3}")
            p(f"v_mul_f32 v{lin}, v{lin}, v{vU+3}")
            seq = []
            for n in range(E0, 32):
                seq += gap_ops(n, None, sb, with_cur=False) if n < 16 else gap_ops(n - 16, sb, sb ^ 1)
            chk = "CHECK" + "ab"[half]
            for t, b in seq:
                if t == chk and b == sb: break
                if t.startswith("CHECK") or t.startswith("v_cmp"): continue
                if half == 1 and b == sb and t.startswith("v_add_f32") and f"v_add_f32 v{lin}," in t:
                    continue
                p(t)
                if t.startswith("v_exp"): p("s_nop 0")
            p("s_nop 1")
            p(f"s_setpc_b64 s[{LKA}:{LKA+1}]")
    errs = []
    G0 = ["pro", "g0_pro"] + [f"g0_s{s}" for s in range(16)] + ["g0_tr", "apro"]
    G1 = ["pro", "g1_pro"] + [f"g1_s{s}" for s in range(16)] + ["g1_tr", "apro"]
    post = ["tail", "epi", "epi2", "help0", "help", "hook", "hookld", "hookl2", "hookl3", "help0", "help", "hx", "cpro", "cmain"]
    H0 = ["hook", "idle"]
    errs += p.check(G0 + ["pro3", "pro3L"] + H0 + ["pro3L_b"] + post)
    errs += p.check(G1 + ["pro0", "it1", "it2", "it3", "hook", "hook1", "it3_b", "it0", "it1", "it2", "it3L", "it3L_b"] + post)
    errs += p.check(["apro", "pro1", "it2", "it3"] + H0 + ["it3_b", "it0", "it1", "it2", "it3", "hook", "hookld", "hookl2", "hookl3", "it3_b", "it0"])
    errs += p.check(["apro", "pro2", "it3L"] + H0 + ["it3L_b", "tail", "epi", "epi1", "help", "hx", "cpro"])
    errs += p.check(["apro", "pro3"] + H0 + ["pro3_b", "it0", "it1"])
    for z in (["red", "hookl2", "jpost"], ["jpre", "hookl2", "jpost"], ["hookl2", "oph"]):
        errs += p.check(["it2", "it3", "hook", "hookld"] + z + ["hookl3", "it3_b", "it0"])
    for sb in range(2):
        for half in range(2):
            errs += p.check([f"rare{sb}{half}", "it0"][:1])
    return p, errs


def main():
    global STAMPS
    if '--stamps' in sys.argv:
        STAMPS = True; sys.argv.remove('--stamps')
    hdr = open(f'cdna_kernels/{NAME}.s.ref').read().split("; Override launch")[0]
    p, errs = gen()
    for e in errs:
        print("HAZARD", e)
    n = "fused_kernel"
    out = [hdr, f"; @launch kernel={n} grid=(256,1,1) block=(512,1,1) lds=163840\n",
           '.amdgcn_target "amdgcn-amd-amdhsa--gfx950"\n.text\n',
           f".globl {n}\n.p2align 8\n.type {n},@function\n{n}:\n", p.text(),
           '.section .rodata,"a"\n', f""".p2align 6
.amdhsa_kernel {n}
  .amdhsa_next_free_vgpr 256
  .amdhsa_next_free_sgpr 102
  .amdhsa_accum_offset 256
  .amdhsa_group_segment_fixed_size 0
  .amdhsa_kernarg_size 104
  .amdhsa_user_sgpr_count 2
  .amdhsa_user_sgpr_kernarg_segment_ptr 1
  .amdhsa_system_sgpr_workgroup_id_x 1
.end_amdhsa_kernel
"""]
    dst = sys.argv[1] if len(sys.argv) > 1 else f'cdna_kernels/{NAME}.s'
    open(dst, 'w').write("".join(out))
    print("wrote", dst, "errs", len(errs))

if __name__ == '__main__':
    main()
```

```python
import sys, os
from asmlib import Prog

NAME = 'gated_mix__compressed_kv_cla__linear_attn_block__prompt'
KWS, VWS, AWS = 0, 16 << 20, 32 << 20
KVP, KVT, GW, FLG = 52 << 20, 56 << 20, 57 << 20, 58 << 20
DBGOFF = 60 << 20
WS_BYTES = 64 << 20
LOG2E = 0x3fb8aa3b
MF = "v_mfma_f32_32x32x16_bf16"
M16 = "v_mfma_f32_16x16x32_bf16"
X = lambda k: bool(os.environ.get(k))
STAMPS = False

def vr(b, n=4):
    return f"v[{b}:{b+n-1}]"
def sr(b):
    return f"s[{b}:{b+3}]"

P_X, P_CKV, P_WQ, P_WUK, P_WUV, P_WO, P_BX, P_WQKV, P_BWO, P_GATE, P_OUT, P_DBG, P_WS = [64 + 2 * i for i in range(13)]
S_CKV, S_WUK, S_WUV, S_X, S_WQ, S_WQKV, S_WS, S_WO, S_BWO, S_OUT, S_GATE, S_DBG = [4 + 4 * i for i in range(12)]
WS = sr(S_WS)
sH, sI, sW, sG, sW4, sHP, sL, sN, sRB, sTO = range(90, 100)
t0, t1, t2, t3, t4, t5, t6, t7, t8, t9, t10, t11 = range(52, 64)
vSTAMP, vL, vST = 255, 254, 253
F_LO, F_HI, F_B, F_K, F_CS, F_CL, F_O = 0, 1, 4, 20, 8, 12, 16
LXS = [0, 32768]
LWS = [65536, 98304, 131072]
MISC = 65536
TIMEOUT = 1 << 18
GS = int(os.environ.get('GS', 4))
PFD = int(os.environ.get('PFD', 6))
FL2 = FLG + 32768
UR = int(os.environ.get('UR', 2))
FLAG0 = int(os.environ.get('FLAG0', 10))
HS = int(os.environ.get('HS', 2))
TRS = int(os.environ.get('TRS', 6))
need_check_fn = [None]


class VM:
    def __init__(self, p):
        self.p, self.q = p, []
    def issue(self, tag, text, cond=False):
        self.p(text)
        if not cond:
            self.q += [tag] * len(text.strip().split("\n"))
    def count_after(self, tags):
        idx = [k for k, t in enumerate(self.q) if t in tags]
        if not idx:
            return None
        return len(self.q) - 1 - max(idx)
    def wait(self, tags, extra=""):
        n = self.count_after(tags)
        if n is None:
            if extra: self.p(f"s_waitcnt {extra}")
            return
        assert n <= 63, n
        self.p(f"s_waitcnt vmcnt({n}) {extra}".rstrip())
        self.q = self.q[len(self.q) - n:] if n else []
    def wait_all(self, extra=""):
        self.p(f"s_waitcnt vmcnt(0) {extra}".rstrip()); self.q = []


REALS = {1: 56, 9: 57, 17: 58, 23: 59, 26: 60}
def stamp(p, idx):
    if not STAMPS: return
    p("s_memtime s[100:101]")
    p("s_waitcnt lgkmcnt(0)")
    p(f"v_writelane_b32 v{vSTAMP}, s100, {idx}")
    if idx in REALS and X('CST'): stamp_real(p, REALS[idx])
def cstamp(p, idx):
    if X('CST'): stamp(p, idx)
def stamp_real(p, idx):
    if not STAMPS: return
    p("s_memrealtime s[100:101]")
    p("s_waitcnt lgkmcnt(0)")
    p(f"v_writelane_b32 v{vSTAMP}, s100, {idx}")

def srd(p, s, lo, nbytes):
    p(f"s_mov_b32 s{s}, s{lo}")
    p(f"s_and_b32 s{s+1}, s{lo+1}, 0xffff")
    p(f"s_mov_b32 s{s+2}, {nbytes}")
    p(f"s_mov_b32 s{s+3}, 0x20000")

def spread(fill, nslots):
    out = [[] for _ in range(nslots)]
    k = len(fill); fi = 0
    for i in range(nslots):
        tgt = (k * (i + 1) + nslots - 1) // nslots
        while fi < tgt:
            out[i].append(fill[fi]); fi += 1
    return out

_lab = [0]
def newlab(s):
    _lab[0] += 1
    return f"L_{s}_{_lab[0]}"

def poll_block(p, loads, tag):
    top, done = newlab("poll" + tag), newlab("pdone" + tag)
    p.label(top)
    for vd, va, s, so, e in loads:
        p(f"buffer_load_dword v{vd}, v{va}, {sr(s)}, {so} offen sc1")
    p("s_waitcnt vmcnt(0)")
    poll_check(p, loads)
    p(f"s_cbranch_vccz {done}")
    p("s_sleep 4")
    p(f"s_sub_u32 s{sTO}, s{sTO}, 1")
    p(f"s_cbranch_scc0 {top}")
    p(f"s_mov_b32 s{sTO}, 0")
    p.label(done)

def poll_check(p, loads):
    for k, (vd, va, s, so, e) in enumerate(loads):
        if k == 0:
            p(f"v_cmp_ne_u32 vcc, {e}, v{vd}")
        else:
            p(f"v_cmp_ne_u32 s[{t10}:{t11}], {e}, v{vd}")
            p("s_nop 0")
            p(f"s_or_b64 vcc, vcc, s[{t10}:{t11}]")
    p("s_nop 1")


def gen():
    p = Prog()
    vXD, vWA, vWB2 = 208, 212, 214
    vXR, vWP, vXB, vWQ = 160, 162, 164, 168
    vPA, vPB, vPD, vPE, vPK = 248, 249, 250, 251, 252
    vT = 184
    vG, GX, GW_, GT, GW8 = 168, 224, 232, 208, 236
    vG1 = 171
    F_G = 24
    (sXb, sXc, sWa, sWb, sM4, sSTl, sSTh, sTB, sCB, sKB, sVB, sKM, sVM, sR, sLAST, sQB, sQ4, sPEND, sT, sTHR,
     sHK, sALL) = range(64, 86)
    sHK2 = 3
    sBX, sOUT, sCX, sFH, sR1, sRO, sJOB = 2, 64, 65, 66, 67, 68, 85
    LKA, LKB = 86, 88
    sXQ = 86
    KB = [0, 32768]
    VB_ = [LWS[1], LWS[2]]
    p.seg("pro")
    p("s_cmp_ge_u32 s2, 256")
    p("s_cbranch_scc1 L_end")
    if STAMPS: p(f"v_mov_b32 v{vSTAMP}, 0")
    stamp(p, 0); stamp_real(p, 62)
    p("s_load_dwordx16 s[64:79], s[0:1], 0")
    p("s_load_dwordx8 s[80:87], s[0:1], 64")
    p("s_load_dwordx2 s[88:89], s[0:1], 96")
    p(f"v_and_b32 v{vL}, 63, v0")
    p(f"v_lshrrev_b32 v{vT}, 6, v0")
    p(f"s_and_b32 s{t0}, s2, 7")
    p(f"s_lshr_b32 s{t1}, s2, 3")
    p(f"v_readfirstlane_b32 s{sW}, v{vT}")
    p(f"s_lshl_b32 s{sH}, s{t0}, 2")
    p(f"s_and_b32 s{t2}, s{t1}, 3")
    p(f"s_add_u32 s{sH}, s{sH}, s{t2}")
    p(f"s_lshr_b32 s{sI}, s{t1}, 2")
    p(f"s_lshr_b32 s{sG}, s{sW}, 2")
    p(f"s_and_b32 s{sW4}, s{sW}, 3")
    p(f"s_lshr_b32 s{sHP}, s{sH}, 1")
    p(f"s_lshl_b32 s{sL}, s{sH}, 3")
    p(f"s_add_u32 s{sL}, s{sL}, s{sI}")
    p(f"s_sub_u32 s{sN}, 16, s{sI}")
    p(f"s_sub_u32 s{t3}, 15, s{sI}")
    p(f"s_and_b32 s{t4}, s{sH}, 1")
    p(f"s_cmp_eq_u32 s{t4}, 0")
    p(f"s_cselect_b32 s{sRB}, s{sI}, s{t3}")
    p(f"s_mov_b32 s{sTO}, {TIMEOUT}")
    p(f"s_sub_u32 s{t10}, 3, s{sW4}")
    p(f"s_cmp_eq_u32 s{sG}, 0")
    p(f"s_cselect_b32 s{t10}, s{sW4}, s{t10}")
    p(f"v_lshlrev_b32 v{vST}, 4, v{vL}")
    l4, hi, r4 = vT + 1, vT + 2, vT + 3
    p(f"v_lshrrev_b32 v{l4}, 4, v{vL}")
    p(f"v_lshrrev_b32 v{hi}, 5, v{vL}")
    p(f"v_bfe_u32 v{r4}, v{vL}, 2, 2")
    p(f"v_lshrrev_b32 v{vT}, 3, v{vL}")
    p(f"v_lshlrev_b32 v{vT}, 10, v{vT}")
    p(f"v_and_b32 v{vT+5}, 7, v{vL}")
    p(f"v_xor_b32 v{vT+5}, v{vT+5}, v{l4}")
    p(f"v_lshlrev_b32 v{vT+5}, 4, v{vT+5}")
    p(f"v_xor_b32 v{vT+6}, 64, v{vT+5}")
    p(f"v_add_u32 v{vXD}, v{vT}, v{vT+5}")
    p(f"v_add_u32 v{vXD+1}, v{vT}, v{vT+6}")
    p(f"v_add_u32 v{vXD+1}, 7168, v{vXD+1}")
    p(f"v_add_u32 v{vXD+2}, {2*7168}, v{vXD}")
    p(f"v_add_u32 v{vXD+3}, {2*7168}, v{vXD+1}")
    p(f"s_lshl_b32 s{t5}, s{sH}, 8")
    p(f"v_lshlrev_b32 v{vT}, 13, v{l4}")
    p(f"v_add_u32 v{vT}, s{t5}, v{vT}")
    p(f"v_and_b32 v{vT+5}, 15, v{vL}")
    p(f"v_lshlrev_b32 v{vT+6}, 2, v{l4}")
    p(f"v_xor_b32 v{vT+5}, v{vT+5}, v{vT+6}")
    p(f"s_and_b32 s{t5}, s{sW4}, 1")
    p(f"s_lshl_b32 s{t5}, s{t5}, 1")
    p(f"v_xor_b32 v{vT+6}, s{t5}, v{vT+5}")
    p(f"v_lshl_add_u32 v{vWA}, v{vT+6}, 4, v{vT}")
    p(f"v_add_u32 v{vWA+1}, {4*8192 - 1024}, v{vWA}")
    p(f"v_mul_u32_u24 v{vT}, 3072, v{l4}")
    p(f"v_lshrrev_b32 v{vT+6}, 2, v{vT+5}")
    p(f"v_min_u32 v{vT+6}, 2, v{vT+6}")
    p(f"v_lshl_add_u32 v{vT}, v{vT+6}, 10, v{vT}")
    p(f"v_and_b32 v{vT+6}, 3, v{vT+5}")
    p(f"v_lshl_add_u32 v{vT}, v{vT+6}, 4, v{vT}")
    p(f"s_lshl_b32 s{t5}, s{sHP}, 6")
    p(f"v_add_u32 v{vWB2}, s{t5}, v{vT}")
    p(f"v_add_u32 v{vWB2+1}, {4*3072 - 1024}, v{vWB2}")
    p(f"v_bfe_u32 v{vT}, v{vL}, 2, 2")
    p(f"v_xor_b32 v{vT}, v{vT}, v{l4}")
    p(f"v_cmp_ne_u32 s[2:3], 3, v{vT}")
    p("s_waitcnt lgkmcnt(0)")
    stamp(p, 29)
    srd(p, S_X, P_X, 2 << 20)
    srd(p, S_WQ, P_WQ, 4 << 20)
    srd(p, S_WQKV, P_WQKV, 512 * 1536 * 2)
    srd(p, S_CKV, P_CKV, 2 << 20)
    srd(p, S_WUK, P_WUK, 4 << 20)
    srd(p, S_WUV, P_WUV, 4 << 20)
    srd(p, S_WS, P_WS, WS_BYTES)
    srd(p, S_WO, P_WO, 4 << 20)
    srd(p, S_BWO, P_BWO, 512 * 1024)
    srd(p, S_OUT, P_OUT, 2 << 20)
    srd(p, S_GATE, P_GATE, 1024)
    srd(p, S_DBG, P_DBG, 256)
    p(f"s_mov_b32 s{sQ4}, s{t10}")
    p(f"s_lshl_b32 s{t5}, s{sW4}, 15")
    p(f"s_lshl_b32 s{sXb}, s{sI}, 17")
    p(f"s_add_u32 s{sXb}, s{sXb}, s{t5}")
    p(f"s_lshl_b32 s{sXc}, s{t3}, 17")
    p(f"s_add_u32 s{sXc}, s{sXc}, s{t5}")
    p(f"s_lshl_b32 s{sWa}, s{sW4}, 16")
    p(f"s_mul_i32 s{sWb}, s{sW4}, {8*3072}")
    p(f"s_lshl_b32 s{sM4}, s{sW4}, 12")
    ROT = int(os.environ.get('ROT', 3))
    sROT = 0
    p(f"s_and_b32 s{sROT}, s{sH}, 3")
    p(f"s_lshl_b32 s{sROT}, s{sROT}, 1")
    if ROT == 0: p(f"s_mov_b32 s{sROT}, 0")
    if ROT == 1: p(f"s_mov_b32 s{sROT}, s{sI}")
    if ROT == 3: p(f"s_add_u32 s{sROT}, s{sROT}, s{sI}")
    NC = int(os.environ.get('NC', 2))
    sRO6 = 1
    p(f"s_and_b32 s{sRO6}, s{sROT}, 7")
    if NC:
        p(f"s_sub_u32 s{t0}, s{sRO6}, {8 - NC}")
        p(f"s_cmp_ge_u32 s{sRO6}, {8 - NC}")
        p(f"s_cselect_b32 s{sRO6}, s{t0}, s{sRO6}")
    def chunk(dst, s):
        if s >= 8 or NC == 0:
            p(f"s_add_u32 s{dst}, s{sROT}, {s}")
            p(f"s_and_b32 s{dst}, s{dst}, 7")
        elif s < NC:
            p(f"s_mov_b32 s{dst}, {s}")
        else:
            p(f"s_add_u32 s{dst}, s{sRO6}, {s}")
            p(f"s_sub_u32 s{t0}, s{dst}, {8 - NC}")
            p(f"s_cmp_ge_u32 s{dst}, 8")
            p(f"s_cselect_b32 s{dst}, s{t0}, s{dst}")
    if X('LB'): p("s_branch L_lb")
    p(f"s_cmp_lg_u32 s{sG}, 0")
    p("s_cbranch_scc1 L_g1")

    def setup2():
        p(f"s_sub_u32 s{t3}, 15, s{sI}")
        p(f"s_and_b32 s{t4}, s{sH}, 1")
        p(f"s_lshr_b32 s{t5}, s{sW}, 1")
        p(f"s_and_b32 s{t5}, s{t5}, 1")
        p(f"s_lshl_b32 s{t6}, s{t5}, 13")
        p(f"s_lshl_b32 s{t7}, s{sG}, 2")
        p(f"s_add_u32 s{t7}, s{t7}, s{sQ4}")
        p(f"s_lshl_b32 s{t7}, s{t7}, 12")
        p(f"s_sub_u32 s{sXQ}, s{t7}, s{t6}")
        p(f"s_lshl_b32 s{t8}, s{t4}, 2")
        p(f"s_add_u32 s{t8}, s{t8}, s{sW4}")
        p(f"s_lshl_b32 s{t8}, s{t8}, 12")
        p(f"v_bfe_u32 v{vT+4}, v{vL}, 1, 3")
        p(f"v_and_b32 v{vT}, 15, v{vL}")
        p(f"v_lshlrev_b32 v{vT}, 7, v{vT}")
        p(f"v_xor_b32 v{vT+5}, v{vT+4}, v{l4}")
        p(f"v_lshl_add_u32 v{vT}, v{vT+5}, 4, v{vT}")
        p(f"v_add_u32 v{vXR}, s{t6}, v{vT}")
        p(f"v_xor_b32 v{vXR+1}, 64, v{vXR}")
        p(f"v_and_b32 v{vT}, 31, v{vL}")
        p(f"v_lshlrev_b32 v{vT}, 7, v{vT}")
        p(f"v_xor_b32 v{vT+5}, v{vT+4}, v{hi}")
        p(f"v_lshl_add_u32 v{vT}, v{vT+5}, 4, v{vT}")
        p(f"v_add_u32 v{vXB}, s{t8}, v{vT}")
        for kk in range(1, 4):
            p(f"v_xor_b32 v{vXB+kk}, {kk*32}, v{vXB}")
        p(f"v_mul_u32_u24 v{vT}, 320, v{r4}")
        p(f"v_and_b32 v{vT+5}, 1, v{l4}")
        p(f"v_lshl_add_u32 v{vT}, v{vT+5}, 5, v{vT}")
        p(f"v_and_b32 v{vT+5}, 3, v{vL}")
        p(f"v_lshl_add_u32 v{vT}, v{vT+5}, 3, v{vT}")
        p(f"v_add_u32 v{vT}, 0x10000, v{vT}")
        p(f"v_lshl_add_u32 v{vT+5}, v{hi}, 12, v{vT}")
        p(f"s_lshl_b32 s{t7}, s{sG}, 6")
        p(f"v_xor_b32 v{vWP}, s{t7}, v{vT+5}")
        p(f"v_xor_b32 v{vWP+1}, 128, v{vT+5}")
        p(f"s_and_b32 s{t6}, s{sW}, 1")
        p(f"s_lshl_b32 s{t7}, s{t6}, 7")
        p(f"v_lshl_add_u32 v{vT+5}, v{l4}, 12, v{vT}")
        p(f"v_xor_b32 v{vWQ}, s{t7}, v{vT+5}")
        for e in range(1, 8):
            p(f"v_xor_b32 v{vWQ+e}, {e*32}, v{vWQ}")
        p(f"s_lshl_b32 s{t9}, s{sH}, 19")
        p(f"s_lshl_b32 s{t7}, s{t5}, 14")
        p(f"s_add_u32 s{t9}, s{t9}, s{t7}")
        p(f"s_lshl_b32 s{t7}, s{t6}, 12")
        p(f"s_add_u32 s{t9}, s{t9}, s{t7}")
        p(f"s_lshl_b32 s{t7}, s{sG}, 24")
        p(f"s_add_u32 s{t9}, s{t9}, s{t7}")
        p(f"s_lshl_b32 s{t7}, s{sI}, 15")
        p(f"s_add_u32 s{sSTl}, s{t9}, s{t7}")
        p(f"s_lshl_b32 s{t7}, s{t3}, 15")
        p(f"s_add_u32 s{sSTh}, s{t9}, s{t7}")
        p(f"s_lshr_b32 s{sTB}, s{sH}, 3")
        p(f"s_and_b32 s{sCB}, s{sH}, 7")
        p(f"v_and_b32 v{vT}, 7, v{vL}")
        p(f"v_lshlrev_b32 v{vPB}, 5, v{vT}")
        p(f"v_lshrrev_b32 v{vT+5}, 3, v{vL}")
        p(f"v_lshlrev_b32 v{vT+5}, 7, v{vT+5}")
        p(f"v_lshl_add_u32 v{vT+5}, v{vT}, 2, v{vT+5}")
        p(f"s_lshl_b32 s{t0}, s{sH}, 10")
        p(f"s_add_u32 s{t0}, s{t0}, {FL2}")
        p(f"v_add_u32 v{vPA}, s{t0}, v{vT+5}")
        p(f"s_lshl_b32 s{t0}, s{sW4}, 13")
        p(f"s_lshl_b32 s{t1}, s{sH}, 19")
        p(f"s_sub_u32 s{sKB}, {3 * 8192}, s{t0}")
        p(f"s_add_u32 s{sKB}, s{sKB}, s{t1}")
        p(f"s_sub_u32 s{sVB}, {4 * 8192}, s{t0}")
        p(f"s_and_b32 s{sVB}, s{sVB}, 0x7fff")
        p(f"s_add_u32 s{sVB}, s{sVB}, s{t1}")
        p(f"s_add_u32 s{sVB}, s{sVB}, {VWS}")
        p(f"s_add_u32 s{sKM}, s{t0}, {KB[0]}")
        p(f"s_add_u32 s{sVM}, s{t0}, {VB_[0]}")
        p(f"s_cmp_eq_u32 s{sG}, 0")
        p(f"s_cselect_b32 s{sQB}, s{sI}, s{t3}")
        p(f"s_add_u32 s{t1}, s{sI}, 1")
        p(f"s_cselect_b32 s{sLAST}, s{t1}, s{t3}")
        p(f"s_cmp_eq_u32 s{sG}, 0")
        p(f"s_cselect_b32 s{sLAST}, s{t1}, s{t3}")
        p(f"s_cmp_eq_u32 s{sLAST}, 1")
        p(f"s_cselect_b32 s{sLAST}, 0, s{sLAST}")
        p(f"s_mov_b32 s{sR}, 0")
        p(f"s_mov_b32 s{sPEND}, 1")
        p(f"s_mov_b32 s{sALL}, 0")
        p(f"s_mov_b32 s{sHK}, 1")
        p(f"s_mov_b32 s{sT}, 0")
        p(f"s_mov_b32 s{sTHR}, {'0x7f800000' if X('NORARE') else ('0x00000000' if X('ALLRARE') else '0x47800000')}")

    def dma_x_pieces(vm, s):
        slot = LXS[s & 1]
        def piece(g2, hf):
            def f():
                if g2 == 0 and hf == 0:
                    chunk(t1, s)
                    p(f"s_lshl_b32 s{t1}, s{t1}, 7")
                if hf == 0:
                    p(f"s_add_u32 m0, s{sM4}, {slot + g2 * 16384}")
                    p(f"s_add_u32 s{t0}, s{sXc if g2 else sXb}, s{t1}")
                S = S_X if s >= 8 else S_CKV
                for i4 in (2 * hf, 2 * hf + 1):
                    vm.issue(("X", s), f"buffer_load_dwordx4 v{vXD+i4}, {sr(S)}, s{t0} offen offset:{1024*i4} lds")
            return f
        return [piece(g2, hf) for g2 in range(2) for hf in range(2)]
    def dma_w_pieces(vm, s):
        slot = LWS[s % 3]
        def piece(g2, m):
            def f():
                if g2 == 0 and m == 0:
                    chunk(t1, s)
                    if s >= 8:
                        p(f"s_mul_i32 s{t2}, s{t1}, 196608")
                        p(f"s_add_u32 s{t2}, s{t2}, s{sWb}")
                    p(f"s_lshl_b32 s{t1}, s{t1}, 19")
                    p(f"s_add_u32 s{t1}, s{t1}, s{sWa}")
                if m == 0:
                    p(f"s_add_u32 m0, s{sM4}, {slot + g2 * 16384}")
                    p(f"s_add_u32 s{t0}, s{t1}, {g2 * 262144}")
                    for i2 in range(2):
                        vm.issue(("W", s), f"buffer_load_dwordx4 v{vWA+i2}, {sr(S_WQ if s >= 8 else S_WUK)}, s{t0} offen offset:{1024*i2} lds")
                    return
                p("s_add_u32 m0, m0, 2048")
                if s >= 8:
                    p(f"s_add_u32 s{t0}, s{t2}, {g2 * 98304}")
                    p("s_mov_b64 exec, s[2:3]")
                else:
                    p("s_nop 0")
                for i2 in range(2):
                    if s < 8:
                        vm.issue(("W", s), f"buffer_load_dwordx4 v{vWA+i2}, {sr(S_WUV)}, s{t0} offen offset:{1024*i2} lds")
                    else:
                        vm.issue(("W", s), f"buffer_load_dwordx4 v{vWB2+i2}, {sr(S_WQKV)}, s{t0} offen offset:{1024*i2} lds")
                if s >= 8: p("s_mov_b64 exec, -1")
            return f
        return [piece(g2, m) for g2 in range(2) for m in range(2)]
    def dma_x(vm, s):
        for f in dma_x_pieces(vm, s): f()
    def dma_w(vm, s):
        for f in dma_w_pieces(vm, s): f()
    def flag_store(va, vb, dword, per_wave=None, vm=None, base=FLG, lanes=1):
        p(f"v_mov_b32 v{va}, 1")
        p(f"v_mov_b32 v{vb}, 0" if lanes == 1 else f"v_lshlrev_b32 v{vb}, 2, v{vL}")
        p(f"s_lshl_b32 s{t0}, s{sL}, 7")
        if per_wave is not None:
            p(f"s_lshl_b32 s{t1}, s{per_wave}, 2")
            p(f"s_add_u32 s{t0}, s{t0}, s{t1}")
        p(f"s_add_u32 s{t0}, s{t0}, {base}")
        p(f"s_mov_b64 exec, {(1 << lanes) - 1}")
        t = f"buffer_store_dword v{va}, v{vb}, {WS}, s{t0} offen offset:{4*dword} sc1"
        vm.issue("FL", t) if vm else p(t)
        p("s_mov_b64 exec, -1")

    def gate_addr(va, vb, orow):
        p(f"v_bfe_u32 v{va}, v{vL}, 3, {2 if orow else 1}")
        p(f"v_lshlrev_b32 v{va}, 10, v{va}")
        p(f"v_and_b32 v{vb}, 7, v{vL}")
        p(f"v_lshl_add_u32 v{va}, v{vb}, 2, v{va}")
        if orow:
            p(f"s_and_b32 s{t0}, s{sH}, 1")
            p(f"s_lshl_b32 s{t0}, s{t0}, 2")
            p(f"s_add_u32 s{t0}, s{t0}, s{sW4}")
        else:
            p(f"s_lshl_b32 s{t0}, s{sG}, 2")
            p(f"s_add_u32 s{t0}, s{t0}, s{sQ4}")
        p(f"s_lshl_b32 s{t0}, s{t0}, 12")
        p(f"s_lshl_b32 s{t1}, s{sI}, 7")
        p(f"s_add_u32 s{t0}, s{t0}, s{t1}")
        p(f"s_add_u32 s{t0}, s{t0}, {FLG + 4*F_G}")
    def gate_check(vd, va, vb, orow, tag, off=0):
        ok, top = newlab("gok" + tag), newlab("gtop" + tag)
        p(f"v_cmp_eq_u32 vcc, 0, v{vd}")
        p("s_nop 1")
        p(f"s_cbranch_vccz {ok}")
        gate_addr(va, vb, orow)
        p.label(top)
        p(f"buffer_load_dword v{vd}, v{va}, {WS}, s{t0} offen offset:{off} sc1")
        p("s_waitcnt vmcnt(0)")
        p(f"v_cmp_eq_u32 vcc, 0, v{vd}")
        p("s_nop 1")
        p(f"s_cbranch_vccz {ok}")
        p("s_sleep 4")
        p(f"s_sub_u32 s{sTO}, s{sTO}, 1")
        p(f"s_cbranch_scc0 {top}")
        p(f"s_mov_b32 s{sTO}, 0")
        p.label(ok)

    BQ, BK, BV = 64, 64, 80
    QR = 176
    PQ = 208
    STASH = 216
    HELD = lambda tbi, cbi: (QR if tbi < 2 else STASH) + ((tbi & 1) * 2 + cbi) * 8
    CH1 = int(os.environ.get('CH1', 1))
    CH2 = int(os.environ.get('CH2', 1))
    O7 = eval(os.environ.get('O7', '[6,7,4,5,0,1,2,3]'))
    def stream(g):
        M, FR = [], {}
        def woff(s): return (s % 3 & 1) * 32768
        def xf(s, tt, k2):
            f = ('x', s, tt, k2)
            o = LXS[s & 1] + ((tt >> 2) * 16384 + (tt & 3) * 2048 if s < 8 else tt * 2048)
            FR[f] = [f"ds_read_b128 v[{{0}}:{{3}}], v{vXR+k2} offset:{o}"]
            return f
        def wf(s, e, k2):
            f = ('w', s, e, k2)
            o = woff(s) + k2 * 16384 + (g * 2048 if s < 8 else 0)
            FR[f] = [f"ds_read_b64_tr_b16 v[{{0}}:{{1}}], v{vWQ+e} offset:{o}", f"ds_read_b64_tr_b16 v[{{2}}:{{3}}], v{vWQ+e} offset:{o + 1024}"]
            return f
        def xb(s, kk):
            f = ('xb', s, kk)
            FR[f] = [f"ds_read_b128 v[{{0}}:{{3}}], v{vXB+kk} offset:{LXS[s & 1]}"]
            return f
        def wb(s, kk, k):
            f = ('wb', s, kk, k)
            o = woff(s) + kk * 8192 + 2048
            FR[f] = [f"ds_read_b64_tr_b16 v[{{0}}:{{1}}], v{vWP+k} offset:{o}", f"ds_read_b64_tr_b16 v[{{2}}:{{3}}], v{vWP+k} offset:{o + 1024}"]
            return f
        def mm(op, n, acc, fa, fb, first):
            return lambda R: f"{op} {vr(acc, n)}, {vr(R[fa])}, {vr(R[fb])}, {'0' if first else vr(acc, n)}"
        for s in range(8):
            order = O7 if s == 7 else list(range(8))
            if CH1: seq = [(tt, e, k2) for tt in order for e in range(4) for k2 in range(2)]
            else: seq = [(tt, e, k2) for k2 in range(2) for tt in order for e in range(4)]
            for n, (tt, e, k2) in enumerate(seq):
                x, w = xf(s, tt, k2), wf(s, e, k2)
                first = s == 0 and k2 == 0
                if g == 0:
                    acc = (tt * 4 + e) * 4
                    M.append((s, n >> 4, mm(M16, 4, acc, w, x, first), [w, x], acc))
                else:
                    acc = (((tt >> 1) * 4 + e) * 2 + (tt & 1)) * 4
                    M.append((s, n >> 4, mm(M16, 4, acc, x, w, first), [w, x], acc))
        for s in range(8, 16):
            for kk in range(4):
                if CH2: seq = [(e, qg, k2) for e in (2 * kk, 2 * kk + 1) for qg in range(2) for k2 in range(2)]
                else: seq = [((kk & 1) * 4 + e, qg, kk >> 1) for e in range(4) for qg in range(2)]
                for e, qg, k2 in seq:
                    x, w = xf(s, qg, k2), wf(s, e, k2)
                    acc = (qg * 8 + e) * 4
                    M.append((s, kk, mm(M16, 4, acc, w, x, s == 8 and k2 == 0), [x, w], acc))
                x = xb(s, kk)
                first = s == 8 and kk == 0
                if g == 0:
                    w = wb(s, kk, 0)
                    M.append((s, kk, mm(MF, 16, BQ, w, x, first), [x, w], BQ))
                else:
                    for k, acc in ((0, BK), (1, BV)):
                        w = wb(s, kk, k)
                        M.append((s, kk, mm(MF, 16, acc, x, w, first), [x, w], acc))
        return M, FR
    def pack(t):
        a, d = t * 16, HELD(t >> 1, t & 1)
        return [f"v_cvt_pk_bf16_f32 v{d+i}, v{a+2*i}, v{a+2*i+1}" for i in range(8)]
    def qcvt():
        p("s_mov_b32 s52, 0x3e0293ee")
        p("s_mov_b32 s53, 0x3e0293ee")
        for i in range(32):
            p(f"v_pk_mul_f32 v[{2*i}:{2*i+1}], v[{2*i}:{2*i+1}], s[52:53]")
        for i in range(32):
            p(f"v_cvt_pk_bf16_f32 v{QR+i}, v{2*i}, v{2*i+1}")
    def phi_inplace(r, n, TB):
        b, c = TB, TB + 2 * n
        for i in range(n):
            p(f"v_lshlrev_b32 v{b+2*i}, 16, v{r+i}")
            p(f"v_and_b32 v{b+1+2*i}, 0xffff0000, v{r+i}")
        for i in range(2 * n):
            p(f"v_min_f32 v{c+i}, 0, v{b+i}")
        for i in range(2 * n):
            p(f"v_mul_f32 v{c+i}, {LOG2E:#x}, v{c+i}")
        for i in range(2 * n):
            p(f"v_exp_f32 v{c+i}, v{c+i}")
        for i in range(2 * n):
            p(f"v_max_f32 v{b+i}, 0, v{b+i}")
        for i in range(2 * n):
            p(f"v_add_f32 v{b+i}, 0x358637bd, v{b+i}")
        for i in range(2 * n):
            p(f"v_add_f32 v{b+i}, v{b+i}, v{c+i}")
        for i in range(n):
            p(f"v_cvt_pk_bf16_f32 v{r+i}, v{b+2*i}, v{b+1+2*i}")
    def red_slice_base(dst, base):
        p(f"s_and_b32 s{dst}, s{sL}, 15")
        p(f"s_lshl_b32 s{dst}, s{dst}, 2")
        p(f"s_add_u32 s{dst}, s{dst}, s{sW4}")
        p(f"s_lshl_b32 s{dst}, s{dst}, 6")
        p(f"s_add_u32 s{dst}, s{dst}, {base}")
    LOWAT = [(8, 0)] * 8
    if X('LOWAT'): LOWAT = eval(os.environ['LOWAT'])
    def low_slot(vm, s, kk):
        for k in range(len(LOWAT)):
            if LOWAT[k] != (s, kk): continue
            tbi, cbi, half = k >> 2, (k >> 1) & 1, k & 1
            if tbi: p(f"s_add_u32 s{t9}, s{sSTl}, 8192")
            vm.issue("ST", f"buffer_store_dwordx4 {vr(HELD(tbi, cbi) + half*4)}, v{vST}, {WS}, s{t9 if tbi else sSTl} offen offset:{cbi*2048 + half*1024} sc1")
    vTA, vTD = 244, vPK
    def touch_job(job):
        if job[0] == 'x':
            p(f"v_lshlrev_b32 v{vTA}, 7, v{vL}")
            p(f"s_bitcmp1_b32 s{sH}, 1")
            p(f"s_cselect_b32 s{t0}, s{sXc}, s{sXb}")
            p(f"s_lshl_b32 s{t1}, s{sW4}, 15")
            p(f"s_sub_u32 s{t0}, s{t0}, s{t1}")
            p(f"s_and_b32 s{t1}, s{sH}, 1")
            p(f"s_lshl_b32 s{t1}, s{t1}, 16")
            p(f"s_add_u32 s{t0}, s{t0}, s{t1}")
            p(f"s_add_u32 s{t0}, s{t0}, {job[1] * 8192}")
            p(f"buffer_load_dword v{vTD}, v{vTA}, {sr(S_X)}, s{t0} offen")
        elif job[0] == 'wq':
            p(f"v_lshrrev_b32 v{vTA}, 3, v{vL}")
            p(f"v_lshlrev_b32 v{vTA}, 13, v{vTA}")
            p(f"v_and_b32 v{vTA+2}, 7, v{vL}")
            p(f"v_lshl_add_u32 v{vTA}, v{vTA+2}, 7, v{vTA}")
            p(f"s_and_b32 s{t0}, s{sL}, 31")
            p(f"s_lshl_b32 s{t0}, s{t0}, 17")
            p(f"s_lshr_b32 s{t1}, s{sH}, 2")
            p(f"s_lshl_b32 s{t1}, s{t1}, 10")
            p(f"s_add_u32 s{t0}, s{t0}, s{t1}")
            p(f"s_add_u32 s{t0}, s{t0}, {job[1] * 65536}")
            p(f"buffer_load_dword v{vTD}, v{vTA}, {sr(S_WQ)}, s{t0} offen")
        else:
            p(f"v_and_b32 v{vTA}, 15, v{vL}")
            p(f"v_mul_u32_u24 v{vTA}, 3072, v{vTA}")
            p(f"v_lshrrev_b32 v{vTA+2}, 4, v{vL}")
            p(f"v_min_u32 v{vTA+2}, 2, v{vTA+2}")
            p(f"v_lshl_add_u32 v{vTA}, v{vTA+2}, 10, v{vTA}")
            p(f"s_and_b32 s{t0}, s{sL}, 31")
            p(f"s_mul_i32 s{t0}, s{t0}, {16 * 3072}")
            p(f"s_lshr_b32 s{t1}, s{sH}, 2")
            p(f"s_lshl_b32 s{t1}, s{t1}, 7")
            p(f"s_add_u32 s{t0}, s{t0}, s{t1}")
            p(f"buffer_load_dword v{vTD}, v{vTA}, {sr(S_WQKV)}, s{t0} offen")
        p.cur[-1].nodst = True
    TJ = [('wq', 0), ('wq', 1), ('wb',)] + [('x', c) for c in range(8)]
    TS = eval(os.environ.get('TS', '[3,3,3,4,4,4,5,5,5,6,6]'))
    def touch_slot(s, kk):
        for j, job in enumerate(TJ):
            if j < len(TS) and TS[j] == s and kk == 1 + (j & 1):
                sk = newlab("notch")
                p(f"s_cmp_lg_u32 s{sW4}, {j % 3}")
                p(f"s_cbranch_scc1 {sk}")
                touch_job(job)
                p.label(sk)
    def g1_slot(vm, s, kk):
        extra = []
        touch_slot(s, kk)
        if (s, kk) == (HS, 2):
            skip = newlab("nofl")
            p(f"s_cmp_lg_u32 s{sW}, 7")
            p(f"s_cbranch_scc1 {skip}")
            p("s_waitcnt vmcnt(0)")
            p(f"v_mov_b32 v{vPD}, 1")
            p(f"s_lshl_b32 s{t0}, s{sI}, 5")
            p(f"v_mov_b32 v{vPE}, s{t0}")
            p("s_mov_b64 exec, 1")
            p(f"buffer_atomic_add v{vPD}, v{vPE}, {sr(S_DBG)}, 0 offen sc1")
            p("s_mov_b64 exec, -1")
            p.label(skip)
        if (s, kk) == (GS, 1):
            p(f"s_lshl_b32 s{t0}, s{sH}, 3")
            p(f"s_lshl_b32 s{t1}, s{sW4}, 1")
            p(f"s_add_u32 s{t0}, s{t0}, s{t1}")
            p(f"s_and_b32 s{t1}, s{t0}, 127")
            p(f"s_lshl_b32 s{t1}, s{t1}, 10")
            p(f"s_lshl_b32 s{t2}, s{sW4}, 15")
            p(f"s_cmp_lt_u32 s{t0}, 128")
            p(f"s_cselect_b32 s{t0}, s{sXb}, s{sXc}")
            p(f"s_sub_u32 s{t0}, s{t0}, s{t2}")
            p(f"s_add_u32 s{t0}, s{t0}, s{t1}")
            vm.issue("G", f"buffer_load_dwordx4 {vr(GW_)}, v{vST}, {sr(S_GATE)}, 0 offen")
            for r in range(2):
                vm.issue("G", f"buffer_load_dwordx4 {vr(GX + 4*r)}, v{vST}, {sr(S_X)}, s{t0} offen offset:{r*1024}")
        if (s, kk) == (GS + 1, 0):
            vm.wait_all()
            W8, T2, R2 = GW8, GT, GT + 4
            for i in range(4):
                extra.append(f"v_lshlrev_b32 v{W8+2*i}, 16, v{GW_+i}")
                extra.append(f"v_and_b32 v{W8+1+2*i}, 0xffff0000, v{GW_+i}")
            for i in range(4):
                for r in range(2):
                    extra.append(f"v_lshlrev_b32 v{T2+2*r}, 16, v{GX+4*r+i}")
                    extra.append(f"v_and_b32 v{T2+2*r+1}, 0xffff0000, v{GX+4*r+i}")
                for r in range(2):
                    if i == 0:
                        extra.append(f"v_mul_f32 v{R2+r}, v{T2+2*r}, v{W8}")
                    else:
                        extra.append(f"v_fmac_f32 v{R2+r}, v{T2+2*r}, v{W8+2*i}")
                for r in range(2):
                    extra.append(f"v_fmac_f32 v{R2+r}, v{T2+2*r+1}, v{W8+2*i+1}")
        if (s, kk) == (GS + 1, 1):
            R2 = GT + 4
            for sh in ("row_shr:1 row_mask:0xf bank_mask:0xf bound_ctrl:0", "row_shr:2 row_mask:0xf bank_mask:0xf bound_ctrl:0",
                       "row_shr:4 row_mask:0xf bank_mask:0xf bound_ctrl:0", "row_shr:8 row_mask:0xf bank_mask:0xf bound_ctrl:0",
                       "row_bcast:15 row_mask:0xa bank_mask:0xf", "row_bcast:31 row_mask:0xc bank_mask:0xf"):
                for r in range(2):
                    extra.append(f"v_add_f32_dpp v{R2+r}, v{R2+r}, v{R2+r} {sh}")
                extra.append("s_nop 0")
            for op in ("v_mul_f32 v{0}, 0xbfb8aa3b, v{0}", "v_exp_f32 v{0}, v{0}", "v_add_f32 v{0}, 1.0, v{0}", "v_rcp_f32 v{0}, v{0}", "v_add_f32 v{0}, 1.0, v{0}"):
                for r in range(2):
                    extra.append(op.format(R2 + r))
        if (s, kk) == (GS + 1, 2):
            R2 = GT + 4
            p(f"v_mov_b32 v{GT}, 0")
            p(f"s_lshl_b32 s{t0}, s{sL}, 7")
            p(f"s_lshl_b32 s{t1}, s{sW4}, 3")
            p(f"s_add_u32 s{t0}, s{t0}, s{t1}")
            p(f"s_add_u32 s{t0}, s{t0}, {FLG + 4*F_G}")
            p("s_mov_b32 exec_lo, 0")
            p("s_mov_b32 exec_hi, 0x80000000")
            vm.issue("G", f"buffer_store_dwordx2 v[{R2}:{R2+1}], v{GT}, {WS}, s{t0} offen sc1")
            p("s_mov_b64 exec, -1")
        return extra
    LAT2 = int(os.environ.get('LAT2', 4))
    ML1 = int(os.environ.get('ML1', 16))
    ML2 = int(os.environ.get('ML2', 99))
    LAT = int(os.environ.get('LAT', 7))
    OLD = int(os.environ.get('OLD', 10))
    DSP = int(os.environ.get('DSP', 0))
    def gemm_phases(g, vm):
        A4 = 160
        M, FR = stream(g)
        NM = len(M)
        first, last = {}, {}
        for i, m in enumerate(M):
            for f in m[3]:
                first.setdefault(f, i); last[f] = i
        start = {s: min(i for i, m in enumerate(M) if m[0] == s) for s in range(16)}
        start[16] = NM
        fill = [[] for _ in range(NM + 1)]
        done = {t: max(i for i, m in enumerate(M) if m[0] == 7 and m[4] >> 4 == t) for t in range(8)}
        packat = {}
        cur = 0
        for t in sorted(done, key=lambda t: done[t]):
            cur = max(cur, done[t] + 4)
            packat[t] = cur
            ops = pack(t)
            rate = 2 if cur < start[8] - 4 else 4
            for k in range(0, 8, rate):
                fill[cur] += ops[k:k + rate]; cur += 1
            wr = min([i for i, m in enumerate(M) if m[0] == 8 and m[4] >> 4 == t] + [NM])
            assert cur <= wr, (t, cur, wr)
            done[t] = cur
        BIG = 1 << 20
        pool = {q: [-9, BIG] for q in range(128, 160, 4)}
        for t in range(4):
            for q in (0, 4): pool[HELD(t >> 1, t & 1) + q] = [-9, packat[t]]
        for q in (0, 4): pool[STASH + q] = [-9, packat[4]]
        for t in (6, 7) + ((5,) if g == 0 else ()):
            for q in range(4): pool[t * 16 + q * 4] = [done[t] + 1, BIG]
        if g == 1:
            for q in (208, 212): pool[q] = [start[GS + 2], BIG]
        busy = {}
        LQ = []
        hi_ = False
        for f in sorted(first, key=lambda f: (first[f], M[first[f]][3].index(f))):
            s = f[1]
            if (s % 3 == 2) != hi_:
                regs = [vWQ + e for e in range(8)] + [vWP + k for k in range(g + 1)]
                if s == 8:
                    LQ += [(s, None, f"v_add_u32 v{vXR+k}, s{sXQ}, v{vXR+k}") for k in range(2)]
                    LQ += [(s, None, f"s_and_b32 s{t3}, s{sW}, 1"), (s, None, f"s_lshl_b32 s{t3}, s{t3}, 7")]
                    LQ += [(s, None, f"v_xor_b32 v{vWQ+e}, s{t3}, v{vWQ+e}") for e in range(8)]
                elif s < 8: regs = regs[:4]
                if (s % 3 == 2) != hi_:
                    hi_ = not hi_
                    LQ += [(s, None, f"v_add_u32 v{r}, {0x10000 if hi_ else -0x10000}, v{r}") for r in regs]
            LQ += [(s, f, k) for k in range(len(FR[f]))]
        R, seq, issued_at = {}, {}, []
        st = {'q': 0, 'known': 0, 'open': 0, 'sync': None, 'minlead': {}}
        def can_issue(i):
            if st['q'] >= len(LQ): return False
            s, f, k = LQ[st['q']]
            if f is None: return True
            if s > st['open'] or len(issued_at) - st['known'] >= 15: return False
            if first[f] - i > (ML1 if s < 8 else ML2) and first[f] - start[s] >= 16: return False
            if k == 0:
                c = [q for q, (a_, b_) in pool.items() if q not in busy and a_ <= i and b_ > last[f]]
                if not c: return False
                q = min(c, key=lambda q: (pool[q][1], q))
                busy[q] = f; R[f] = q
            return True
        def issue(i, budget):
            while budget > 0 and can_issue(i):
                s, f, k = LQ[st['q']]
                st['q'] += 1
                budget -= 1
                if f is None:
                    p(k)
                    continue
                q = R[f]
                p(FR[f][k].format(q, q + 1, q + 2, q + 3))
                issued_at.append(i); seq[f] = len(issued_at)
                st['minlead'][s] = min(st['minlead'].get(s, 99), first[f] - i)
                if st['q'] == len(LQ) or all(x[1] is None or x[0] > s for x in LQ[st['q']:st['q'] + 24]):
                    st['sync'] = (s, i + (LAT if s < 8 else LAT2))
        def wait_for(i, fs):
            need = 0
            for f in fs:
                while f not in seq or seq[f] < 0 or sum(1 for x in LQ[:st['q']] if x[1] == f) < len(FR[f]):
                    if st['sync'] is not None and f[1] > st['open']:
                        sync(i)
                    assert can_issue(i - 1) or stuck(i, f), (i, f, LQ[st['q']], busy, st, pool)
                    busy_fix()
                    issue(i - 1, 1)
                need = max(need, seq[f])
            if need <= st['known']: return
            while need < len(issued_at) and issued_at[need] <= i - OLD: need += 1
            p(f"s_waitcnt lgkmcnt({len(issued_at) - need})")
            st['known'] = need
        def stuck(i, f):
            p("s_waitcnt lgkmcnt(0)"); st['known'] = len(issued_at)
            return can_issue(i - 1)
        def busy_fix():
            s, f, k = LQ[st['q']]
            if f is not None and k == 0 and f in R:
                del busy[R[f]]; del R[f]
        pend = []
        def sync(i):
            s = st['sync'][0]
            st['sync'] = None
            for f_ in pend: f_()
            pend.clear()
            if not (X('ATTST') or X('CST')): stamp(p, 34 + s)
            if s == 14:
                vm.wait_all()
                if g == 0:
                    loads = [(vPE, vPB, S_DBG, 0, 32)]
                    ok = newlab("cntok")
                    poll_check(p, loads)
                    p(f"s_cbranch_vccz {ok}")
                    poll_block(p, loads, "c0")
                    p.label(ok)
                p("s_waitcnt lgkmcnt(0)")
            elif s == 15 or (g == 1 and s >= 2):
                p("s_waitcnt lgkmcnt(0)")
            else:
                vm.wait([("X", s + 1), ("W", s + 1)], "lgkmcnt(0)")
            st['known'] = len(issued_at)
            p("s_barrier")
            stamp(p, 2 + s)
            st['open'] = s + 1
            info.append((s, i - start[s], start[s + 1] - start[s]))
            issue(i - 1, int(os.environ.get('PB', 6)))
            if g == 0:
                if s + 2 < 16: pend.extend(dma_x_pieces(vm, s + 2))
                if s + 3 < 16: pend.extend(dma_w_pieces(vm, s + 3))
                if not DSP:
                    for f_ in pend: f_()
                    pend.clear()
                if s == 13:
                    pend.append(lambda: vm.issue("P", f"buffer_load_dword v{vPE}, v{vPB}, {sr(S_DBG)}, 0 offen sc1"))
                if s == 14:
                    p(f"s_cmp_lg_u32 s{sW}, 0")
                    p("s_cbranch_scc1 L_nolo")
                    flag_store(vPD, vPK, 0, base=FL2, lanes=8)
                    p.label("L_nolo")
            if s == 15:
                p(f"s_bfe_u32 s{t5}, s{sW}, 0x10001")
                p(f"s_and_b32 s{t6}, s{sW}, 1")
                p(f"s_lshl_b32 s{t6}, s{t6}, 12")
                p(f"s_lshl_b32 s{t5}, s{t5}, 14")
                p(f"s_sub_u32 s{t4}, s{t6}, s{t5}")
                if g == 0:
                    p(f"s_add_u32 s{t0}, s{t4}, {KB[1] + 3 * 8192}")
                    p(f"s_add_u32 s{t1}, s{t4}, {KB[1] + 2 * 8192}")
                    p(f"s_add_u32 s{t2}, s{t4}, {KB[0] + 3 * 8192}")
                    p(f"s_add_u32 s{t3}, s{t4}, {KB[0] + 2 * 8192}")
                else:
                    p(f"s_add_u32 s{t0}, s{t4}, {VB_[1] + 4 * 8192}")
                    p(f"s_add_u32 s{t1}, s{t4}, {VB_[1] + 3 * 8192}")
                    p(f"s_add_u32 s{t2}, s{t4}, {VB_[0] + 4 * 8192}")
                    p(f"s_add_u32 s{t3}, s{t4}, {VB_[0] + 3 * 8192}")
                    p(f"s_add_u32 s{t7}, s{t6}, {VB_[0]}")
                    p(f"s_add_u32 s{t8}, s{t6}, {VB_[1]}")
                    p(f"s_cmp_eq_u32 s{t5}, 0")
                    p(f"s_cselect_b32 s{t0}, s{t7}, s{t0}")
                    p(f"s_cselect_b32 s{t2}, s{t8}, s{t2}")
                p(f"s_lshl_b32 s{t4}, s{sW4}, {12 if g else 11}")
                p(f"s_add_u32 s{t4}, s{t4}, {MISC + (8192 if g else 0)}")
                for k in range(5):
                    p(f"v_add_u32 v{A4+k}, s{t0+k}, v{vST}")
                wr = [f"ds_write_b128 v{A4+tbi}, {vr(HELD(tbi, cbi) + half*4)} offset:{cbi*2048 + half*1024}"
                      for tbi in range(4) for cbi in range(2) for half in range(2)]
                for k, x in enumerate(spread(wr, NM - i)):
                    fill[i + k] += x
        info = []
        p.seg(f"g{g}_s0")
        issue(-1, 8)
        for i, (s, kk, txt, fs, acc) in enumerate(M):
            if i and i == start[s]: p.seg(f"g{g}_s{s}")
            if st['sync'] is not None and st['sync'][1] <= i: sync(i)
            wait_for(i, fs)
            p(txt(R))
            for f in fs:
                if last[f] == i: del busy[R[f]]
            big = MF in p.cur[-1].text
            issue(i, 3 if big else 2)
            for x in fill[i]: p(x)
            if pend and (not DSP or i % DSP == 0): pend.pop(0)()
            if i + 1 == NM or M[i + 1][:2] != (s, kk):
                if kk < 3:
                    extra = g1_slot(vm, s, kk) if g == 1 else []
                    n = sum(1 for m in M if m[:2] == (s, kk + 1))
                    if extra:
                        for k, x in enumerate(spread(extra, n)): fill[i + 1 + k] += x
                low_slot(vm, s, kk)
                if (s, kk) == (7, 3): stamp(p, 20); st['known'] = len(issued_at) if STAMPS else st['known']
        for x in fill[NM]: p(x)
        assert st['q'] == len(LQ) and st['open'] == 16
        if X('VERB'): print('group', g, 'sync at', info, 'min lead', st['minlead'], 'packs', packat)
        p.seg(f"g{g}_tr")
        gate_addr(A4 + 5, A4 + 6, False)
        p(f"buffer_load_dword v{vG}, v{A4+5}, {WS}, s{t0} offen sc1")
        p(f"buffer_load_dword v{vG1}, v{A4+5}, {WS}, s{t0} offen offset:2048 sc1")
        if g == 0:
            gate_addr(A4 + 5, A4 + 6, True)
            p(f"buffer_load_dword v{vPB}, v{A4+5}, {WS}, s{t0} offen sc1")
            p(f"buffer_load_dword v{vPD}, v{vPA}, {WS}, 0 offen sc1")
        qcvt()
        for k in range(2 if g else 1):
            for i in range(8):
                p(f"v_cvt_pk_bf16_f32 v{136+8*k+i}, v{64+16*k+2*i}, v{64+16*k+2*i+1}")
            for s in range(2):
                p(f"ds_write_b128 v{A4+4}, {vr(136 + 8*k + 4*s)} offset:{k*2048 + s*1024}")
        p(f"s_branch L_apro")

    def stash_stores(which=range(4)):
        p(f"s_add_u32 s{t9}, s{sSTh}, 8192")
        for tb in range(2):
            for cbi in range(2):
                if tb * 2 + cbi not in which: continue
                d = STASH + (tb * 2 + cbi) * 8
                for half in range(2):
                    if not X('NOST'):
                        p(f"buffer_store_dwordx4 {vr(d + half*4)}, v{vST}, {WS}, s{sSTh if tb == 0 else t9} offen offset:{cbi*2048 + half*1024} sc1")

    p.seg("g0_pro")
    vm0 = VM(p)
    dma_x(vm0, 0); dma_w(vm0, 0)
    setup2()
    stamp(p, 30)
    vm0.wait([("X", 0), ("W", 0)])
    stamp(p, 31)
    p("s_barrier")
    stamp(p, 1)
    gemm_phases(0, vm0)

    p.seg("g1_pro")
    p.label("L_g1")
    vm1 = VM(p)
    dma_x(vm1, 1); dma_w(vm1, 1); dma_w(vm1, 2)
    p(f"v_and_b32 v{vT}, 31, v{vL}")
    p(f"v_lshlrev_b32 v{vT}, 2, v{vT}")
    p(f"v_lshl_add_u32 v{vT}, v{hi}, 15, v{vT}")
    p(f"v_mov_b32 v{vT+5}, 0")
    p(f"s_lshl_b32 s{t0}, s{sL}, 7")
    p(f"s_add_u32 s{t0}, s{t0}, {FLG}")
    p(f"s_cmp_lg_u32 s{sW}, 7")
    p("s_cbranch_scc1 L_noclr")
    p(f"buffer_store_dword v{vT+5}, v{vT}, {WS}, s{t0} offen sc1")
    p.label("L_noclr")
    setup2()
    stamp(p, 19)
    p("s_barrier")
    stamp(p, 1)
    gemm_phases(1, vm1)

    if X('LB'):
        p.seg("lb")
        p.label("L_lb")
        setup2()
        p(f"s_mul_i32 s{t0}, s{sW}, {20 * 1024}")
        for k in range(20):
            p(f"s_add_u32 m0, s{t0}, {k * 1024}")
            p(f"s_add_u32 s{t1}, s{t0}, {k * 1024}")
            p(f"buffer_load_dwordx4 v{vST}, {sr(S_CKV)}, s{t1} offen lds")
        for k in range(8):
            p(f"buffer_load_dwordx4 {vr(QR + 4 * k)}, v{vST}, {sr(S_X)}, s{t0} offen offset:{(k & 3) * 1024}")
        p(f"s_mov_b32 s{sHK}, 0")
        p(f"s_mov_b32 s{sLAST}, 14")
        p(f"s_mov_b32 s{sN}, 0")
        p(f"s_mov_b32 s{sQ4}, 3")
        p("s_waitcnt vmcnt(0)")
        p("s_barrier")
        if os.environ['LB'] == 'solo':
            p(f"s_cmp_eq_u32 s{sG}, 0")
            p("s_cbranch_scc1 L_end")
        stamp_real(p, 30)
    O = lambda qg, dt: (qg * 8 + dt) * 4
    S = lambda b: 64 + b * 16
    NEGM, LQ_, ONES = 96, 104, 164
    Q = lambda qg, ks: QR + (qg * 4 + ks) * 4
    P = lambda b: 112 + b * 8
    F = lambda n: 128 + (n % 8) * 4
    T = [160, 161, 162, 163]
    vRK, vRV, vMX, vU = 169, 170, 172, 208
    vD0, vNINF = vU + 6, vU + 7
    D = 6
    SM = [t0, t2, t4, t6]
    def kread(k, n):
        kg, ks = n >> 2, n & 3
        return f"ds_read_b128 {vr(F(n))}, v{vRK} offset:{k*8192 + (ks >> 1)*4096 + kg*2048 + (ks & 1)*1024}"
    def vread(k, m, ring):
        return f"ds_read_b128 {vr(F(ring))}, v{vRV} offset:{k*8192 + m*1024}"
    def fread(k, n):
        return kread(k, n) if n < 8 else vread(k, n - 8, n)
    def mqk(sl, sb, zero=False):
        n, qg = (sl >> 2) * 2 + (sl & 1), (sl >> 1) & 1
        kg, ks = n >> 2, n & 3
        a = S(sb) + qg * 8 + kg * 4
        c = vr(a) if ks else ("0" if zero else vr(NEGM + 4 * qg))
        return f"{M16} {vr(a)}, {vr(F(n))}, {vr(Q(qg, ks))}, {c}"
    def mpv(sl, ring0, pb):
        dt, qg = sl >> 1, sl & 1
        return f"{M16} {vr(O(qg, dt))}, {vr(F(ring0 + dt))}, {vr(P(pb) + qg*4)}, {vr(O(qg, dt))}"
    def msum(sb, qg, dst=None):
        if dst is not None:
            return f"{M16} {vr(dst)}, {vr(ONES)}, {vr(P(sb) + qg*4)}, 0"
        return f"{M16} {vr(LQ_ + 4*qg)}, {vr(ONES)}, {vr(P(sb) + qg*4)}, {vr(LQ_ + 4*qg)}"
    E0 = int(os.environ.get('E0', 8))
    EORD = [0, 1, 2, 3, 8, 9, 10, 11, 4, 5, 6, 7, 12, 13, 14, 15]
    SL0, SL1, SCK = (int(x) for x in os.environ.get('SLS', '37,41,46').split(','))
    def sm_ops(sb):
        L = []
        for j, e in enumerate(EORD):
            L.append((E0 + 2 * j, 0, f"v_exp_f32 v{T[j & 3]}, v{S(sb)+e}"))
            if j & 1:
                L.append((E0 + 2 * j + (1 if j == 15 else 3), 2, f"v_cvt_pk_bf16_f32 v{P(sb)+(e>>1)}, v{T[(j-1)&3]}, v{T[j & 3]}"))
        L.append((SL0, 5, msum(sb, 0)))
        L.append((SL1, 5, msum(sb, 1)))
        L.append((SCK - 1, 6, f"v_max_f32 v{vMX}, v{LQ_}, v{LQ_+4}"))
        L.append((SCK, 1, f"v_cmp_nge_f32 vcc, s{sTHR}, v{vMX}"))
        L.append((SCK + 1, 6, "CHECK"))
        L.sort(key=lambda x: (x[0], x[1]))
        return L
    tramps = []
    def emit_op(txt, sb):
        if txt.startswith("CHECK"):
            k = len(tramps)
            p(f"s_cbranch_vccnz L_tr{k}")
            p.label(f"L_bk{k}")
            tramps.append((k, sb))
        else:
            p(txt)
    def gap_ops(n, cur, nxt, with_cur=True, with_nxt=True):
        L = []
        if with_cur: L += [(k, t, cur) for (s_, k, t) in sm_ops(cur) if s_ == n + 32]
        if with_nxt: L += [(k, t, nxt) for (s_, k, t) in sm_ops(nxt) if s_ == n]
        L.sort(key=lambda x: x[0])
        return L
    def line_ops(ops, sb):
        for t in ops:
            if t.startswith("v_cvt"): p("s_nop 0")
            if t.startswith(M16): p("s_nop 1")
            if t.startswith("v_max"): p("s_nop 7")
            if t == "CHECK": p("s_nop 1")
            emit_op(t, sb)
    def mask_ops(sb, vD):
        L = [f"v_cmp_le_i32 s[{SM[r]}:{SM[r]+1}], {r}, v{vD}" for r in range(4)]
        L += [f"v_mov_b32 v{S(sb)+4+r}, v{vNINF}" for r in range(4)]
        for b in (0, 12):
            L += [f"v_cndmask_b32 v{S(sb)+b+r}, v{vNINF}, v{S(sb)+b+r}, s[{SM[r]}:{SM[r]+1}]" for r in range(4)]
        return L
    def dstamp(base):
        if not (STAMPS and X('ATTST')): return
        p("s_memtime s[100:101]")
        p(f"s_min_u32 s{t11}, s{sR}, 14")
        p(f"s_add_u32 m0, s{t11}, {base}")
        p("s_waitcnt lgkmcnt(0)")
        p(f"v_writelane_b32 v{vSTAMP}, s100, m0")
    def round_end(tag):
        dstamp(32)
        p("s_waitcnt vmcnt(0) lgkmcnt(0)")
        p("s_barrier")
        dstamp(47)
        p(f"v_xor_b32 v{vRK}, 0x8000, v{vRK}")
        p(f"v_xor_b32 v{vRV}, 0x38000, v{vRV}")
        p(f"s_add_u32 s{sR}, s{sR}, 1")
        skip = newlab("nohook")
        p(f"s_cmp_eq_u32 s{sHK}, 0")
        p(f"s_cbranch_scc1 {skip}")
        p(f"s_call_b64 s[{LKB}:{LKB+1}], L_hook")
        p.seg(tag + "_b")
        p.label(skip)
    RE = int(os.environ.get('RE', 24))
    def iteration(k, last, tag):
        nxt, cur = k & 1, (k & 1) ^ 1
        def frag(q):
            if q < 16:
                return fread(k, q)
            q -= 16
            kn = (k + 1) & 3
            return vread(kn, q, q) if last else fread(kn, q)
        issued = D
        for n in range(32):
            if k == 3 and n == RE:
                round_end(tag)
                while issued < n // 2 + D:
                    p(frag(issued)); issued += 1
            elif n % 4 == 0:
                p(f"s_waitcnt lgkmcnt({issued - (n // 2 + 2)})")
            p(mqk(n, nxt) if n < 16 else mpv(n - 16, 8, cur))
            ops = gap_ops(n, cur, nxt)
            if n & 1 and not (k == 3 and n < RE and issued >= 16):
                ops.append((1.5, frag(issued), None)); issued += 1
                ops.sort(key=lambda x: x[0])
            for _, t, sb in ops:
                emit_op(t, sb)
    def tail():
        cur = 1
        for q in range(D, 8):
            p(vread(0, q, q))
        line_ops([t for (s_, k, t) in sm_ops(cur) if s_ >= 32], cur)
        for m in range(16):
            if m % 2 == 0: p(f"s_waitcnt lgkmcnt({7 - m // 2})")
            p(mpv(m, 0, cur))
    def maxtree(sb, dst):
        for qg in range(2):
            s = S(sb) + 8 * qg
            p(f"v_max3_f32 v{dst+qg}, v{s}, v{s+1}, v{s+2}")
            p(f"v_max3_f32 v{dst+2+qg}, v{s+3}, v{s+4}, v{s+5}")
        for qg in range(2):
            s = S(sb) + 8 * qg
            p(f"v_max3_f32 v{dst+qg}, v{dst+qg}, v{s+6}, v{s+7}")
        for qg in range(2):
            p(f"v_max_f32 v{dst+qg}, v{dst+qg}, v{dst+2+qg}")
        for sw in ("v_permlane16_swap_b32", "v_permlane32_swap_b32"):
            for qg in range(2):
                p(f"v_mov_b32 v{dst+2+qg}, v{dst+qg}")
            p("s_nop 0")
            for qg in range(2):
                p(f"{sw} v{dst+qg}, v{dst+2+qg}")
            p("s_nop 0")
            for qg in range(2):
                p(f"v_max_f32 v{dst+qg}, v{dst+qg}, v{dst+2+qg}")

    p.seg("apro")
    p.label("L_apro")
    p(f"s_cmp_eq_u32 s{sG}, 0")
    p(f"s_cselect_b32 s{t0}, {KB[1]}, {KB[0]}")
    p(f"s_mov_b32 s{sHK2}, 0")
    p(f"s_add_u32 s{t1}, s{t0}, {VB_[0]}")
    p(f"v_add_u32 v{vRK}, s{t0}, v{vST}")
    p(f"v_add_u32 v{vRV}, s{t1}, v{vST}")
    p(f"v_and_b32 v{vU}, 15, v{vL}")
    p(f"v_lshrrev_b32 v{vU+1}, 4, v{vL}")
    p(f"v_lshlrev_b32 v{vU+1}, 2, v{vU+1}")
    p(f"v_sub_u32 v{vD0}, v{vU}, v{vU+1}")
    p(f"v_mov_b32 v{vNINF}, 0xff800000")
    for i in range(8):
        p(f"v_mov_b32 v{LQ_+i}, 0")
    p(f"s_mov_b32 s{sOUT}, 0")
    p(f"s_mov_b32 s{sBX}, 0")
    p(f"s_cmp_lt_u32 s{sI}, 2")
    p(f"s_cselect_b32 s{sFH}, 5, 4")
    p(f"s_mov_b32 s{sR1}, s{sFH}")
    p(f"s_sub_u32 s{sRO}, s{sN}, 5")
    p(f"s_max_u32 s{sRO}, s{sRO}, 6")
    if os.environ.get('PRIO', '1') != '0':
        p(f"s_cmp_eq_u32 s{sG}, 0")
        p("s_cbranch_scc1 L_noprio")
        p(f"s_setprio {os.environ.get('PRIO', '1')}")
        p.label("L_noprio")
    stamp(p, 18)
    p("s_waitcnt lgkmcnt(0)")
    p("s_barrier")
    stamp(p, 21)
    for p0 in range(1, 4):
        p(f"s_cmp_eq_u32 s{sQ4}, {3 - p0}")
        p(f"s_cbranch_scc1 L_pro{p0}")
    for p0 in range(4):
        sb = p0 & 1
        p.seg(f"pro{p0}")
        p.label(f"L_pro{p0}")
        for n in range(8):
            p(kread(p0, n))
        for i in range(4):
            p(f"v_mov_b32 v{ONES+i}, 0x3f803f80")
        z = 0
        for n in range(16):
            if n % 4 == 0: p(f"s_waitcnt lgkmcnt({6 - n // 2})")
            if n >= 8 and not (n >> 1) & 1: continue
            p(mqk(n, sb, True))
            for i in range(5 if n < 8 else 6):
                p(f"v_mov_b32 v{z}, 0"); z += 1
        assert z == 64
        if p0 < 3:
            for n in range(D):
                p(fread(p0 + 1, n))
        for x in mask_ops(sb, vD0):
            p(x)
        maxtree(sb, vU)
        for i in range(16):
            p(f"v_sub_f32 v{S(sb)+i}, v{S(sb)+i}, v{vU + (i >> 3)}")
        for i in range(8):
            p(f"v_sub_f32 v{NEGM+i}, 0, v{vU + (i >> 2)}")
        line_ops([t for (s_, k, t) in sm_ops(sb) if s_ < 32], sb)
        if p0 < 3:
            p(f"s_branch L_it{p0 + 1}")
        else:
            p(f"s_cmp_eq_u32 s{sR}, s{sLAST}")
            p("s_cbranch_scc1 L_pro3L")
            round_end("pro3")
            for n in range(D):
                p(fread(0, n))
            p("s_branch L_it0")
            p.seg("pro3L")
            p.label("L_pro3L")
            round_end("pro3L")
            for n in range(D):
                p(vread(0, n, n))
            p("s_branch L_tail")
    for k in range(4):
        p.seg(f"it{k}")
        p.label(f"L_it{k}")
        if k == 3:
            p(f"s_cmp_eq_u32 s{sR}, s{sLAST}")
            p("s_cbranch_scc1 L_it3L")
        if k in (1, 2):
            p(f"s_cmp_lg_u32 s{sHK2}, 0")
            p(f"s_cbranch_scc1 L_h2c{k}")
            p.label(f"L_h2b{k}")
        iteration(k, False, f"it{k}")
    p("s_branch L_it0")
    p.seg("it3L")
    p.label("L_it3L")
    iteration(3, True, "it3L")
    p.seg("tail")
    p.label("L_tail")
    tail()
    p.seg("epi")
    stamp(p, 22)
    if X('LB'):
        stamp_real(p, 31)
        p(f"s_lshl_b32 s{t0}, s{sL}, 3")
        p(f"s_add_u32 s{t0}, s{t0}, s{sW}")
        p(f"s_lshl_b32 s{t0}, s{t0}, 8")
        p(f"s_add_u32 s{t0}, s{t0}, {DBGOFF}")
        p(f"v_lshlrev_b32 v{vU}, 2, v{vL}")
        p(f"buffer_store_dword v{vSTAMP}, v{vU}, {WS}, s{t0} offen")
        p("s_endpgm")
    vCX = 173
    gate_check(vG, vU, vU + 1, False, "e")
    gate_check(vG1, vU, vU + 1, False, "f", 2048)
    p(f"v_rcp_f32 v{vU}, v{LQ_}")
    p(f"v_rcp_f32 v{vU+1}, v{LQ_+4}")
    p(f"v_add_f32 v{vG}, -1.0, v{vG}")
    p(f"v_add_f32 v{vG1}, -1.0, v{vG1}")
    p(f"s_lshl_b32 s{t0}, s{sQB}, 2")
    p(f"s_add_u32 s{t0}, s{t0}, s{sQ4}")
    p(f"s_mul_i32 s{t0}, s{t0}, 288")
    p(f"s_lshl_b32 s{t1}, s{sH}, 3")
    p(f"s_add_u32 s{t0}, s{t0}, s{t1}")
    p(f"s_lshl_b32 s{t0}, s{t0}, 10")
    p(f"s_add_u32 s{t0}, s{t0}, {AWS}")
    p(f"s_add_u32 s{t1}, s{t0}, 4096")
    p(f"v_mul_f32 v{vU}, v{vU}, v{vG}")
    p(f"v_mul_f32 v{vU+1}, v{vU+1}, v{vG1}")
    p(f"v_lshrrev_b32 v{vG}, 4, v{vL}")
    p(f"v_lshl_add_u32 v{vG}, v{vG}, 8, v{vST}")
    p(f"s_mov_b32 s{sCX}, s{t0}")
    p(f"s_cmp_lt_u32 s{sR}, s{sN}")
    p("s_cbranch_scc1 L_epi2")
    def ctx_store(d, half):
        return f"buffer_store_dwordx4 {vr(80 + 8*d + 4*half)}, v{vG}, {WS}, s{sCX if d < 2 else t1} offen offset:{(d&1)*2048 + half*256} sc1"
    def epi_body(st):
        for d in range(4):
            for qg in range(2):
                o = O(qg, 2 * d)
                for i in range(8):
                    p(f"v_mul_f32 v{o+i}, v{o+i}, v{vU+qg}")
            for qg in range(2):
                o = O(qg, 2 * d)
                for i in range(4):
                    p(f"v_cvt_pk_bf16_f32 v{80+8*d+4*qg+i}, v{o+2*i}, v{o+2*i+1}")
            if st:
                for half in range(2):
                    p(ctx_store(d, half))
    p.seg("epi1")
    epi_body(True)
    if not X('NOBX'):
        p("s_barrier")
        p(f"s_mov_b32 s{sBX}, 1")
    p(f"s_mov_b32 s{sOUT}, 0")
    p("s_branch L_help")
    p.seg("epi2")
    p.label("L_epi2")
    epi_body(False)
    p(f"s_mov_b32 s{sPEND}, 3")
    p.seg("help0")
    p.label("L_help0")
    p(f"s_cmp_eq_u32 s{sHK2}, 0")
    p("s_cbranch_scc1 L_hs1")
    p(f"s_mov_b32 s{sOUT}, 4")
    p(f"s_sub_u32 s{sHK2}, s{sHK2}, 2")
    p(f"s_cmp_eq_u32 s{sHK2}, 0")
    p("s_cbranch_scc1 L_hs0")
    stash_stores([0, 1])
    p("s_branch L_help")
    p.label("L_hs0")
    stash_stores([2, 3])
    p("s_branch L_help")
    p.label("L_hs1")
    p(f"s_cmp_lt_u32 s{sPEND}, 2")
    p("s_cbranch_scc1 L_help")
    p(f"s_mov_b32 s{sOUT}, 4")
    p(f"s_sub_u32 s{sPEND}, s{sPEND}, 1")
    p(f"s_cmp_eq_u32 s{sPEND}, 1")
    p("s_cbranch_scc1 L_hs2")
    for d in range(2):
        for half in range(2):
            p(ctx_store(d, half))
    p("s_branch L_help")
    p.label("L_hs2")
    p(f"s_add_u32 s{t1}, s{sCX}, 4096")
    for d in range(2, 4):
        for half in range(2):
            p(ctx_store(d, half))
    p.seg("help")
    p.label("L_help")
    p("s_waitcnt vmcnt(4)")
    p(f"s_cmp_eq_u32 s{sOUT}, 4")
    p("s_cbranch_scc1 L_hnf")
    p("s_waitcnt vmcnt(1)")
    p(f"s_cmp_eq_u32 s{sOUT}, 1")
    p("s_cbranch_scc1 L_hw1")
    p("s_waitcnt vmcnt(0)")
    p.label("L_hw1")
    p(f"s_cmp_eq_u32 s{sPEND}, 0")
    p("s_cbranch_scc1 L_hnf")
    p(f"s_lshl_b32 s{t2}, s{sG}, 2")
    p(f"s_add_u32 s{t2}, s{t2}, s{sQ4}")
    flag_store(vU, vU + 1, F_CS, t2)
    p(f"s_mov_b32 s{sPEND}, 0")
    p.label("L_hnf")
    p(f"s_mov_b32 s{sOUT}, 0")
    p(f"s_cmp_ge_u32 s{sR}, s{sN}")
    p("s_cbranch_scc1 L_hy")
    p("s_barrier")
    p(f"s_add_u32 s{sR}, s{sR}, 1")
    p(f"s_call_b64 s[{LKB}:{LKB+1}], L_hook")
    p("s_branch L_help0")
    p.label("L_hy")
    p(f"s_cmp_lg_u32 s{sPEND}, 0")
    p("s_cbranch_scc1 L_help0")
    p.seg("hx")
    p.label("L_hx")
    stamp(p, 23)

    p.seg("cpro")
    sRING, sAS, sAL, sWK, sBK, sVN, sVO = 64, 65, 66, 67, 68, 69, 70
    AA = lambda cb, tb: (cb * 2 + tb) * 16
    NS = 8
    HH = int(os.environ.get('HH', 16))
    DMAX = int(os.environ.get('DMAX', 16))
    vWD, vR, vFA, vFD, vC = 244, 245, 247, 172, 64
    p(f"s_lshl_b32 s{t2}, s{sW}, 12")
    p(f"s_lshl_b32 s{t3}, s{sI}, 7")
    p(f"s_add_u32 s{t2}, s{t2}, s{t3}")
    p(f"s_lshl_b32 s{t1}, s{sTB}, 2")
    p(f"s_add_u32 s{t2}, s{t2}, s{t1}")
    p(f"s_add_u32 s{t2}, s{t2}, {FLG + 4*F_CS}")
    p(f"v_and_b32 v{vC+4}, 3, v{vL}")
    p(f"v_lshlrev_b32 v{vC}, 10, v{vC+4}")
    p(f"v_bfe_u32 v{vC+3}, v{vL}, 2, 2")
    p(f"v_min_u32 v{vC+2}, 2, v{vC+3}")
    p(f"v_lshl_add_u32 v{vC}, v{vC+2}, 4, v{vC}")
    p(f"v_add_u32 v{vFA}, s{t2}, v{vC}")
    vmc = VM(p)
    if X('FAKEC'):
        _iss = vmc.issue
        cnt = [0]
        def fake(tag, text, cond=False):
            cnt[0] += 1
            if tag == "F" or cnt[0] & 1: _iss(tag, text, cond)
        vmc.issue = fake
    FPOLL = f"buffer_load_dword v{vFD}, v{vFA}, {WS}, 0 offen sc1"
    vmc.issue("F", FPOLL)
    def fcheck(mask, tag):
        top, ok = newlab("fc" + tag), newlab("fcok" + tag)
        p.label(top)
        p(f"v_cmp_ne_u32 vcc, 1, v{vFD}")
        p("s_nop 1")
        p(f"s_and_b32 s{t9}, vcc_lo, {mask}")
        p(f"s_cbranch_scc0 {ok}")
        p("s_sleep 2")
        p(FPOLL)
        p("s_waitcnt vmcnt(0)")
        p(f"s_sub_u32 s{sTO}, s{sTO}, 1")
        p(f"s_cbranch_scc0 {top}")
        p(f"s_mov_b32 s{sTO}, 0")
        p.label(ok)
    p(f"s_and_b32 s{t0}, s{sN}, 1")
    p(f"s_lshl_b32 s{t0}, s{t0}, 15")
    p(f"s_add_u32 s{sVN}, s{t0}, {LWS[1] + 8192}")
    p(f"s_sub_u32 s{sVO}, {LWS[2]}, s{t0}")
    p(f"s_lshl_b32 s{t3}, s{sW4}, 14")
    p(f"s_add_u32 s{t2}, s{sVO}, s{t3}")
    p(f"s_cmp_eq_u32 s{sW}, 6")
    p(f"s_cselect_b32 s{t2}, s{sVN}, s{t2}")
    p(f"s_cmp_eq_u32 s{sW}, 7")
    p(f"s_cselect_b32 s{t2}, {MISC + 8192}, s{t2}")
    p(f"s_cmp_eq_u32 s{sG}, 0")
    p(f"s_cselect_b32 s{sRING}, s{t3}, s{t2}")
    p(f"v_lshrrev_b32 v{vC}, 3, v{vL}")
    p(f"v_lshlrev_b32 v{vC}, 10, v{vC}")
    p(f"v_bfe_u32 v{vC+1}, v{vL}, 4, 1")
    p(f"v_lshlrev_b32 v{vC+2}, 2, v{vC+1}")
    p(f"v_and_b32 v{vC+3}, 7, v{vL}")
    p(f"v_xor_b32 v{vC+3}, v{vC+3}, v{vC+2}")
    p(f"v_lshl_add_u32 v{vC}, v{vC+3}, 4, v{vC}")
    p(f"s_lshl_b32 s{t0}, s{sCB}, 7")
    p(f"v_add_u32 v{vWD}, s{t0}, v{vC}")
    p(f"s_lshl_b32 s{sWK}, s{sW}, 19")
    p(f"s_lshl_b32 s{sBK}, s{sW}, 16")
    def wload(j):
        if j >= 4:
            wb, wo_, S_, d2 = sWK, ((j - 4) >> 1) * 32768 + ((j - 4) & 1) * 8192, S_WO, 16384
        else:
            wb, wo_, S_, d2 = sBK, j * 16384, S_BWO, 8192
        p(f"s_add_u32 m0, s{sRING}, {(j % NS) * 2048}")
        p(f"s_add_u32 s{t0}, s{wb}, {wo_}")
        p(f"s_add_u32 s{t1}, s{wb}, {wo_ + d2 - 1024}")
        vmc.issue(("W", j), f"buffer_load_dwordx4 v{vWD}, {sr(S_)}, s{t0} offen lds")
        vmc.issue(("W", j), f"buffer_load_dwordx4 v{vWD}, {sr(S_)}, s{t1} offen offset:1024 lds")
    for j in range(4):
        wload(j)
    p(f"v_lshrrev_b32 v{vC+2}, 5, v{vL}")
    p(f"v_bfe_u32 v{vC+3}, v{vL}, 2, 2")
    p(f"v_lshl_add_u32 v{vC}, v{vC+2}, 2, v{vC+3}")
    p(f"v_lshlrev_b32 v{vC}, 7, v{vC}")
    p(f"v_lshl_add_u32 v{vC}, v{vC+1}, 5, v{vC}")
    p(f"v_lshl_add_u32 v{vC}, v{vC+4}, 3, v{vC}")
    p(f"v_add_u32 v{vC}, s{sRING}, v{vC}")
    p(f"v_lshrrev_b32 v{vC+3}, 1, v{vC+3}")
    p(f"v_lshl_add_u32 v{vR}, v{vC+3}, 6, v{vC}")
    p(f"v_xor_b32 v{vC+3}, 1, v{vC+3}")
    p(f"v_lshl_add_u32 v{vR+1}, v{vC+3}, 6, v{vC}")
    p(f"s_lshl_b32 s{t0}, s{sI}, 2")
    p(f"s_sub_u32 s{t1}, 60, s{t0}")
    p(f"s_add_u32 s{t0}, s{t0}, s{sTB}")
    p(f"s_add_u32 s{t1}, s{t1}, s{sTB}")
    p(f"s_mul_i32 s{t0}, s{t0}, {288 * 1024}")
    p(f"s_mul_i32 s{t1}, s{t1}, {288 * 1024}")
    p(f"s_lshl_b32 s{t2}, s{sW}, 15")
    p(f"s_add_u32 s{t2}, s{t2}, {AWS}")
    p(f"s_add_u32 s{sAS}, s{t0}, s{t2}")
    p(f"s_add_u32 s{sAL}, s{t1}, s{t2}")
    p(f"s_mul_i32 s{t4}, s{sW}, {28 * 1024}")
    p(f"s_sub_u32 s{t4}, {256 * 1024}, s{t4}")
    p(f"s_add_u32 s{t5}, s{sAL}, s{t4}")
    p(f"s_add_u32 s{t4}, s{sAS}, s{t4}")
    p.seg("cmain")
    items = [(j, 'temp', (0, 1), True) for j in range(4)]
    items += [(j, 'hold', (0,), True) for j in range(4, 4 + HH)]
    items += [(j, 'temp', (0,), False) for j in range(4 + HH, 12 + HH)]
    NPRE = len(items)
    items += [(j, 'temp', (1,), True) for j in range(4 + HH, 12 + HH)]
    items += [(j, 'held', (1,), False) for j in range(4, 4 + HH)]
    items += [(j, 'temp', (0, 1), True) for j in range(12 + HH, 36)]
    NI = len(items)
    pool = [q for q in range(64, 244, 4) if q != 172]
    WT = [[pool.pop(), pool.pop()], [pool.pop(), pool.pop()]]
    NPOOL = len(pool)
    heldq = [0] * (NI + 2)
    for n in range(NI):
        heldq[n] = 2 * (sum(1 for m in range(min(n + 2, NI)) if items[m][1] == 'hold') - sum(1 for m in range(n) if items[m][1] == 'held'))
    alist = [(n, tb) for n in range(NI) for tb in items[n][2]]
    areg, wreg = {}, {}
    st = {'a': 0, 'polled': False, 'checked': False, 'tcount': 0}
    firstL = next(k for k, (n, tb) in enumerate(alist) if n >= NPRE)
    PD = int(os.environ.get('PDIST', 8))
    def feasible(cur, k):
        x = alist[k][0]
        if sum(1 for q in range(k + 1) if alist[q][0] >= cur) > DMAX: return False
        for tau in range(cur, x + 1):
            if heldq[tau] + sum(1 for q in range(k + 1) if alist[q][0] >= tau) > NPOOL: return False
        return True
    def aissue(cur, limit=None):
        while st['a'] < len(alist) and (limit is None or st['a'] < limit) and feasible(cur, st['a']):
            k = st['a']
            if k == firstL - PD:
                vmc.issue("F", FPOLL)
            if k == firstL:
                vmc.wait(["F"])
                cstamp(p, 44)
                fcheck(0xf0, "l")
                cstamp(p, 45)
            n, tb = alist[k]
            j = items[n][0]
            r = pool.pop(0)
            areg[(n, tb)] = r
            if j < 4:
                vmc.issue(("A", n), f"buffer_load_dwordx4 {vr(r)}, v{vST}, {WS}, s{t5 if tb else t4} offen offset:{j * 1024} sc1")
            else:
                p(f"s_add_u32 s{t2}, s{sAL if tb else sAS}, {((j - 4) >> 2) * 4096}")
                vmc.issue(("A", n), f"buffer_load_dwordx4 {vr(r)}, v{vST}, {WS}, s{t2} offen offset:{((j - 4) & 3) * 1024} sc1")
            st['a'] += 1
    def treads(n):
        j, wm = items[n][:2]
        if wm == 'held':
            return 0
        if wm == 'hold':
            wreg[j] = [pool.pop(0), pool.pop(0)]
        else:
            wreg[j] = WT[st['tcount'] & 1]; st['tcount'] += 1
        for cb in range(2):
            o = (j % NS) * 2048
            w = wreg[j][cb]
            p(f"ds_read_b64_tr_b16 v[{w}:{w+1}], v{vR+cb} offset:{o}")
            p(f"ds_read_b64_tr_b16 v[{w+2}:{w+3}], v{vR+cb} offset:{o + 1024}")
        return 4
    cstamp(p, 41)
    for j in range(4, NS):
        wload(j)
    if not X('NOBX'):
        p(f"s_cmp_lg_u32 s{sBX}, 0")
        p("s_cbranch_scc1 L_nobx")
        p("s_barrier")
        p.label("L_nobx")
    cstamp(p, 42)
    vmc.wait(["F"])
    fcheck(0xf0f, "s")
    cstamp(p, 43)
    aissue(0)
    vmc.wait([("W", 0)])
    treads(0)
    for n in range(NI):
        j, wm, rows, rel = items[n]
        w = wreg[j]
        if n + 1 < NI:
            vmc.wait([("W", items[n + 1][0]), ("A", n)])
            k = treads(n + 1)
            p(f"s_waitcnt lgkmcnt({k})")
        else:
            vmc.wait([("A", n)], "lgkmcnt(0)")
        if n % 8 == 0: cstamp(p, 32 + n // 8)
        for cb in range(2):
            for tb in rows:
                a = AA(cb, tb)
                c = "0" if n == 0 else vr(a, 16)
                p(f"{MF} {vr(a,16)}, {vr(w[cb])}, {vr(areg[(n, tb)])}, {c}")
        for tb in rows:
            pool.append(areg[(n, tb)])
        if wm == 'held':
            pool.extend(w)
        if rel and j + NS < 36:
            wload(j + NS)
        aissue(n + 1)
    vC = 217
    stamp(p, 26)
    p(f"v_add_u32 v{vC}, s{sRING}, v{vST}")
    p(f"s_lshl_b32 s{t0}, s{sW}, 11")
    p(f"v_add_u32 v{vC+1}, s{t0}, v{vST}")
    p(f"v_add_u32 v{vC+2}, s{sVO}, v{vC+1}")
    p(f"v_add_u32 v{vC+3}, s{sVN}, v{vC+1}")
    p(f"v_add_u32 v{vC+4}, {MISC + 8192}, v{vC+1}")
    p("s_nop 2")
    for q in range(16):
        p(f"ds_write_b128 v{vC}, {vr(q*4)} offset:{q*1024}")
    p(f"s_lshr_b32 s{t0}, s{sW}, 1")
    p(f"s_and_b32 s{t1}, s{t0}, 1")
    p(f"s_lshr_b32 s{t0}, s{t0}, 1")
    p(f"s_sub_u32 s{t2}, 15, s{sI}")
    p(f"s_cmp_eq_u32 s{t1}, 0")
    p(f"s_cselect_b32 s{t2}, s{sI}, s{t2}")
    p(f"s_lshl_b32 s{t2}, s{t2}, 2")
    p(f"s_add_u32 s{t2}, s{t2}, s{sTB}")
    p(f"s_lshl_b32 s{t2}, s{t2}, 15")
    p(f"s_lshl_b32 s{t3}, s{sCB}, 7")
    p(f"s_add_u32 s{t2}, s{t2}, s{t3}")
    p(f"s_lshl_b32 s{t3}, s{t0}, 6")
    p(f"s_add_u32 s{t2}, s{t2}, s{t3}")
    p(f"s_and_b32 s{t3}, s{sW}, 1")
    p(f"s_lshl_b32 s{t3}, s{t3}, 5")
    p(f"s_add_u32 s{t2}, s{t2}, s{t3}")
    p(f"v_and_b32 v{vC+5}, 31, v{vL}")
    p(f"v_lshlrev_b32 v{vC+5}, 10, v{vC+5}")
    p(f"v_lshrrev_b32 v{vC+6}, 5, v{vL}")
    p(f"v_lshl_add_u32 v{vC+5}, v{vC+6}, 4, v{vC+5}")
    p("s_waitcnt lgkmcnt(0)")
    p("s_barrier")
    for w in range(8):
        a, o = ((vC + 1, w * 16384) if w < 4 else (vC + 2, (w - 4) * 16384) if w < 6 else (vC + 3, 0) if w == 6 else (vC + 4, 0))
        for q in range(2):
            p(f"ds_read_b128 {vr(64 + w*8 + q*4)}, v{a} offset:{o + q * 1024}")
    for w in range(1, 8):
        p(f"s_waitcnt lgkmcnt({2 * (7 - w)})")
        for i in range(8):
            p(f"v_add_f32 v{64+i}, v{64+i}, v{64 + w*8 + i}")
    for i in range(4):
        p(f"v_cvt_pk_bf16_f32 v{i}, v{64+2*i}, v{65+2*i}")
    p("s_nop 1")
    p("v_permlane32_swap_b32 v0, v2")
    p("v_permlane32_swap_b32 v1, v3")
    p("s_nop 1")
    p(f"buffer_store_dwordx4 v[0:3], v{vC+5}, {sr(S_OUT)}, s{t2} offen")
    if STAMPS:
        stamp(p, 27)
        p("s_waitcnt vmcnt(0)")
        stamp(p, 28); stamp_real(p, 63)
        p(f"s_lshl_b32 s{t0}, s{sL}, 3")
        p(f"s_add_u32 s{t0}, s{t0}, s{sW}")
        p(f"s_lshl_b32 s{t0}, s{t0}, 8")
        p(f"s_add_u32 s{t0}, s{t0}, {DBGOFF}")
        p(f"v_lshlrev_b32 v{vC}, 2, v{vL}")
        p(f"buffer_store_dword v{vSTAMP}, v{vC}, {WS}, s{t0} offen")
    p.label("L_end")
    p("s_endpgm")
    def need_check(tile, tag):
        top, ok = newlab("nd" + tag), newlab("ndok" + tag)
        p(f"s_sub_u32 s{t9}, 15, s{tile}")
        p(f"s_min_u32 s{t9}, s{t9}, s{tile}")
        p(f"s_lshl_b32 s{t9}, s{t9}, 3")
        p(f"s_lshl_b64 s[{t2}:{t3}], 0xff, s{t9}")
        p(f"s_lshr_b32 s{t9}, s{tile}, 3")
        p(f"s_lshl_b32 s{t9}, s{t9}, 5")
        p.label(top)
        p(f"v_cmp_ne_u32 vcc, 1, v{vPD}")
        p("s_nop 1")
        p(f"s_and_b64 s[{t10}:{t11}], vcc, s[{t2}:{t3}]")
        p(f"s_cbranch_scc0 {ok}")
        p("s_sleep 1")
        p(f"buffer_load_dword v{vPD}, v{vPA}, {WS}, s{t9} offen sc1")
        p("s_waitcnt vmcnt(0)")
        p(f"s_sub_u32 s{sTO}, s{sTO}, 1")
        p(f"s_cbranch_scc0 {top}")
        p(f"s_mov_b32 s{sTO}, 0")
        p.label(ok)
    def loader(tag):
        def piece(src, k):
            return f"buffer_load_dwordx4 v{vST}, {WS}, s{src} offen offset:{(k & 3) * 1024} sc1 lds"
        skipk, skipv = newlab("skipk"), newlab("skipv")
        p(f"s_mov_b32 s{t7}, s{sT}")
        p(f"s_sub_u32 s{sT}, s{sR}, 1")
        p(f"s_cmp_ge_u32 s{sT}, s{sI}")
        p(f"s_addc_u32 s{sT}, s{sT}, 0")
        p(f"s_add_u32 s{t8}, s{sR}, 1")
        p(f"s_cmp_ge_u32 s{t8}, s{sN}")
        p(f"s_cbranch_scc1 {skipk}")
        need_check(sT, tag)
        if tag == "i": cstamp(p, 48)
        p(f"s_lshl_b32 s{t6}, s{sT}, 15")
        p(f"s_add_u32 s{t5}, s{sKB}, s{t6}")
        p(f"s_mov_b32 m0, s{sKM}")
        p(f"s_add_u32 s{t9}, s{t5}, 4096")
        for k in range(8):
            if k == 4:
                p("s_add_u32 m0, m0, 4096"); p("s_nop 0")
            p(piece(t5 if k < 4 else t9, k))
        p.label(skipk)
        p(f"s_cmp_lg_u32 s{sW4}, 0")
        p(f"s_cselect_b32 s{t6}, s{sT}, s{t7}")
        p(f"s_cselect_b32 s{t9}, 1, 0")
        p(f"s_cselect_b32 s{t5}, 99, s{t8}")
        p(f"s_add_u32 s{t9}, s{t8}, s{t9}")
        p(f"s_cmp_gt_u32 s{t9}, s{sN}")
        p(f"s_cbranch_scc1 {skipv}")
        p(f"s_cmp_lt_u32 s{t5}, 3")
        p(f"s_cbranch_scc1 {skipv}")
        p(f"s_lshl_b32 s{t6}, s{t6}, 15")
        p(f"s_add_u32 s{t5}, s{sVB}, s{t6}")
        p(f"s_mov_b32 m0, s{sVM}")
        p(f"s_add_u32 s{t9}, s{t5}, 4096")
        for k in range(8):
            if k == 4:
                p("s_add_u32 m0, m0, 4096"); p("s_nop 0")
            p(piece(t5 if k < 4 else t9, k))
        p.label(skipv)
        p(f"s_xor_b32 s{sKM}, s{sKM}, 0x8000")
        p(f"s_xor_b32 s{sVM}, s{sVM}, 0x38000")
        p(f"s_cmp_ge_u32 s{sR}, s{sI}")
        p(f"s_addc_u32 s{t9}, s{sR}, 0")
        p(f"s_cmp_ge_u32 s{t9}, 8")
        p(f"s_cselect_b32 s{t9}, 32, 0")
        p(f"buffer_load_dword v{vPD}, v{vPA}, {WS}, s{t9} offen sc1")
    p.seg("hook")
    p.label("L_hook")
    p(f"s_cmp_lg_u32 s{sG}, 0")
    p("s_cbranch_scc1 L_hook1")
    p(f"s_cmp_lg_u32 s{sR}, 1")
    p("s_cbranch_scc1 L_hookld")
    p.seg("idle")
    stamp(p, 24)
    KV, XA, va, vb, vc, vn, vgo = 128, S(0), 173, 174, 175, vPE, vPB
    p(f"s_lshl_b32 s{t0}, s{sW4}, 12")
    p(f"s_add_u32 s{t0}, s{t0}, {MISC + 8192}")
    p(f"v_add_u32 v{vc}, s{t0}, v{vST}")
    for s in range(2):
        p(f"ds_read_b128 {vr(PQ + 4*s)}, v{vc} offset:{s*1024}")
    loader("i")
    cstamp(p, 49)
    p("s_waitcnt lgkmcnt(0)")
    for s in range(2):
        p(f"ds_read_b128 {vr(KV + 4*s)}, v{vc} offset:{2048 + s*1024}")
    phi_inplace(PQ, 4, XA)
    phi_inplace(PQ + 4, 4, XA)
    ONE, OUT = KV + 8, KV
    for i in range(4):
        p(f"v_mov_b32 v{ONE+i}, 0x3f803f80")
    p(f"v_and_b32 v{va}, 16, v{vL}")
    p(f"v_cmp_ne_u32 vcc, 0, v{va}")
    p("s_waitcnt lgkmcnt(0)")
    p(f"{MF} {vr(XA,16)}, {vr(PQ)}, {vr(KV)}, 0")
    p(f"{MF} {vr(XA,16)}, {vr(PQ+4)}, {vr(KV+4)}, {vr(XA,16)}")
    p(f"s_lshl_b32 s{t0}, s{sL}, 2")
    p(f"s_add_u32 s{t0}, s{t0}, s{sW4}")
    p(f"s_lshl_b32 s{t0}, s{t0}, 12")
    p(f"s_add_u32 s{t0}, s{t0}, {KVP}")
    p("s_nop 7")
    for i in range(8):
        p(f"v_cndmask_b32 v{OUT+i}, v{XA+i}, v{XA+8+i}, vcc")
    p(f"{MF} {vr(XA,16)}, {vr(PQ)}, {vr(ONE)}, 0")
    p(f"{MF} {vr(XA,16)}, {vr(PQ+4)}, {vr(ONE)}, {vr(XA,16)}")
    for q in range(2):
        p(f"buffer_store_dwordx4 {vr(OUT + q*4)}, v{vST}, {WS}, s{t0} offen offset:{q*1024} sc1")
    p("s_nop 9")
    for i in range(8):
        p(f"v_cndmask_b32 v{OUT+8+i}, v{XA+i}, v{XA+8+i}, vcc")
    for q in range(2, 4):
        p(f"buffer_store_dwordx4 {vr(OUT + q*4)}, v{vST}, {WS}, s{t0} offen offset:{q*1024} sc1")
    cstamp(p, 50)
    p("s_waitcnt vmcnt(4)")
    stamp(p, 25)
    p("s_barrier")
    p(f"s_mov_b32 s{sR}, 2")
    loader("j")
    p(f"s_mov_b32 s{sHK2}, 4")
    p(f"s_setpc_b64 s[{LKB}:{LKB+1}]")
    p.seg("hookld")
    p.label("L_hookld")
    def grp_flag_addr():
        p(f"v_lshrrev_b32 v{va}, 2, v{vL}")
        p(f"v_lshlrev_b32 v{vb}, 12, v{va}")
        p(f"v_lshlrev_b32 v{va}, 7, v{va}")
        p(f"v_and_b32 v{vc}, 3, v{vL}")
        p(f"v_lshl_add_u32 v{va}, v{vc}, 2, v{va}")
    p(f"s_sub_u32 s{t2}, s{sR}, s{sR1}")
    p(f"s_add_u32 s{t3}, s{t2}, 1")
    p(f"s_cmp_lt_u32 s{t2}, 2")
    p(f"s_cselect_b32 s{sJOB}, s{t3}, 0")
    p(f"s_sub_u32 s{t2}, s{sR}, s{sRO}")
    p(f"s_add_u32 s{t3}, s{t2}, 3")
    p(f"s_cmp_lt_u32 s{t2}, 2")
    p(f"s_cselect_b32 s{sJOB}, s{t3}, s{sJOB}")
    p(f"s_cmp_eq_u32 s{t2}, 2")
    p(f"s_cselect_b32 s{t2}, {F_O}, 0")
    p(f"s_cmp_eq_u32 s{sR}, 3")
    p(f"s_cselect_b32 s{t2}, {F_B}, s{t2}")
    p(f"s_cmp_eq_u32 s{t2}, 0")
    p("s_cbranch_scc1 L_nofo")
    p(f"s_add_u32 s{t2}, s{t2}, s{sW4}")
    flag_store(va, vb, 0, t2)
    p.label("L_nofo")
    p(f"s_cmp_lg_u32 s{sR}, s{sFH}")
    p("s_cbranch_scc1 L_nohi")
    p(f"s_cmp_lg_u32 s{sW}, 0")
    p("s_cbranch_scc1 L_nohi")
    flag_store(va, vb, 8, base=FL2, lanes=8)
    p.label("L_nohi")
    p(f"s_cmp_lg_u32 s{sJOB}, 0")
    p("s_cbranch_scc1 L_jpre")
    p.seg("hookl2")
    p.label("L_jpreb")
    loader("r")
    p(f"s_cmp_lg_u32 s{sJOB}, 0")
    p("s_cbranch_scc1 L_jpost")
    p.seg("hookl3")
    p.label("L_jpostb")
    if not X('NOPF'):
        p(f"s_add_u32 s{t0}, s{sR}, {PFD}")
        p(f"s_sub_u32 s{t2}, s{t0}, s{sN}")
        p(f"s_cmp_gt_u32 s{t2}, 2")
        p("s_cbranch_scc1 L_nopf")
        p(f"s_mov_b32 s{sOUT}, 1")
        p(f"s_lshl_b32 s{t0}, s{sCB}, 7")
        p(f"s_cmp_eq_u32 s{t2}, 2")
        p("s_cbranch_scc1 L_pf2")
        p(f"v_lshlrev_b32 v{vc}, 10, v{vL}")
        p(f"v_add_u32 v{vc}, s{t0}, v{vc}")
        p(f"s_lshl_b32 s{t0}, s{sI}, 19")
        p(f"s_lshl_b32 s{t1}, s{sW4}, 17")
        p(f"s_add_u32 s{t0}, s{t0}, s{t1}")
        p(f"s_lshl_b32 s{t1}, s{t2}, 16")
        p(f"s_add_u32 s{t0}, s{t0}, s{t1}")
        p(f"buffer_load_dword v{vn}, v{vc}, {sr(S_WO)}, s{t0} offen")
        p.cur[-1].nodst = True
        p("s_branch L_nopf")
        p.label("L_pf2")
        p(f"v_and_b32 v{vc}, 15, v{vL}")
        p(f"v_lshlrev_b32 v{vc}, 10, v{vc}")
        p(f"v_add_u32 v{vc}, s{t0}, v{vc}")
        p(f"s_lshl_b32 s{t0}, s{sI}, 16")
        p(f"s_lshl_b32 s{t1}, s{sW4}, 14")
        p(f"s_add_u32 s{t0}, s{t0}, s{t1}")
        p(f"buffer_load_dword v{vn}, v{vc}, {sr(S_BWO)}, s{t0} offen")
        p.cur[-1].nodst = True
        p.label("L_nopf")
    p(f"s_setpc_b64 s[{LKB}:{LKB+1}]")
    RL = KV
    def fbase(dst):
        p(f"s_cmp_eq_u32 s{sJOB}, 1")
        p(f"s_cselect_b32 s{dst}, {FLG + 4*F_B}, {FLG + 4*F_K}" if False else f"s_cselect_b32 s{dst}, {4*F_B}, {4*F_K}")
        p(f"s_lshl_b32 s{t1}, s{sHP}, 11")
        p(f"s_add_u32 s{dst}, s{dst}, s{t1}")
        p(f"s_add_u32 s{dst}, s{dst}, {FLG}")
    p.seg("jpre")
    p.label("L_jpre")
    p(f"s_cmp_eq_u32 s{sJOB}, 2")
    p("s_cbranch_scc1 L_red")
    p(f"s_cmp_eq_u32 s{sJOB}, 4")
    p("s_cbranch_scc1 L_jpreb")
    grp_flag_addr()
    fbase(t0)
    p(f"buffer_load_dword v{vPK}, v{va}, {WS}, s{t0} offen sc1")
    p("s_branch L_jpreb")
    p.seg("red")
    p.label("L_red")
    p(f"s_lshl_b32 s{t0}, s{sW4}, 12")
    p(f"s_add_u32 s{t0}, s{t0}, {MISC + 8192}")
    p(f"v_add_u32 v{vb}, s{t0}, v{vST}")
    p(f"v_and_b32 v{vc}, 3, v{vL}")
    p(f"v_lshlrev_b32 v{vc}, 4, v{vc}")
    for k in range(4):
        p(f"ds_read_b128 {vr(RL + 4*k)}, v{vb} offset:{k * 1024}")
    red_slice_base(t0, KVT)
    p(f"s_lshl_b32 s{t1}, s{sHP}, 12")
    p(f"s_add_u32 s{t0}, s{t0}, s{t1}")
    p("s_waitcnt lgkmcnt(0)")
    for i in range(4):
        p(f"v_add_f32 v{RL+i}, v{RL+i}, v{RL+4+i}")
        p(f"v_add_f32 v{RL+8+i}, v{RL+8+i}, v{RL+12+i}")
    for i in range(4):
        p(f"v_add_f32 v{RL+i}, v{RL+i}, v{RL+8+i}")
    for sh in ("row_shr:4", "row_shr:8"):
        for i in range(4):
            p(f"v_add_f32_dpp v{RL+i}, v{RL+i}, v{RL+i} {sh} row_mask:0xf bank_mask:0xf bound_ctrl:0")
    for sw in ("v_permlane16_swap_b32", "v_permlane32_swap_b32"):
        for i in range(4):
            p(f"v_mov_b32 v{RL+4+i}, v{RL+i}")
        for i in range(4):
            p(f"{sw} v{RL+i}, v{RL+4+i}")
        for i in range(4):
            p(f"v_add_f32 v{RL+i}, v{RL+i}, v{RL+4+i}")
    p("s_mov_b64 exec, 0xf000")
    p(f"buffer_store_dwordx4 {vr(RL)}, v{vc}, {WS}, s{t0} offen sc1")
    p("s_mov_b64 exec, -1")
    p("s_branch L_jpreb")
    p.seg("jpost")
    p.label("L_jpost")
    p(f"s_cmp_eq_u32 s{sJOB}, 4")
    p("s_cbranch_scc1 L_oph")
    p("s_waitcnt vmcnt(17)")
    p(f"s_cmp_eq_u32 s{sJOB}, 2")
    p("s_cbranch_scc1 L_fk")
    p(f"v_cmp_ne_u32 vcc, 1, v{vPK}")
    fbase(t0)
    p("s_cbranch_vccz L_jok")
    poll_block(p, [(vPK, va, S_WS, f"s{t0}", 1)], "fb")
    p.label("L_jok")
    p(f"s_cmp_eq_u32 s{sJOB}, 3")
    p("s_cbranch_scc1 L_kvt")
    p(f"v_lshl_add_u32 v{vb}, v{vc}, 4, v{vb}")
    red_slice_base(t0, KVP)
    p(f"s_lshl_b32 s{t1}, s{sHP}, 18")
    p(f"s_add_u32 s{t0}, s{t0}, s{t1}")
    p(f"s_lshl_b32 s{t1}, s{sW4}, 12")
    p(f"s_add_u32 m0, s{t1}, {MISC + 8192}")
    for k in range(4):
        p(f"s_add_u32 s{t1}, s{t0}, {k * (65536 - 1024)}")
        p(f"buffer_load_dwordx4 v{vb}, {WS}, s{t1} offen offset:{k * 1024} sc1 lds")
    p("s_branch L_jpostb")
    p.label("L_kvt")
    p(f"s_lshl_b32 s{t1}, s{sW4}, 10")
    p(f"s_add_u32 m0, s{t1}, {MISC + 8192}")
    p(f"s_lshl_b32 s{t0}, s{sHP}, 12")
    p(f"s_add_u32 s{t0}, s{t0}, s{t1}")
    p(f"s_add_u32 s{t0}, s{t0}, {KVT}")
    p(f"buffer_load_dwordx4 v{vST}, {WS}, s{t0} offen sc1 lds")
    p("s_branch L_jpostb")
    p.label("L_fk")
    flag_store(va, vb, F_K, sW4)
    p("s_branch L_jpostb")
    p.seg("oph")
    p.label("L_oph")
    vn = vPK
    p(f"s_lshl_b32 s{t1}, s{sW4}, 11")
    p(f"s_add_u32 s{t1}, s{t1}, {MISC}")
    p(f"v_add_u32 v{vc}, s{t1}, v{vST}")
    p(f"v_add_u32 v{va}, {MISC}, v{vST}")
    for s in range(2):
        p(f"ds_read_b128 {vr(PQ + 4*s)}, v{vc} offset:{s*1024}")
    for q in range(4):
        p(f"ds_read_b128 {vr(KV + q*4)}, v{va} offset:{8192 + q*1024}")
    p("s_waitcnt lgkmcnt(0)")
    phi_inplace(PQ, 4, XA)
    phi_inplace(PQ + 4, 4, XA)
    gate_check(vgo, va, vb, True, "o")
    p(f"v_and_b32 v{va}, 16, v{vL}")
    p(f"v_cmp_ne_u32 vcc, 0, v{va}")
    for i in range(8):
        p(f"v_cvt_pk_bf16_f32 v{XA+i}, v{KV+2*i}, v{KV+2*i+1}")
    for i in range(8):
        p(f"v_cndmask_b32 v{KV+i}, v{XA+i}, 0, vcc")
    for i in range(8):
        p(f"v_cndmask_b32 v{KV+8+i}, 0, v{XA+i}, vcc")
    p("s_nop 1")
    p(f"{MF} {vr(XA,16)}, {vr(KV+4)}, {vr(PQ)}, 0")
    p(f"{MF} {vr(XA,16)}, {vr(KV+12)}, {vr(PQ+4)}, {vr(XA,16)}")
    p(f"s_lshl_b32 s{t0}, s{sRB}, 2")
    p(f"s_add_u32 s{t0}, s{t0}, s{sW4}")
    p(f"s_mul_i32 s{t0}, s{t0}, 288")
    p(f"s_lshl_b32 s{t1}, s{sHP}, 1")
    p(f"s_add_u32 s{t0}, s{t0}, s{t1}")
    p(f"s_add_u32 s{t0}, s{t0}, 256")
    p(f"s_lshl_b32 s{t0}, s{t0}, 10")
    p(f"s_add_u32 s{t0}, s{t0}, {AWS}")
    p("s_nop 7")
    p(f"v_add_f32 v{va}, 0x358637bd, v{XA}")
    p(f"v_add_f32 v{vb}, 0x358637bd, v{XA+8}")
    p(f"{MF} {vr(XA,16)}, {vr(KV)}, {vr(PQ)}, 0")
    p(f"{MF} {vr(XA,16)}, {vr(KV+8)}, {vr(PQ+4)}, {vr(XA,16)}")
    p(f"v_rcp_f32 v{va}, v{va}")
    p(f"v_rcp_f32 v{vb}, v{vb}")
    p(f"v_sub_f32 v{vgo}, 2.0, v{vgo}")
    p(f"v_mul_f32 v{va}, v{va}, v{vgo}")
    p(f"v_mul_f32 v{vb}, v{vb}, v{vgo}")
    p("s_nop 8")
    for i in range(16):
        p(f"v_mul_f32 v{XA+i}, v{XA+i}, v{va if i < 8 else vb}")
    for i in range(8):
        p(f"v_cvt_pk_bf16_f32 v{KV+i}, v{XA+2*i}, v{XA+1+2*i}")
    for s in range(2):
        p(f"buffer_store_dwordx4 {vr(KV + 4*s)}, v{vST}, {WS}, s{t0} offen offset:{s*1024} sc1")
    p("s_nop 1")
    p("s_branch L_jpostb")
    p.seg("hook1")
    p.label("L_hook1")
    p(f"s_mov_b32 s{sHK2}, 4")
    p(f"s_mov_b32 s{sHK}, 0")
    p(f"s_setpc_b64 s[{LKB}:{LKB+1}]")
    for k in (1, 2):
        p.seg(f"h2c{k}")
        p.label(f"L_h2c{k}")
        p(f"s_sub_u32 s{sHK2}, s{sHK2}, 1")
        p(f"s_cmp_lt_u32 s{sHK2}, 2")
        p(f"s_cbranch_scc1 L_h2d{k}")
        stash_stores([k - 1])
        p(f"s_branch L_h2b{k}")
        p.label(f"L_h2d{k}")
        stash_stores([k + 1])
        p(f"s_branch L_h2b{k}")
    p.seg("tramps")
    for k, sb in tramps:
        p.label(f"L_tr{k}")
        p(f"s_call_b64 s[{LKA}:{LKA+1}], L_rare{sb}")
        p(f"s_branch L_bk{k}")
    for sb in range(2):
        p.seg(f"rare{sb}")
        p.label(f"L_rare{sb}")
        for qg in range(2):
            p(f"v_log_f32 v{vU+4+qg}, v{LQ_+4*qg}")
        p(f"s_mov_b32 s{t4}, 0x5f800000")
        p("s_nop 15")
        maxtree(sb, vU)
        for qg in range(2):
            p(f"v_cmp_gt_f32 s[{SM[qg]}:{SM[qg]+1}], s{t4}, v{LQ_+4*qg}")
        p("s_nop 0")
        for qg in range(2):
            p(f"v_cndmask_b32 v{vU+qg}, v{vU+qg}, v{vU+4+qg}, s[{SM[qg]}:{SM[qg]+1}]")
        for qg in range(2):
            p(f"v_ceil_f32 v{vU+qg}, v{vU+qg}")
        for qg in range(2):
            p(f"v_max_f32 v{vU+qg}, 0, v{vU+qg}")
        for qg in range(2):
            p(f"v_exp_f32 v{vU+2+qg}, -v{vU+qg}")
        for i in range(32):
            p(f"v_sub_f32 v{S(0)+i}, v{S(0)+i}, v{vU + ((i >> 3) & 1)}")
        for i in range(8):
            p(f"v_sub_f32 v{NEGM+i}, v{NEGM+i}, v{vU + (i >> 2)}")
        for i in range(64):
            p(f"v_mul_f32 v{i}, v{i}, v{vU + 2 + (i >> 5)}")
        for qg in range(2):
            p(f"v_mul_f32 v{LQ_+4*qg}, v{LQ_+4*qg}, v{vU+2+qg}")
        seq = []
        for n in range(E0, 64):
            seq += gap_ops(n, None, sb, with_cur=False) if n < 32 else gap_ops(n - 32, sb, sb ^ 1)
        for _, t, b_ in seq:
            if t == "CHECK": break
            if t.startswith("v_exp") or t.startswith("v_cvt"):
                p(t)
                p("s_nop 0")
        p("s_nop 1")
        for qg in range(2):
            p(msum(sb, qg, vU + 4 * qg))
        p("s_nop 7")
        for qg in range(2):
            p(f"v_cndmask_b32 v{LQ_+4*qg}, v{vU+4*qg}, v{LQ_+4*qg}, s[{SM[qg]}:{SM[qg]+1}]")
        p("s_nop 1")
        p(f"s_setpc_b64 s[{LKA}:{LKA+1}]")
    errs = []
    G0 = ["pro", "g0_pro"] + [f"g0_s{s}" for s in range(16)] + ["g0_tr", "apro"]
    G1 = ["pro", "g1_pro"] + [f"g1_s{s}" for s in range(16)] + ["g1_tr", "apro"]
    post = ["tail", "epi", "epi2", "help0", "help", "hook", "hookld", "hookl2", "hookl3", "help0", "help", "hx", "cpro", "cmain"]
    H0 = ["hook", "idle"]
    errs += p.check(G0 + ["pro3", "pro3L"] + H0 + ["pro3L_b"] + post)
    errs += p.check(G1 + ["pro0", "it1", "it2", "it3", "hook", "hook1", "it3_b", "it0", "it1", "it2", "it3L", "it3L_b"] + post)
    errs += p.check(["apro", "pro1", "it2", "it3"] + H0 + ["it3_b", "it0", "it1", "it2", "it3", "hook", "hookld", "hookl2", "hookl3", "it3_b", "it0"])
    errs += p.check(["apro", "pro2", "it3L"] + H0 + ["it3L_b", "tail", "epi", "epi1", "help", "hx", "cpro"])
    errs += p.check(["apro", "pro3"] + H0 + ["pro3_b", "it0", "it1"])
    for z in (["red", "hookl2", "jpost"], ["jpre", "hookl2", "jpost"], ["hookl2", "oph"]):
        errs += p.check(["it2", "it3", "hook", "hookld"] + z + ["hookl3", "it3_b", "it0"])
    for sb in range(2):
        errs += p.check([f"rare{sb}"])
    return p, errs


def main():
    global STAMPS
    if '--stamps' in sys.argv:
        STAMPS = True; sys.argv.remove('--stamps')
    hdr = open(f'cdna_kernels/{NAME}.s.ref').read().split("; Override launch")[0]
    p, errs = gen()
    for e in errs[:12]:
        print("HAZARD", e[-230:])
    n = "fused_kernel"
    out = [hdr, f"; @launch kernel={n} grid=(256,1,1) block=(512,1,1) lds=163840\n",
           '.amdgcn_target "amdgcn-amd-amdhsa--gfx950"\n.text\n',
           f".globl {n}\n.p2align 8\n.type {n},@function\n{n}:\n", p.text(),
           '.section .rodata,"a"\n', f""".p2align 6
.amdhsa_kernel {n}
  .amdhsa_next_free_vgpr 256
  .amdhsa_next_free_sgpr 102
  .amdhsa_accum_offset 256
  .amdhsa_group_segment_fixed_size 0
  .amdhsa_kernarg_size 104
  .amdhsa_user_sgpr_count 2
  .amdhsa_user_sgpr_kernarg_segment_ptr 1
  .amdhsa_system_sgpr_workgroup_id_x 1
.end_amdhsa_kernel
"""]
    dst = sys.argv[1] if len(sys.argv) > 1 else f'cdna_kernels/{NAME}.s'
    open(dst, 'w').write("".join(out))
    print("wrote", dst, "errs", len(errs))

if __name__ == '__main__':
    main()
```

```python
import sys, os
from asmlib import Prog

NAME = 'gated_mix__compressed_kv_cla__linear_attn_block__prompt'
KWS, VWS, AWS = 0, 16 << 20, 32 << 20
KVP, KVT, GW, FLG = 52 << 20, 56 << 20, 57 << 20, 58 << 20
DBGOFF = 60 << 20
WS_BYTES = 96 << 20
WTO, XBO = 64 << 20, 72 << 20
F_X, F_WT = 16, 0
LOG2E = 0x3fb8aa3b
MF = "v_mfma_f32_32x32x16_bf16"
M16 = "v_mfma_f32_16x16x32_bf16"
X = lambda k: bool(os.environ.get(k))
STAMPS = False

def vr(b, n=4):
    return f"v[{b}:{b+n-1}]"
def sr(b):
    return f"s[{b}:{b+3}]"

P_X, P_CKV, P_WQ, P_WUK, P_WUV, P_WO, P_BX, P_WQKV, P_BWO, P_GATE, P_OUT, P_DBG, P_WS = [64 + 2 * i for i in range(13)]
S_CKV, S_WUK, S_WUV, S_X, S_WQ, S_WQKV, S_WS, S_WO, S_BWO, S_OUT, S_GATE, S_DBG = [4 + 4 * i for i in range(12)]
WS = sr(S_WS)
sH, sI, sW, sG, sW4, sHP, sL, sN, sRB, sTO = range(90, 100)
t0, t1, t2, t3, t4, t5, t6, t7, t8, t9, t10, t11 = range(52, 64)
vSTAMP, vL, vST = 255, 254, 253
F_LO, F_HI, F_B, F_K, F_CS, F_CL, F_O = 0, 1, 4, 20, 8, 12, 16
LXS = [0, 32768]
LWS = [65536, 98304, 131072]
MISC = 65536
TIMEOUT = 1 << 18
GS = int(os.environ.get('GS', 4))
PFD = int(os.environ.get('PFD', 6))
FL2 = FLG + 32768
FL3 = FLG + 65536
UR = int(os.environ.get('UR', 2))
FLAG0 = int(os.environ.get('FLAG0', 10))
HS = int(os.environ.get('HS', 2))
TRS = int(os.environ.get('TRS', 6))
need_check_fn = [None]


class VM:
    def __init__(self, p):
        self.p, self.q = p, []
    def issue(self, tag, text, cond=False):
        self.p(text)
        if not cond:
            self.q += [tag] * len(text.strip().split("\n"))
    def count_after(self, tags):
        idx = [k for k, t in enumerate(self.q) if t in tags]
        if not idx:
            return None
        return len(self.q) - 1 - max(idx)
    def wait(self, tags, extra=""):
        n = self.count_after(tags)
        if n is None:
            if extra: self.p(f"s_waitcnt {extra}")
            return
        assert n <= 63, n
        self.p(f"s_waitcnt vmcnt({n}) {extra}".rstrip())
        self.q = self.q[len(self.q) - n:] if n else []
    def wait_all(self, extra=""):
        self.p(f"s_waitcnt vmcnt(0) {extra}".rstrip()); self.q = []


REALS = {1: 56, 9: 57, 17: 58, 23: 59, 26: 60}
def stamp(p, idx):
    if not STAMPS: return
    p("s_memtime s[100:101]")
    p("s_waitcnt lgkmcnt(0)")
    p(f"v_writelane_b32 v{vSTAMP}, s100, {idx}")
    if idx in REALS and X('CST'): stamp_real(p, REALS[idx])
def cstamp(p, idx):
    if X('CST'): stamp(p, idx)
def stamp_real(p, idx):
    if not STAMPS: return
    p("s_memrealtime s[100:101]")
    p("s_waitcnt lgkmcnt(0)")
    p(f"v_writelane_b32 v{vSTAMP}, s100, {idx}")

def srd(p, s, lo, nbytes):
    p(f"s_mov_b32 s{s}, s{lo}")
    p(f"s_and_b32 s{s+1}, s{lo+1}, 0xffff")
    p(f"s_mov_b32 s{s+2}, {nbytes}")
    p(f"s_mov_b32 s{s+3}, 0x20000")

def spread(fill, nslots):
    out = [[] for _ in range(nslots)]
    k = len(fill); fi = 0
    for i in range(nslots):
        tgt = (k * (i + 1) + nslots - 1) // nslots
        while fi < tgt:
            out[i].append(fill[fi]); fi += 1
    return out

_lab = [0]
def newlab(s):
    _lab[0] += 1
    return f"L_{s}_{_lab[0]}"

def poll_block(p, loads, tag):
    top, done = newlab("poll" + tag), newlab("pdone" + tag)
    p.label(top)
    for vd, va, s, so, e in loads:
        p(f"buffer_load_dword v{vd}, v{va}, {sr(s)}, {so} offen sc1")
    p("s_waitcnt vmcnt(0)")
    poll_check(p, loads)
    p(f"s_cbranch_vccz {done}")
    p("s_sleep 4")
    p(f"s_sub_u32 s{sTO}, s{sTO}, 1")
    p(f"s_cbranch_scc0 {top}")
    p(f"s_mov_b32 s{sTO}, 0")
    p.label(done)

def poll_check(p, loads):
    for k, (vd, va, s, so, e) in enumerate(loads):
        if k == 0:
            p(f"v_cmp_ne_u32 vcc, {e}, v{vd}")
        else:
            p(f"v_cmp_ne_u32 s[{t10}:{t11}], {e}, v{vd}")
            p("s_nop 0")
            p(f"s_or_b64 vcc, vcc, s[{t10}:{t11}]")
    p("s_nop 1")


def gen():
    p = Prog()
    vXD, vWA, vWB2 = 208, 212, 214
    vXR, vWP, vXB, vWQ = 160, 162, 164, 168
    vPA, vPB, vPD, vPE, vPK = 248, 249, 250, 251, 252
    vT = 184
    vG, GX, GW_, GT, GW8 = 168, 224, 232, 208, 236
    vG1 = 171
    F_G = 24
    (sXb, sXc, sWa, sWb, sM4, sSTl, sSTh, sTB, sCB, sKB, sVB, sKM, sVM, sR, sLAST, sQB, sQ4, sPEND, sT, sTHR,
     sHK, sALL) = range(64, 86)
    sHK2 = 3
    sBX, sOUT, sCX, sFH, sR1, sRO, sJOB = 2, 64, 65, 66, 67, 68, 85
    sWL, sWOK, sWT = 69, 0, 1
    LKA, LKB = 86, 88
    sXQ = 86
    KB = [0, 32768]
    VB_ = [LWS[1], LWS[2]]
    p.seg("pro")
    p("s_cmp_ge_u32 s2, 256")
    p("s_cbranch_scc1 L_end")
    if STAMPS: p(f"v_mov_b32 v{vSTAMP}, 0")
    stamp(p, 0); stamp_real(p, 62)
    p("s_load_dwordx16 s[64:79], s[0:1], 0")
    p("s_load_dwordx8 s[80:87], s[0:1], 64")
    p("s_load_dwordx2 s[88:89], s[0:1], 96")
    p(f"v_and_b32 v{vL}, 63, v0")
    p(f"v_lshrrev_b32 v{vT}, 6, v0")
    p(f"s_and_b32 s{t0}, s2, 7")
    p(f"s_lshr_b32 s{t1}, s2, 3")
    p(f"v_readfirstlane_b32 s{sW}, v{vT}")
    p(f"s_lshl_b32 s{sH}, s{t0}, 2")
    p(f"s_and_b32 s{t2}, s{t1}, 3")
    p(f"s_add_u32 s{sH}, s{sH}, s{t2}")
    p(f"s_lshr_b32 s{sI}, s{t1}, 2")
    p(f"s_lshr_b32 s{sG}, s{sW}, 2")
    p(f"s_and_b32 s{sW4}, s{sW}, 3")
    p(f"s_lshr_b32 s{sHP}, s{sH}, 1")
    p(f"s_lshl_b32 s{sL}, s{sH}, 3")
    p(f"s_add_u32 s{sL}, s{sL}, s{sI}")
    p(f"s_sub_u32 s{sN}, 16, s{sI}")
    p(f"s_sub_u32 s{t3}, 15, s{sI}")
    p(f"s_and_b32 s{t4}, s{sH}, 1")
    p(f"s_cmp_eq_u32 s{t4}, 0")
    p(f"s_cselect_b32 s{sRB}, s{sI}, s{t3}")
    p(f"s_mov_b32 s{sTO}, {TIMEOUT}")
    p(f"s_sub_u32 s{t10}, 3, s{sW4}")
    p(f"s_cmp_eq_u32 s{sG}, 0")
    p(f"s_cselect_b32 s{t10}, s{sW4}, s{t10}")
    p(f"v_lshlrev_b32 v{vST}, 4, v{vL}")
    l4, hi, r4 = vT + 1, vT + 2, vT + 3
    p(f"v_lshrrev_b32 v{l4}, 4, v{vL}")
    p(f"v_lshrrev_b32 v{hi}, 5, v{vL}")
    p(f"v_bfe_u32 v{r4}, v{vL}, 2, 2")
    p(f"v_lshrrev_b32 v{vT}, 3, v{vL}")
    p(f"v_lshlrev_b32 v{vT}, 10, v{vT}")
    p(f"v_and_b32 v{vT+5}, 7, v{vL}")
    p(f"v_xor_b32 v{vT+5}, v{vT+5}, v{l4}")
    p(f"v_lshlrev_b32 v{vT+5}, 4, v{vT+5}")
    p(f"v_xor_b32 v{vT+6}, 64, v{vT+5}")
    p(f"v_add_u32 v{vXD}, v{vT}, v{vT+5}")
    p(f"v_add_u32 v{vXD+1}, v{vT}, v{vT+6}")
    p(f"v_add_u32 v{vXD+1}, 7168, v{vXD+1}")
    p(f"v_add_u32 v{vXD+2}, {2*7168}, v{vXD}")
    p(f"v_add_u32 v{vXD+3}, {2*7168}, v{vXD+1}")
    p(f"s_lshl_b32 s{t5}, s{sH}, 8")
    p(f"v_lshlrev_b32 v{vT}, 13, v{l4}")
    p(f"v_add_u32 v{vT}, s{t5}, v{vT}")
    p(f"v_and_b32 v{vT+5}, 15, v{vL}")
    p(f"v_lshlrev_b32 v{vT+6}, 2, v{l4}")
    p(f"v_xor_b32 v{vT+5}, v{vT+5}, v{vT+6}")
    p(f"s_and_b32 s{t5}, s{sW4}, 1")
    p(f"s_lshl_b32 s{t5}, s{t5}, 1")
    p(f"v_xor_b32 v{vT+6}, s{t5}, v{vT+5}")
    p(f"v_lshl_add_u32 v{vWA}, v{vT+6}, 4, v{vT}")
    p(f"v_add_u32 v{vWA+1}, {4*8192 - 1024}, v{vWA}")
    p(f"v_mul_u32_u24 v{vT}, 3072, v{l4}")
    p(f"v_lshrrev_b32 v{vT+6}, 2, v{vT+5}")
    p(f"v_min_u32 v{vT+6}, 2, v{vT+6}")
    p(f"v_lshl_add_u32 v{vT}, v{vT+6}, 10, v{vT}")
    p(f"v_and_b32 v{vT+6}, 3, v{vT+5}")
    p(f"v_lshl_add_u32 v{vT}, v{vT+6}, 4, v{vT}")
    p(f"s_lshl_b32 s{t5}, s{sHP}, 6")
    p(f"v_add_u32 v{vWB2}, s{t5}, v{vT}")
    p(f"v_add_u32 v{vWB2+1}, {4*3072 - 1024}, v{vWB2}")
    p(f"v_bfe_u32 v{vT}, v{vL}, 2, 2")
    p(f"v_xor_b32 v{vT}, v{vT}, v{l4}")
    p(f"v_cmp_ne_u32 s[2:3], 3, v{vT}")
    p("s_waitcnt lgkmcnt(0)")
    stamp(p, 29)
    srd(p, S_X, P_X, 2 << 20)
    srd(p, S_WQ, P_WQ, 4 << 20)
    srd(p, S_WQKV, P_WQKV, 512 * 1536 * 2)
    srd(p, S_CKV, P_CKV, 2 << 20)
    srd(p, S_WUK, P_WUK, 4 << 20)
    srd(p, S_WUV, P_WUV, 4 << 20)
    srd(p, S_WS, P_WS, WS_BYTES)
    srd(p, S_WO, P_WO, 4 << 20)
    srd(p, S_BWO, P_BWO, 512 * 1024)
    srd(p, S_OUT, P_OUT, 2 << 20)
    srd(p, S_GATE, P_GATE, 1024)
    srd(p, S_DBG, P_DBG, 256)
    p(f"s_mov_b32 s{sQ4}, s{t10}")
    p(f"s_lshl_b32 s{t5}, s{sW4}, 15")
    p(f"s_lshl_b32 s{sXb}, s{sI}, 17")
    p(f"s_add_u32 s{sXb}, s{sXb}, s{t5}")
    p(f"s_lshl_b32 s{sXc}, s{t3}, 17")
    p(f"s_add_u32 s{sXc}, s{sXc}, s{t5}")
    p(f"s_lshl_b32 s{sWa}, s{sW4}, 16")
    p(f"s_mul_i32 s{sWb}, s{sW4}, {8*3072}")
    p(f"s_lshl_b32 s{sM4}, s{sW4}, 12")
    ROT = int(os.environ.get('ROT', 3))
    sROT = 0
    p(f"s_and_b32 s{sROT}, s{sH}, 3")
    p(f"s_lshl_b32 s{sROT}, s{sROT}, 1")
    if ROT == 0: p(f"s_mov_b32 s{sROT}, 0")
    if ROT == 1: p(f"s_mov_b32 s{sROT}, s{sI}")
    if ROT == 3: p(f"s_add_u32 s{sROT}, s{sROT}, s{sI}")
    NC = int(os.environ.get('NC', 2))
    sRO6 = 1
    p(f"s_and_b32 s{sRO6}, s{sROT}, 7")
    if NC:
        p(f"s_sub_u32 s{t0}, s{sRO6}, {8 - NC}")
        p(f"s_cmp_ge_u32 s{sRO6}, {8 - NC}")
        p(f"s_cselect_b32 s{sRO6}, s{t0}, s{sRO6}")
    def chunk(dst, s):
        if s >= 8 or NC == 0:
            p(f"s_add_u32 s{dst}, s{sROT}, {s}")
            p(f"s_and_b32 s{dst}, s{dst}, 7")
        elif s < NC:
            p(f"s_mov_b32 s{dst}, {s}")
        else:
            p(f"s_add_u32 s{dst}, s{sRO6}, {s}")
            p(f"s_sub_u32 s{t0}, s{dst}, {8 - NC}")
            p(f"s_cmp_ge_u32 s{dst}, 8")
            p(f"s_cselect_b32 s{dst}, s{t0}, s{dst}")
    if X('LB'): p("s_branch L_lb")
    p(f"s_cmp_lg_u32 s{sG}, 0")
    p("s_cbranch_scc1 L_g1")

    def setup2():
        p(f"s_sub_u32 s{t3}, 15, s{sI}")
        p(f"s_and_b32 s{t4}, s{sH}, 1")
        p(f"s_lshr_b32 s{t5}, s{sW}, 1")
        p(f"s_and_b32 s{t5}, s{t5}, 1")
        p(f"s_lshl_b32 s{t6}, s{t5}, 13")
        p(f"s_lshl_b32 s{t7}, s{sG}, 2")
        p(f"s_add_u32 s{t7}, s{t7}, s{sQ4}")
        p(f"s_lshl_b32 s{t7}, s{t7}, 12")
        p(f"s_sub_u32 s{sXQ}, s{t7}, s{t6}")
        p(f"s_lshl_b32 s{t8}, s{t4}, 2")
        p(f"s_add_u32 s{t8}, s{t8}, s{sW4}")
        p(f"s_lshl_b32 s{t8}, s{t8}, 12")
        p(f"v_bfe_u32 v{vT+4}, v{vL}, 1, 3")
        p(f"v_and_b32 v{vT}, 15, v{vL}")
        p(f"v_lshlrev_b32 v{vT}, 7, v{vT}")
        p(f"v_xor_b32 v{vT+5}, v{vT+4}, v{l4}")
        p(f"v_lshl_add_u32 v{vT}, v{vT+5}, 4, v{vT}")
        p(f"v_add_u32 v{vXR}, s{t6}, v{vT}")
        p(f"v_xor_b32 v{vXR+1}, 64, v{vXR}")
        p(f"v_and_b32 v{vT}, 31, v{vL}")
        p(f"v_lshlrev_b32 v{vT}, 7, v{vT}")
        p(f"v_xor_b32 v{vT+5}, v{vT+4}, v{hi}")
        p(f"v_lshl_add_u32 v{vT}, v{vT+5}, 4, v{vT}")
        p(f"v_add_u32 v{vXB}, s{t8}, v{vT}")
        for kk in range(1, 4):
            p(f"v_xor_b32 v{vXB+kk}, {kk*32}, v{vXB}")
        p(f"v_mul_u32_u24 v{vT}, 320, v{r4}")
        p(f"v_and_b32 v{vT+5}, 1, v{l4}")
        p(f"v_lshl_add_u32 v{vT}, v{vT+5}, 5, v{vT}")
        p(f"v_and_b32 v{vT+5}, 3, v{vL}")
        p(f"v_lshl_add_u32 v{vT}, v{vT+5}, 3, v{vT}")
        p(f"v_add_u32 v{vT}, 0x10000, v{vT}")
        p(f"v_lshl_add_u32 v{vT+5}, v{hi}, 12, v{vT}")
        p(f"s_lshl_b32 s{t7}, s{sG}, 6")
        p(f"v_xor_b32 v{vWP}, s{t7}, v{vT+5}")
        p(f"v_xor_b32 v{vWP+1}, 128, v{vT+5}")
        p(f"s_and_b32 s{t6}, s{sW}, 1")
        p(f"s_lshl_b32 s{t7}, s{t6}, 7")
        p(f"v_lshl_add_u32 v{vT+5}, v{l4}, 12, v{vT}")
        p(f"v_xor_b32 v{vWQ}, s{t7}, v{vT+5}")
        for e in range(1, 8):
            p(f"v_xor_b32 v{vWQ+e}, {e*32}, v{vWQ}")
        p(f"s_lshl_b32 s{t9}, s{sH}, 19")
        p(f"s_lshl_b32 s{t7}, s{t5}, 14")
        p(f"s_add_u32 s{t9}, s{t9}, s{t7}")
        p(f"s_lshl_b32 s{t7}, s{t6}, 12")
        p(f"s_add_u32 s{t9}, s{t9}, s{t7}")
        p(f"s_lshl_b32 s{t7}, s{sG}, 24")
        p(f"s_add_u32 s{t9}, s{t9}, s{t7}")
        p(f"s_lshl_b32 s{t7}, s{sI}, 15")
        p(f"s_add_u32 s{sSTl}, s{t9}, s{t7}")
        p(f"s_lshl_b32 s{t7}, s{t3}, 15")
        p(f"s_add_u32 s{sSTh}, s{t9}, s{t7}")
        p(f"s_lshr_b32 s{sTB}, s{sH}, 3")
        p(f"s_and_b32 s{sCB}, s{sH}, 3")
        p(f"v_and_b32 v{vT}, 7, v{vL}")
        p(f"v_lshlrev_b32 v{vPB}, 5, v{vT}")
        p(f"v_lshrrev_b32 v{vT+5}, 3, v{vL}")
        p(f"v_lshlrev_b32 v{vT+5}, 7, v{vT+5}")
        p(f"v_lshl_add_u32 v{vT+5}, v{vT}, 2, v{vT+5}")
        p(f"s_lshl_b32 s{t0}, s{sH}, 10")
        p(f"s_add_u32 s{t0}, s{t0}, {FL2}")
        p(f"v_add_u32 v{vPA}, s{t0}, v{vT+5}")
        p(f"s_lshl_b32 s{t0}, s{sW4}, 13")
        p(f"s_lshl_b32 s{t1}, s{sH}, 19")
        p(f"s_sub_u32 s{sKB}, {3 * 8192}, s{t0}")
        p(f"s_add_u32 s{sKB}, s{sKB}, s{t1}")
        p(f"s_sub_u32 s{sVB}, {4 * 8192}, s{t0}")
        p(f"s_and_b32 s{sVB}, s{sVB}, 0x7fff")
        p(f"s_add_u32 s{sVB}, s{sVB}, s{t1}")
        p(f"s_add_u32 s{sVB}, s{sVB}, {VWS}")
        p(f"s_add_u32 s{sKM}, s{t0}, {KB[0]}")
        p(f"s_add_u32 s{sVM}, s{t0}, {VB_[0]}")
        p(f"s_cmp_eq_u32 s{sG}, 0")
        p(f"s_cselect_b32 s{sQB}, s{sI}, s{t3}")
        p(f"s_add_u32 s{t1}, s{sI}, 1")
        p(f"s_cselect_b32 s{sLAST}, s{t1}, s{t3}")
        p(f"s_cmp_eq_u32 s{sG}, 0")
        p(f"s_cselect_b32 s{sLAST}, s{t1}, s{t3}")
        p(f"s_cmp_eq_u32 s{sLAST}, 1")
        p(f"s_cselect_b32 s{sLAST}, 0, s{sLAST}")
        p(f"s_mov_b32 s{sR}, 0")
        p(f"s_mov_b32 s{sPEND}, 1")
        p(f"s_mov_b32 s{sALL}, 0")
        p(f"s_mov_b32 s{sHK}, 1")
        p(f"s_mov_b32 s{sT}, 0")
        p(f"s_mov_b32 s{sTHR}, {'0x7f800000' if X('NORARE') else ('0x00000000' if X('ALLRARE') else '0x47800000')}")

    def dma_x_pieces(vm, s):
        slot = LXS[s & 1]
        def piece(g2, hf):
            def f():
                if g2 == 0 and hf == 0:
                    chunk(t1, s)
                    p(f"s_lshl_b32 s{t1}, s{t1}, 7")
                if hf == 0:
                    p(f"s_add_u32 m0, s{sM4}, {slot + g2 * 16384}")
                    p(f"s_add_u32 s{t0}, s{sXc if g2 else sXb}, s{t1}")
                S = S_X if s >= 8 else S_CKV
                for i4 in (2 * hf, 2 * hf + 1):
                    vm.issue(("X", s), f"buffer_load_dwordx4 v{vXD+i4}, {sr(S)}, s{t0} offen offset:{1024*i4} lds")
            return f
        return [piece(g2, hf) for g2 in range(2) for hf in range(2)]
    def dma_w_pieces(vm, s):
        slot = LWS[s % 3]
        def piece(g2, m):
            def f():
                if g2 == 0 and m == 0:
                    chunk(t1, s)
                    if s >= 8:
                        p(f"s_mul_i32 s{t2}, s{t1}, 196608")
                        p(f"s_add_u32 s{t2}, s{t2}, s{sWb}")
                    p(f"s_lshl_b32 s{t1}, s{t1}, 19")
                    p(f"s_add_u32 s{t1}, s{t1}, s{sWa}")
                if m == 0:
                    p(f"s_add_u32 m0, s{sM4}, {slot + g2 * 16384}")
                    p(f"s_add_u32 s{t0}, s{t1}, {g2 * 262144}")
                    for i2 in range(2):
                        vm.issue(("W", s), f"buffer_load_dwordx4 v{vWA+i2}, {sr(S_WQ if s >= 8 else S_WUK)}, s{t0} offen offset:{1024*i2} lds")
                    return
                p("s_add_u32 m0, m0, 2048")
                if s >= 8:
                    p(f"s_add_u32 s{t0}, s{t2}, {g2 * 98304}")
                    p("s_mov_b64 exec, s[2:3]")
                else:
                    p("s_nop 0")
                for i2 in range(2):
                    if s < 8:
                        vm.issue(("W", s), f"buffer_load_dwordx4 v{vWA+i2}, {sr(S_WUV)}, s{t0} offen offset:{1024*i2} lds")
                    else:
                        vm.issue(("W", s), f"buffer_load_dwordx4 v{vWB2+i2}, {sr(S_WQKV)}, s{t0} offen offset:{1024*i2} lds")
                if s >= 8: p("s_mov_b64 exec, -1")
            return f
        return [piece(g2, m) for g2 in range(2) for m in range(2)]
    def dma_x(vm, s):
        for f in dma_x_pieces(vm, s): f()
    def dma_w(vm, s):
        for f in dma_w_pieces(vm, s): f()
    def flag_store(va, vb, dword, per_wave=None, vm=None, base=FLG, lanes=1):
        p(f"v_mov_b32 v{va}, 1")
        p(f"v_mov_b32 v{vb}, 0" if lanes == 1 else f"v_lshlrev_b32 v{vb}, 2, v{vL}")
        p(f"s_lshl_b32 s{t0}, s{sL}, 7")
        if per_wave is not None:
            p(f"s_lshl_b32 s{t1}, s{per_wave}, 2")
            p(f"s_add_u32 s{t0}, s{t0}, s{t1}")
        p(f"s_add_u32 s{t0}, s{t0}, {base}")
        p(f"s_mov_b64 exec, {(1 << lanes) - 1}")
        t = f"buffer_store_dword v{va}, v{vb}, {WS}, s{t0} offen offset:{4*dword} sc1"
        vm.issue("FL", t) if vm else p(t)
        p("s_mov_b64 exec, -1")

    def gate_addr(va, vb, orow):
        p(f"v_bfe_u32 v{va}, v{vL}, 3, {2 if orow else 1}")
        p(f"v_lshlrev_b32 v{va}, 10, v{va}")
        p(f"v_and_b32 v{vb}, 7, v{vL}")
        p(f"v_lshl_add_u32 v{va}, v{vb}, 2, v{va}")
        if orow:
            p(f"s_and_b32 s{t0}, s{sH}, 1")
            p(f"s_lshl_b32 s{t0}, s{t0}, 2")
            p(f"s_add_u32 s{t0}, s{t0}, s{sW4}")
        else:
            p(f"s_lshl_b32 s{t0}, s{sG}, 2")
            p(f"s_add_u32 s{t0}, s{t0}, s{sQ4}")
        p(f"s_lshl_b32 s{t0}, s{t0}, 12")
        p(f"s_lshl_b32 s{t1}, s{sI}, 7")
        p(f"s_add_u32 s{t0}, s{t0}, s{t1}")
        p(f"s_add_u32 s{t0}, s{t0}, {FLG + 4*F_G}")
    def gate_check(vd, va, vb, orow, tag, off=0):
        ok, top = newlab("gok" + tag), newlab("gtop" + tag)
        p(f"v_cmp_eq_u32 vcc, 0, v{vd}")
        p("s_nop 1")
        p(f"s_cbranch_vccz {ok}")
        gate_addr(va, vb, orow)
        p.label(top)
        p(f"buffer_load_dword v{vd}, v{va}, {WS}, s{t0} offen offset:{off} sc1")
        p("s_waitcnt vmcnt(0)")
        p(f"v_cmp_eq_u32 vcc, 0, v{vd}")
        p("s_nop 1")
        p(f"s_cbranch_vccz {ok}")
        p("s_sleep 4")
        p(f"s_sub_u32 s{sTO}, s{sTO}, 1")
        p(f"s_cbranch_scc0 {top}")
        p(f"s_mov_b32 s{sTO}, 0")
        p.label(ok)

    BQ, BK, BV = 64, 64, 80
    QR = 176
    PQ = 208
    STASH = 216
    HELD = lambda tbi, cbi: (QR if tbi < 2 else STASH) + ((tbi & 1) * 2 + cbi) * 8
    CH1 = int(os.environ.get('CH1', 1))
    CH2 = int(os.environ.get('CH2', 1))
    O7 = eval(os.environ.get('O7', '[6,7,4,5,0,1,2,3]'))
    def stream(g):
        M, FR = [], {}
        def woff(s): return (s % 3 & 1) * 32768
        def xf(s, tt, k2):
            f = ('x', s, tt, k2)
            o = LXS[s & 1] + ((tt >> 2) * 16384 + (tt & 3) * 2048 if s < 8 else tt * 2048)
            FR[f] = [f"ds_read_b128 v[{{0}}:{{3}}], v{vXR+k2} offset:{o}"]
            return f
        def wf(s, e, k2):
            f = ('w', s, e, k2)
            o = woff(s) + k2 * 16384 + (g * 2048 if s < 8 else 0)
            FR[f] = [f"ds_read_b64_tr_b16 v[{{0}}:{{1}}], v{vWQ+e} offset:{o}", f"ds_read_b64_tr_b16 v[{{2}}:{{3}}], v{vWQ+e} offset:{o + 1024}"]
            return f
        def xb(s, kk):
            f = ('xb', s, kk)
            FR[f] = [f"ds_read_b128 v[{{0}}:{{3}}], v{vXB+kk} offset:{LXS[s & 1]}"]
            return f
        def wb(s, kk, k):
            f = ('wb', s, kk, k)
            o = woff(s) + kk * 8192 + 2048
            FR[f] = [f"ds_read_b64_tr_b16 v[{{0}}:{{1}}], v{vWP+k} offset:{o}", f"ds_read_b64_tr_b16 v[{{2}}:{{3}}], v{vWP+k} offset:{o + 1024}"]
            return f
        def mm(op, n, acc, fa, fb, first):
            return lambda R: f"{op} {vr(acc, n)}, {vr(R[fa])}, {vr(R[fb])}, {'0' if first else vr(acc, n)}"
        for s in range(8):
            order = O7 if s == 7 else list(range(8))
            if CH1: seq = [(tt, e, k2) for tt in order for e in range(4) for k2 in range(2)]
            else: seq = [(tt, e, k2) for k2 in range(2) for tt in order for e in range(4)]
            for n, (tt, e, k2) in enumerate(seq):
                x, w = xf(s, tt, k2), wf(s, e, k2)
                first = s == 0 and k2 == 0
                if g == 0:
                    acc = (tt * 4 + e) * 4
                    M.append((s, n >> 4, mm(M16, 4, acc, w, x, first), [w, x], acc))
                else:
                    acc = (((tt >> 1) * 4 + e) * 2 + (tt & 1)) * 4
                    M.append((s, n >> 4, mm(M16, 4, acc, x, w, first), [w, x], acc))
        for s in range(8, 16):
            for kk in range(4):
                if CH2: seq = [(e, qg, k2) for e in (2 * kk, 2 * kk + 1) for qg in range(2) for k2 in range(2)]
                else: seq = [((kk & 1) * 4 + e, qg, kk >> 1) for e in range(4) for qg in range(2)]
                for e, qg, k2 in seq:
                    x, w = xf(s, qg, k2), wf(s, e, k2)
                    acc = (qg * 8 + e) * 4
                    M.append((s, kk, mm(M16, 4, acc, w, x, s == 8 and k2 == 0), [x, w], acc))
                x = xb(s, kk)
                first = s == 8 and kk == 0
                if g == 0:
                    w = wb(s, kk, 0)
                    M.append((s, kk, mm(MF, 16, BQ, w, x, first), [x, w], BQ))
                else:
                    for k, acc in ((0, BK), (1, BV)):
                        w = wb(s, kk, k)
                        M.append((s, kk, mm(MF, 16, acc, x, w, first), [x, w], acc))
        return M, FR
    def pack(t):
        a, d = t * 16, HELD(t >> 1, t & 1)
        return [f"v_cvt_pk_bf16_f32 v{d+i}, v{a+2*i}, v{a+2*i+1}" for i in range(8)]
    def qcvt():
        p("s_mov_b32 s52, 0x3e0293ee")
        p("s_mov_b32 s53, 0x3e0293ee")
        for i in range(32):
            p(f"v_pk_mul_f32 v[{2*i}:{2*i+1}], v[{2*i}:{2*i+1}], s[52:53]")
        for i in range(32):
            p(f"v_cvt_pk_bf16_f32 v{QR+i}, v{2*i}, v{2*i+1}")
    def phi_inplace(r, n, TB):
        b, c = TB, TB + 2 * n
        for i in range(n):
            p(f"v_lshlrev_b32 v{b+2*i}, 16, v{r+i}")
            p(f"v_and_b32 v{b+1+2*i}, 0xffff0000, v{r+i}")
        for i in range(2 * n):
            p(f"v_min_f32 v{c+i}, 0, v{b+i}")
        for i in range(2 * n):
            p(f"v_mul_f32 v{c+i}, {LOG2E:#x}, v{c+i}")
        for i in range(2 * n):
            p(f"v_exp_f32 v{c+i}, v{c+i}")
        for i in range(2 * n):
            p(f"v_max_f32 v{b+i}, 0, v{b+i}")
        for i in range(2 * n):
            p(f"v_add_f32 v{b+i}, 0x358637bd, v{b+i}")
        for i in range(2 * n):
            p(f"v_add_f32 v{b+i}, v{b+i}, v{c+i}")
        for i in range(n):
            p(f"v_cvt_pk_bf16_f32 v{r+i}, v{b+2*i}, v{b+1+2*i}")
    def red_slice_base(dst, base):
        p(f"s_and_b32 s{dst}, s{sL}, 15")
        p(f"s_lshl_b32 s{dst}, s{dst}, 2")
        p(f"s_add_u32 s{dst}, s{dst}, s{sW4}")
        p(f"s_lshl_b32 s{dst}, s{dst}, 6")
        p(f"s_add_u32 s{dst}, s{dst}, {base}")
    LOWAT = [(8, 0)] * 8
    if X('LOWAT'): LOWAT = eval(os.environ['LOWAT'])
    LOWG = [eval(os.environ.get('LOW0', repr(LOWAT))), eval(os.environ.get('LOW1', '[(10,0)]*8'))]
    def low_slot(vm, s, kk, g):
        for k in range(len(LOWAT)):
            if LOWG[g][k] != (s, kk): continue
            tbi, cbi, half = k >> 2, (k >> 1) & 1, k & 1
            if tbi: p(f"s_add_u32 s{t9}, s{sSTl}, 8192")
            vm.issue("ST", f"buffer_store_dwordx4 {vr(HELD(tbi, cbi) + half*4)}, v{vST}, {WS}, s{t9 if tbi else sSTl} offen offset:{cbi*2048 + half*1024} sc1")
    vTA, vTD = 244, vPK
    def touch_job(job):
        if job[0] == 'x':
            p(f"v_lshlrev_b32 v{vTA}, 7, v{vL}")
            p(f"s_bitcmp1_b32 s{sH}, 1")
            p(f"s_cselect_b32 s{t0}, s{sXc}, s{sXb}")
            p(f"s_lshl_b32 s{t1}, s{sW4}, 15")
            p(f"s_sub_u32 s{t0}, s{t0}, s{t1}")
            p(f"s_and_b32 s{t1}, s{sH}, 1")
            p(f"s_lshl_b32 s{t1}, s{t1}, 16")
            p(f"s_add_u32 s{t0}, s{t0}, s{t1}")
            p(f"s_add_u32 s{t0}, s{t0}, {job[1] * 8192}")
            p(f"buffer_load_dword v{vTD}, v{vTA}, {sr(S_X)}, s{t0} offen")
        elif job[0] == 'wq':
            p(f"v_lshrrev_b32 v{vTA}, 3, v{vL}")
            p(f"v_lshlrev_b32 v{vTA}, 13, v{vTA}")
            p(f"v_and_b32 v{vTA+2}, 7, v{vL}")
            p(f"v_lshl_add_u32 v{vTA}, v{vTA+2}, 7, v{vTA}")
            p(f"s_and_b32 s{t0}, s{sL}, 31")
            p(f"s_lshl_b32 s{t0}, s{t0}, 17")
            p(f"s_lshr_b32 s{t1}, s{sH}, 2")
            p(f"s_lshl_b32 s{t1}, s{t1}, 10")
            p(f"s_add_u32 s{t0}, s{t0}, s{t1}")
            p(f"s_add_u32 s{t0}, s{t0}, {job[1] * 65536}")
            p(f"buffer_load_dword v{vTD}, v{vTA}, {sr(S_WQ)}, s{t0} offen")
        else:
            p(f"v_and_b32 v{vTA}, 15, v{vL}")
            p(f"v_mul_u32_u24 v{vTA}, 3072, v{vTA}")
            p(f"v_lshrrev_b32 v{vTA+2}, 4, v{vL}")
            p(f"v_min_u32 v{vTA+2}, 2, v{vTA+2}")
            p(f"v_lshl_add_u32 v{vTA}, v{vTA+2}, 10, v{vTA}")
            p(f"s_and_b32 s{t0}, s{sL}, 31")
            p(f"s_mul_i32 s{t0}, s{t0}, {16 * 3072}")
            p(f"s_lshr_b32 s{t1}, s{sH}, 2")
            p(f"s_lshl_b32 s{t1}, s{t1}, 7")
            p(f"s_add_u32 s{t0}, s{t0}, s{t1}")
            p(f"buffer_load_dword v{vTD}, v{vTA}, {sr(S_WQKV)}, s{t0} offen")
        p.cur[-1].nodst = True
    TJ = [('wq', 0), ('wq', 1), ('wb',)] + [('x', c) for c in range(8)]
    TS = eval(os.environ.get('TS', '[3,3,3,4,4,4,5,5,5,6,6]'))
    def touch_slot(s, kk):
        for j, job in enumerate(TJ):
            if j < len(TS) and TS[j] == s and kk == 1 + (j & 1):
                sk = newlab("notch")
                p(f"s_cmp_lg_u32 s{sW4}, {j % 3}")
                p(f"s_cbranch_scc1 {sk}")
                touch_job(job)
                p.label(sk)
    def g1_slot(vm, s, kk):
        extra = []
        touch_slot(s, kk)
        if (s, kk) == (HS, 2):
            skip = newlab("nofl")
            p(f"s_cmp_lg_u32 s{sW}, 7")
            p(f"s_cbranch_scc1 {skip}")
            p("s_waitcnt vmcnt(0)")
            p(f"v_mov_b32 v{vPD}, 1")
            p(f"s_lshl_b32 s{t0}, s{sI}, 5")
            p(f"v_mov_b32 v{vPE}, s{t0}")
            p("s_mov_b64 exec, 1")
            p(f"buffer_atomic_add v{vPD}, v{vPE}, {sr(S_DBG)}, 0 offen sc1")
            p("s_mov_b64 exec, -1")
            p.label(skip)
        if (s, kk) == (GS, 1):
            p(f"s_lshl_b32 s{t0}, s{sH}, 3")
            p(f"s_lshl_b32 s{t1}, s{sW4}, 1")
            p(f"s_add_u32 s{t0}, s{t0}, s{t1}")
            p(f"s_and_b32 s{t1}, s{t0}, 127")
            p(f"s_lshl_b32 s{t1}, s{t1}, 10")
            p(f"s_lshl_b32 s{t2}, s{sW4}, 15")
            p(f"s_cmp_lt_u32 s{t0}, 128")
            p(f"s_cselect_b32 s{t0}, s{sXb}, s{sXc}")
            p(f"s_sub_u32 s{t0}, s{t0}, s{t2}")
            p(f"s_add_u32 s{t0}, s{t0}, s{t1}")
            vm.issue("G", f"buffer_load_dwordx4 {vr(GW_)}, v{vST}, {sr(S_GATE)}, 0 offen")
            for r in range(2):
                vm.issue("G", f"buffer_load_dwordx4 {vr(GX + 4*r)}, v{vST}, {sr(S_X)}, s{t0} offen offset:{r*1024}")
        if (s, kk) == (GS + 1, 0):
            vm.wait_all()
            W8, T2, R2 = GW8, GT, GT + 4
            for i in range(4):
                extra.append(f"v_lshlrev_b32 v{W8+2*i}, 16, v{GW_+i}")
                extra.append(f"v_and_b32 v{W8+1+2*i}, 0xffff0000, v{GW_+i}")
            for i in range(4):
                for r in range(2):
                    extra.append(f"v_lshlrev_b32 v{T2+2*r}, 16, v{GX+4*r+i}")
                    extra.append(f"v_and_b32 v{T2+2*r+1}, 0xffff0000, v{GX+4*r+i}")
                for r in range(2):
                    if i == 0:
                        extra.append(f"v_mul_f32 v{R2+r}, v{T2+2*r}, v{W8}")
                    else:
                        extra.append(f"v_fmac_f32 v{R2+r}, v{T2+2*r}, v{W8+2*i}")
                for r in range(2):
                    extra.append(f"v_fmac_f32 v{R2+r}, v{T2+2*r+1}, v{W8+2*i+1}")
        if (s, kk) == (GS + 1, 1):
            R2 = GT + 4
            for sh in ("row_shr:1 row_mask:0xf bank_mask:0xf bound_ctrl:0", "row_shr:2 row_mask:0xf bank_mask:0xf bound_ctrl:0",
                       "row_shr:4 row_mask:0xf bank_mask:0xf bound_ctrl:0", "row_shr:8 row_mask:0xf bank_mask:0xf bound_ctrl:0",
                       "row_bcast:15 row_mask:0xa bank_mask:0xf", "row_bcast:31 row_mask:0xc bank_mask:0xf"):
                for r in range(2):
                    extra.append(f"v_add_f32_dpp v{R2+r}, v{R2+r}, v{R2+r} {sh}")
                extra.append("s_nop 0")
            for op in ("v_mul_f32 v{0}, 0xbfb8aa3b, v{0}", "v_exp_f32 v{0}, v{0}", "v_add_f32 v{0}, 1.0, v{0}", "v_rcp_f32 v{0}, v{0}", "v_add_f32 v{0}, 1.0, v{0}"):
                for r in range(2):
                    extra.append(op.format(R2 + r))
        if (s, kk) == (GS + 1, 2):
            R2 = GT + 4
            p(f"v_mov_b32 v{GT}, 0")
            p(f"s_lshl_b32 s{t0}, s{sL}, 7")
            p(f"s_lshl_b32 s{t1}, s{sW4}, 3")
            p(f"s_add_u32 s{t0}, s{t0}, s{t1}")
            p(f"s_add_u32 s{t0}, s{t0}, {FLG + 4*F_G}")
            p("s_mov_b32 exec_lo, 0")
            p("s_mov_b32 exec_hi, 0x80000000")
            vm.issue("G", f"buffer_store_dwordx2 v[{R2}:{R2+1}], v{GT}, {WS}, s{t0} offen sc1")
            p("s_mov_b64 exec, -1")
        return extra
    PRI = eval(os.environ.get('PRI', '{}'))
    LAT2 = int(os.environ.get('LAT2', 4))
    ML1 = int(os.environ.get('ML1', 16))
    ML2 = int(os.environ.get('ML2', 99))
    LAT = int(os.environ.get('LAT', 7))
    OLD = int(os.environ.get('OLD', 10))
    DSP = int(os.environ.get('DSP', 0))
    def gemm_phases(g, vm):
        A4 = 160
        M, FR = stream(g)
        NM = len(M)
        first, last = {}, {}
        for i, m in enumerate(M):
            for f in m[3]:
                first.setdefault(f, i); last[f] = i
        start = {s: min(i for i, m in enumerate(M) if m[0] == s) for s in range(16)}
        start[16] = NM
        fill = [[] for _ in range(NM + 1)]
        done = {t: max(i for i, m in enumerate(M) if m[0] == 7 and m[4] >> 4 == t) for t in range(8)}
        packat = {}
        cur = 0
        for t in sorted(done, key=lambda t: done[t]):
            cur = max(cur, done[t] + 4)
            packat[t] = cur
            ops = pack(t)
            rate = 2 if cur < start[8] - 4 else 4
            for k in range(0, 8, rate):
                fill[cur] += ops[k:k + rate]; cur += 1
            wr = min([i for i, m in enumerate(M) if m[0] == 8 and m[4] >> 4 == t] + [NM])
            assert cur <= wr, (t, cur, wr)
            done[t] = cur
        BIG = 1 << 20
        pool = {q: [-9, BIG] for q in range(128, 160, 4)}
        for t in range(4):
            for q in (0, 4): pool[HELD(t >> 1, t & 1) + q] = [-9, packat[t]]
        for q in (0, 4): pool[STASH + q] = [-9, packat[4]]
        for t in (6, 7) + ((5,) if g == 0 else ()):
            for q in range(4): pool[t * 16 + q * 4] = [done[t] + 1, BIG]
        if g == 1:
            for q in (208, 212): pool[q] = [start[GS + 2], BIG]
        busy = {}
        LQ = []
        hi_ = False
        for f in sorted(first, key=lambda f: (first[f], M[first[f]][3].index(f))):
            s = f[1]
            if (s % 3 == 2) != hi_:
                regs = [vWQ + e for e in range(8)] + [vWP + k for k in range(g + 1)]
                if s == 8:
                    LQ += [(s, None, f"v_add_u32 v{vXR+k}, s{sXQ}, v{vXR+k}") for k in range(2)]
                    LQ += [(s, None, f"s_and_b32 s{t3}, s{sW}, 1"), (s, None, f"s_lshl_b32 s{t3}, s{t3}, 7")]
                    LQ += [(s, None, f"v_xor_b32 v{vWQ+e}, s{t3}, v{vWQ+e}") for e in range(8)]
                elif s < 8: regs = regs[:4]
                if (s % 3 == 2) != hi_:
                    hi_ = not hi_
                    LQ += [(s, None, f"v_add_u32 v{r}, {0x10000 if hi_ else -0x10000}, v{r}") for r in regs]
            LQ += [(s, f, k) for k in range(len(FR[f]))]
        R, seq, issued_at = {}, {}, []
        st = {'q': 0, 'known': 0, 'open': 0, 'sync': None, 'minlead': {}}
        def can_issue(i):
            if st['q'] >= len(LQ): return False
            s, f, k = LQ[st['q']]
            if f is None: return True
            if s > st['open'] or len(issued_at) - st['known'] >= 15: return False
            if first[f] - i > (ML1 if s < 8 else ML2) and first[f] - start[s] >= 16: return False
            if k == 0:
                c = [q for q, (a_, b_) in pool.items() if q not in busy and a_ <= i and b_ > last[f]]
                if not c: return False
                q = min(c, key=lambda q: (pool[q][1], q))
                busy[q] = f; R[f] = q
            return True
        def issue(i, budget):
            while budget > 0 and can_issue(i):
                s, f, k = LQ[st['q']]
                st['q'] += 1
                budget -= 1
                if f is None:
                    p(k)
                    continue
                q = R[f]
                p(FR[f][k].format(q, q + 1, q + 2, q + 3))
                issued_at.append(i); seq[f] = len(issued_at)
                st['minlead'][s] = min(st['minlead'].get(s, 99), first[f] - i)
                if st['q'] == len(LQ) or all(x[1] is None or x[0] > s for x in LQ[st['q']:st['q'] + 24]):
                    st['sync'] = (s, i + (LAT if s < 8 else LAT2))
        def wait_for(i, fs):
            need = 0
            for f in fs:
                while f not in seq or seq[f] < 0 or sum(1 for x in LQ[:st['q']] if x[1] == f) < len(FR[f]):
                    if st['sync'] is not None and f[1] > st['open']:
                        sync(i)
                    assert can_issue(i - 1) or stuck(i, f), (i, f, LQ[st['q']], busy, st, pool)
                    busy_fix()
                    issue(i - 1, 1)
                need = max(need, seq[f])
            if need <= st['known']: return
            while need < len(issued_at) and issued_at[need] <= i - OLD: need += 1
            p(f"s_waitcnt lgkmcnt({len(issued_at) - need})")
            st['known'] = need
        def stuck(i, f):
            p("s_waitcnt lgkmcnt(0)"); st['known'] = len(issued_at)
            return can_issue(i - 1)
        def busy_fix():
            s, f, k = LQ[st['q']]
            if f is not None and k == 0 and f in R:
                del busy[R[f]]; del R[f]
        pend = []
        def sync(i):
            s = st['sync'][0]
            st['sync'] = None
            for f_ in pend: f_()
            pend.clear()
            if not (X('ATTST') or X('CST')): stamp(p, 34 + s)
            if s == 14:
                vm.wait_all()
                if g == 0:
                    loads = [(vPE, vPB, S_DBG, 0, 32)]
                    ok = newlab("cntok")
                    poll_check(p, loads)
                    p(f"s_cbranch_vccz {ok}")
                    poll_block(p, loads, "c0")
                    p.label(ok)
                p("s_waitcnt lgkmcnt(0)")
            elif s == 15 or (g == 1 and s >= 2):
                p("s_waitcnt lgkmcnt(0)")
            else:
                vm.wait([("X", s + 1), ("W", s + 1)], "lgkmcnt(0)")
            st['known'] = len(issued_at)
            p("s_barrier")
            stamp(p, 2 + s)
            st['open'] = s + 1
            info.append((s, i - start[s], start[s + 1] - start[s]))
            issue(i - 1, int(os.environ.get('PB', 6)))
            if g == 0:
                if s + 2 < 16: pend.extend(dma_x_pieces(vm, s + 2))
                if s + 3 < 16: pend.extend(dma_w_pieces(vm, s + 3))
                if not DSP:
                    for f_ in pend: f_()
                    pend.clear()
                if s == 13:
                    pend.append(lambda: vm.issue("P", f"buffer_load_dword v{vPE}, v{vPB}, {sr(S_DBG)}, 0 offen sc1"))
                if s == 14:
                    p(f"s_cmp_lg_u32 s{sW}, 0")
                    p("s_cbranch_scc1 L_nolo")
                    flag_store(vPD, vPK, 0, base=FL2, lanes=8)
                    p.label("L_nolo")
            if s == 15:
                p(f"s_bfe_u32 s{t5}, s{sW}, 0x10001")
                p(f"s_and_b32 s{t6}, s{sW}, 1")
                p(f"s_lshl_b32 s{t6}, s{t6}, 12")
                p(f"s_lshl_b32 s{t5}, s{t5}, 14")
                p(f"s_sub_u32 s{t4}, s{t6}, s{t5}")
                if g == 0:
                    p(f"s_add_u32 s{t0}, s{t4}, {KB[1] + 3 * 8192}")
                    p(f"s_add_u32 s{t1}, s{t4}, {KB[1] + 2 * 8192}")
                    p(f"s_add_u32 s{t2}, s{t4}, {KB[0] + 3 * 8192}")
                    p(f"s_add_u32 s{t3}, s{t4}, {KB[0] + 2 * 8192}")
                else:
                    p(f"s_add_u32 s{t0}, s{t4}, {VB_[1] + 4 * 8192}")
                    p(f"s_add_u32 s{t1}, s{t4}, {VB_[1] + 3 * 8192}")
                    p(f"s_add_u32 s{t2}, s{t4}, {VB_[0] + 4 * 8192}")
                    p(f"s_add_u32 s{t3}, s{t4}, {VB_[0] + 3 * 8192}")
                    p(f"s_add_u32 s{t7}, s{t6}, {VB_[0]}")
                    p(f"s_add_u32 s{t8}, s{t6}, {VB_[1]}")
                    p(f"s_cmp_eq_u32 s{t5}, 0")
                    p(f"s_cselect_b32 s{t0}, s{t7}, s{t0}")
                    p(f"s_cselect_b32 s{t2}, s{t8}, s{t2}")
                p(f"s_lshl_b32 s{t4}, s{sW4}, {12 if g else 11}")
                p(f"s_add_u32 s{t4}, s{t4}, {MISC + (8192 if g else 0)}")
                for k in range(5):
                    p(f"v_add_u32 v{A4+k}, s{t0+k}, v{vST}")
                wr = [f"ds_write_b128 v{A4+tbi}, {vr(HELD(tbi, cbi) + half*4)} offset:{cbi*2048 + half*1024}"
                      for tbi in range(4) for cbi in range(2) for half in range(2)]
                for k, x in enumerate(spread(wr, NM - i)):
                    fill[i + k] += x
        info = []
        p.seg(f"g{g}_s0")
        issue(-1, 8)
        for i, (s, kk, txt, fs, acc) in enumerate(M):
            if i and i == start[s]: p.seg(f"g{g}_s{s}")
            if i == start[s] and (g, s) in PRI: p(f"s_setprio {PRI[(g, s)]}")
            if st['sync'] is not None and st['sync'][1] <= i: sync(i)
            wait_for(i, fs)
            p(txt(R))
            for f in fs:
                if last[f] == i: del busy[R[f]]
            big = MF in p.cur[-1].text
            issue(i, 3 if big else 2)
            for x in fill[i]: p(x)
            if pend and (not DSP or i % DSP == 0): pend.pop(0)()
            if i + 1 == NM or M[i + 1][:2] != (s, kk):
                if kk < 3:
                    extra = g1_slot(vm, s, kk) if g == 1 else []
                    n = sum(1 for m in M if m[:2] == (s, kk + 1))
                    if extra:
                        for k, x in enumerate(spread(extra, n)): fill[i + 1 + k] += x
                low_slot(vm, s, kk, g)
                if (s, kk) == (7, 3): stamp(p, 20); st['known'] = len(issued_at) if STAMPS else st['known']
        for x in fill[NM]: p(x)
        assert st['q'] == len(LQ) and st['open'] == 16
        if X('VERB'): print('group', g, 'sync at', info, 'min lead', st['minlead'], 'packs', packat)
        p.seg(f"g{g}_tr")
        gate_addr(A4 + 5, A4 + 6, False)
        p(f"buffer_load_dword v{vG}, v{A4+5}, {WS}, s{t0} offen sc1")
        p(f"buffer_load_dword v{vG1}, v{A4+5}, {WS}, s{t0} offen offset:2048 sc1")
        if g == 0:
            gate_addr(A4 + 5, A4 + 6, True)
            p(f"buffer_load_dword v{vPB}, v{A4+5}, {WS}, s{t0} offen sc1")
            p(f"buffer_load_dword v{vPD}, v{vPA}, {WS}, 0 offen sc1")
        qcvt()
        for k in range(2 if g else 1):
            for i in range(8):
                p(f"v_cvt_pk_bf16_f32 v{136+8*k+i}, v{64+16*k+2*i}, v{64+16*k+2*i+1}")
            for s in range(2):
                p(f"ds_write_b128 v{A4+4}, {vr(136 + 8*k + 4*s)} offset:{k*2048 + s*1024}")
        p(f"s_branch L_apro")

    def stash_stores(which=range(4)):
        p(f"s_add_u32 s{t9}, s{sSTh}, 8192")
        for tb in range(2):
            for cbi in range(2):
                if tb * 2 + cbi not in which: continue
                d = STASH + (tb * 2 + cbi) * 8
                for half in range(2):
                    if not X('NOST'):
                        p(f"buffer_store_dwordx4 {vr(d + half*4)}, v{vST}, {WS}, s{sSTh if tb == 0 else t9} offen offset:{cbi*2048 + half*1024} sc1")

    p.seg("g0_pro")
    vm0 = VM(p)
    dma_x(vm0, 0); dma_w(vm0, 0)
    setup2()
    stamp(p, 30)
    vm0.wait([("X", 0), ("W", 0)])
    stamp(p, 31)
    p("s_barrier")
    stamp(p, 1)
    gemm_phases(0, vm0)

    p.seg("g1_pro")
    p.label("L_g1")
    vm1 = VM(p)
    dma_x(vm1, 1); dma_w(vm1, 1); dma_w(vm1, 2)
    p(f"v_and_b32 v{vT}, 31, v{vL}")
    p(f"v_lshlrev_b32 v{vT}, 2, v{vT}")
    p(f"v_lshl_add_u32 v{vT}, v{hi}, 15, v{vT}")
    p(f"v_mov_b32 v{vT+5}, 0")
    p(f"s_lshl_b32 s{t0}, s{sL}, 7")
    p(f"s_add_u32 s{t0}, s{t0}, {FLG}")
    p(f"s_cmp_lg_u32 s{sW}, 7")
    p("s_cbranch_scc1 L_noclr")
    p(f"buffer_store_dword v{vT+5}, v{vT}, {WS}, s{t0} offen sc1")
    p(f"s_add_u32 s{t0}, s{t0}, 65536")
    p(f"buffer_store_dword v{vT+5}, v{vT}, {WS}, s{t0} offen sc1")
    p.label("L_noclr")
    setup2()
    stamp(p, 19)
    p("s_barrier")
    stamp(p, 1)
    gemm_phases(1, vm1)

    if X('LB'):
        p.seg("lb")
        p.label("L_lb")
        setup2()
        p(f"s_mul_i32 s{t0}, s{sW}, {20 * 1024}")
        for k in range(20):
            p(f"s_add_u32 m0, s{t0}, {k * 1024}")
            p(f"s_add_u32 s{t1}, s{t0}, {k * 1024}")
            p(f"buffer_load_dwordx4 v{vST}, {sr(S_CKV)}, s{t1} offen lds")
        for k in range(8):
            p(f"buffer_load_dwordx4 {vr(QR + 4 * k)}, v{vST}, {sr(S_X)}, s{t0} offen offset:{(k & 3) * 1024}")
        p(f"s_mov_b32 s{sHK}, 0")
        p(f"s_mov_b32 s{sLAST}, 14")
        p(f"s_mov_b32 s{sN}, 0")
        p(f"s_mov_b32 s{sQ4}, 3")
        p("s_waitcnt vmcnt(0)")
        p("s_barrier")
        if os.environ['LB'] == 'solo':
            p(f"s_cmp_eq_u32 s{sG}, 0")
            p("s_cbranch_scc1 L_end")
        stamp_real(p, 30)
    O = lambda qg, dt: (qg * 8 + dt) * 4
    S = lambda b: 64 + b * 16
    NEGM, LQ_, ONES = 96, 104, 164
    Q = lambda qg, ks: QR + (qg * 4 + ks) * 4
    P = lambda b: 112 + b * 8
    F = lambda n: 128 + (n % 8) * 4
    T = [160, 161, 162, 163]
    vRK, vRV, vMX, vU = 169, 170, 172, 208
    vD0, vNINF = vU + 6, vU + 7
    D = 6
    SM = [t0, t2, t4, t6]
    def kread(k, n):
        kg, ks = n >> 2, n & 3
        return f"ds_read_b128 {vr(F(n))}, v{vRK} offset:{k*8192 + (ks >> 1)*4096 + kg*2048 + (ks & 1)*1024}"
    def vread(k, m, ring):
        return f"ds_read_b128 {vr(F(ring))}, v{vRV} offset:{k*8192 + m*1024}"
    def fread(k, n):
        return kread(k, n) if n < 8 else vread(k, n - 8, n)
    def mqk(sl, sb, zero=False):
        n, qg = (sl >> 2) * 2 + (sl & 1), (sl >> 1) & 1
        kg, ks = n >> 2, n & 3
        a = S(sb) + qg * 8 + kg * 4
        c = vr(a) if ks else ("0" if zero else vr(NEGM + 4 * qg))
        return f"{M16} {vr(a)}, {vr(F(n))}, {vr(Q(qg, ks))}, {c}"
    def mpv(sl, ring0, pb):
        dt, qg = sl >> 1, sl & 1
        return f"{M16} {vr(O(qg, dt))}, {vr(F(ring0 + dt))}, {vr(P(pb) + qg*4)}, {vr(O(qg, dt))}"
    def msum(sb, qg, dst=None):
        if dst is not None:
            return f"{M16} {vr(dst)}, {vr(ONES)}, {vr(P(sb) + qg*4)}, 0"
        return f"{M16} {vr(LQ_ + 4*qg)}, {vr(ONES)}, {vr(P(sb) + qg*4)}, {vr(LQ_ + 4*qg)}"
    EORD = [0, 1, 2, 3, 8, 9, 10, 11, 4, 5, 6, 7, 12, 13, 14, 15]
    SEQ = ("M0 e12 M1 R c11 M2 e13 M3 R W M4 e14 M5 R c13 L0 e15 M6 R c15 M7 R W L1 E0 M8 R M9 E1 M10 C1 R M11 MAX W "
           "M12 E2 M13 CMP R M14 E3 M15 CHK W").split()
    if X('SEQ0'):
        SEQ = ("M0 e12 M1 R c11 M2 e13 M3 R W M4 e14 M5 R c13 L0 M6 e15 M7 R c15 W M8 E0 M9 R L1 M10 E1 M11 R W "
               "M12 E2 M13 R C1 MAX M14 E3 CMP M15 R CHK W").split()
    for n in range(16, 32):
        SEQ.append(f"M{n}")
        SEQ += [f"E{n // 2 - 4}"] if n % 2 == 0 else ["R", f"C{n // 2 - 5}" if n % 4 == 1 else "W"]
    def sm_text(tok, cur, nxt):
        if tok in ("MAX", "CMP", "CHK"):
            return {"MAX": f"v_max_f32 v{vMX}, v{LQ_}, v{LQ_+4}", "CMP": f"v_cmp_nge_f32 vcc, s{sTHR}, v{vMX}", "CHK": "CHECK"}[tok], cur
        j = int(tok[1:])
        if tok[0] == "L": return msum(cur, j), cur
        sb = cur if tok[0] in "ec" else nxt
        e = EORD[j]
        if tok[0] in "eE": return f"v_exp_f32 v{T[j & 3]}, v{S(sb)+e}", sb
        return f"v_cvt_pk_bf16_f32 v{P(sb)+(e>>1)}, v{T[(j-1)&3]}, v{T[j & 3]}", sb
    isM = lambda t: t[0] == "M" and t != "MAX"
    ISN = lambda t: t[0] in "EC" and t not in ("CMP", "CHK")
    ISC = lambda t: not isM(t) and not ISN(t) and t not in ("R", "W")
    tramps = []
    def emit_op(txt, sb):
        if txt.startswith("CHECK"):
            k = len(tramps)
            p(f"s_cbranch_vccnz L_tr{k}")
            p.label(f"L_bk{k}")
            tramps.append((k, sb))
        else:
            p(txt)
    def line_ops(ops, sb):
        for t in ops:
            if t.startswith("v_cvt"): p("s_nop 0")
            if t.startswith(M16): p("s_nop 1")
            if t.startswith("v_max"): p("s_nop 7")
            if t == "CHECK": p("s_nop 1")
            emit_op(t, sb)
    def mask_ops(sb, vD):
        L = [f"v_cmp_le_i32 s[{SM[r]}:{SM[r]+1}], {r}, v{vD}" for r in range(4)]
        L += [f"v_mov_b32 v{S(sb)+4+r}, v{vNINF}" for r in range(4)]
        for b in (0, 12):
            L += [f"v_cndmask_b32 v{S(sb)+b+r}, v{vNINF}, v{S(sb)+b+r}, s[{SM[r]}:{SM[r]+1}]" for r in range(4)]
        return L
    def dstamp(base):
        if not (STAMPS and X('ATTST')): return
        p("s_memtime s[100:101]")
        p(f"s_min_u32 s{t11}, s{sR}, 14")
        p(f"s_add_u32 m0, s{t11}, {base}")
        p("s_waitcnt lgkmcnt(0)")
        p(f"v_writelane_b32 v{vSTAMP}, s100, m0")
    def round_end(tag):
        dstamp(32)
        p("s_waitcnt vmcnt(0) lgkmcnt(0)")
        if not X('NOBAR'): p("s_barrier")
        dstamp(47)
        p(f"v_xor_b32 v{vRK}, 0x8000, v{vRK}")
        p(f"v_xor_b32 v{vRV}, 0x38000, v{vRV}")
        p(f"s_add_u32 s{sR}, s{sR}, 1")
        skip = newlab("nohook")
        p(f"s_cmp_eq_u32 s{sHK}, 0")
        p(f"s_cbranch_scc1 {skip}")
        p(f"s_call_b64 s[{LKB}:{LKB+1}], L_hook")
        p.seg(tag + "_b")
        p.label(skip)
    RE = int(os.environ.get('RE', 24))
    def iteration(k, last, tag):
        nxt, cur = k & 1, (k & 1) ^ 1
        def frag(q):
            if q < 16:
                return fread(k, q)
            q -= 16
            kn = (k + 1) & 3
            return vread(kn, q, q) if last else fread(kn, q)
        issued = D
        owed = 0
        n = -1
        for tok in SEQ:
            if isM(tok):
                n = int(tok[1:])
                if k == 3 and n == RE:
                    round_end(tag)
                    while owed:
                        p(frag(issued)); issued += 1; owed -= 1
                p(mqk(n, nxt) if n < 16 else mpv(n - 16, 8, cur))
            elif tok == "R":
                if k == 3 and n < RE and issued >= 16: owed += 1
                else:
                    p(frag(issued)); issued += 1
            elif tok == "W":
                if not (k == 3 and n + 1 == RE):
                    p(f"s_waitcnt lgkmcnt({issued - ((n + 1) // 2 + 2)})")
            else:
                if X('NOCHK') and tok in ("MAX", "CMP", "CHK"): continue
                emit_op(*sm_text(tok, cur, nxt))
    def tail():
        cur = 1
        for q in range(D, 8):
            p(vread(0, q, q))
        line_ops([sm_text(t, cur, None)[0] for t in SEQ if ISC(t)], cur)
        for m in range(16):
            if m % 2 == 0: p(f"s_waitcnt lgkmcnt({7 - m // 2})")
            p(mpv(m, 0, cur))
    def maxtree(sb, dst):
        for qg in range(2):
            s = S(sb) + 8 * qg
            p(f"v_max3_f32 v{dst+qg}, v{s}, v{s+1}, v{s+2}")
            p(f"v_max3_f32 v{dst+2+qg}, v{s+3}, v{s+4}, v{s+5}")
        for qg in range(2):
            s = S(sb) + 8 * qg
            p(f"v_max3_f32 v{dst+qg}, v{dst+qg}, v{s+6}, v{s+7}")
        for qg in range(2):
            p(f"v_max_f32 v{dst+qg}, v{dst+qg}, v{dst+2+qg}")
        for sw in ("v_permlane16_swap_b32", "v_permlane32_swap_b32"):
            for qg in range(2):
                p(f"v_mov_b32 v{dst+2+qg}, v{dst+qg}")
            p("s_nop 0")
            for qg in range(2):
                p(f"{sw} v{dst+qg}, v{dst+2+qg}")
            p("s_nop 0")
            for qg in range(2):
                p(f"v_max_f32 v{dst+qg}, v{dst+qg}, v{dst+2+qg}")

    p.seg("apro")
    p.label("L_apro")
    p(f"s_cmp_eq_u32 s{sG}, 0")
    p(f"s_cselect_b32 s{t0}, {KB[1]}, {KB[0]}")
    p(f"s_mov_b32 s{sHK2}, 0")
    p(f"s_add_u32 s{t1}, s{t0}, {VB_[0]}")
    p(f"v_add_u32 v{vRK}, s{t0}, v{vST}")
    p(f"v_add_u32 v{vRV}, s{t1}, v{vST}")
    p(f"v_and_b32 v{vU}, 15, v{vL}")
    p(f"v_lshrrev_b32 v{vU+1}, 4, v{vL}")
    p(f"v_lshlrev_b32 v{vU+1}, 2, v{vU+1}")
    p(f"v_sub_u32 v{vD0}, v{vU}, v{vU+1}")
    p(f"v_mov_b32 v{vNINF}, 0xff800000")
    for i in range(8):
        p(f"v_mov_b32 v{LQ_+i}, 0")
    p(f"s_mov_b32 s{sOUT}, 0")
    p(f"s_mov_b32 s{sBX}, 0")
    p(f"s_mov_b32 s{sWL}, 0")
    p(f"s_mov_b32 s{sWOK}, 0")
    p(f"s_lshl_b32 s{sWT}, s{sTB}, 2")
    p(f"s_add_u32 s{sWT}, s{sWT}, s{sCB}")
    p(f"s_mul_i32 s{sWT}, s{sWT}, {288 * 1024}")
    p(f"s_add_u32 s{sWT}, s{sWT}, {WTO}")
    p(f"s_cmp_lt_u32 s{sI}, 2")
    p(f"s_cselect_b32 s{sFH}, 5, 4")
    p(f"s_mov_b32 s{sR1}, s{sFH}")
    p(f"s_sub_u32 s{sRO}, s{sN}, 5")
    p(f"s_max_u32 s{sRO}, s{sRO}, 6")
    if os.environ.get('PRIO', '1') != '0':
        p(f"s_cmp_eq_u32 s{sG}, 0")
        p("s_cbranch_scc1 L_noprio")
        p(f"s_setprio {os.environ.get('PRIO', '1')}")
        p.label("L_noprio")
    stamp(p, 18)
    p("s_waitcnt lgkmcnt(0)")
    p("s_barrier")
    stamp(p, 21)
    for p0 in range(1, 4):
        p(f"s_cmp_eq_u32 s{sQ4}, {3 - p0}")
        p(f"s_cbranch_scc1 L_pro{p0}")
    for p0 in range(4):
        sb = p0 & 1
        p.seg(f"pro{p0}")
        p.label(f"L_pro{p0}")
        for n in range(8):
            p(kread(p0, n))
        for i in range(4):
            p(f"v_mov_b32 v{ONES+i}, 0x3f803f80")
        z = 0
        for n in range(16):
            if n % 4 == 0: p(f"s_waitcnt lgkmcnt({6 - n // 2})")
            if n >= 8 and not (n >> 1) & 1: continue
            p(mqk(n, sb, True))
            for i in range(5 if n < 8 else 6):
                p(f"v_mov_b32 v{z}, 0"); z += 1
        assert z == 64
        if p0 < 3:
            for n in range(D):
                p(fread(p0 + 1, n))
        for x in mask_ops(sb, vD0):
            p(x)
        maxtree(sb, vU)
        for i in range(16):
            p(f"v_sub_f32 v{S(sb)+i}, v{S(sb)+i}, v{vU + (i >> 3)}")
        for i in range(8):
            p(f"v_sub_f32 v{NEGM+i}, 0, v{vU + (i >> 2)}")
        line_ops([sm_text(t, None, sb)[0] for t in SEQ if ISN(t)], sb)
        if p0 < 3: p(f"s_waitcnt lgkmcnt({D - 2})")
        if p0 < 3:
            p(f"s_branch L_it{p0 + 1}")
        else:
            p(f"s_cmp_eq_u32 s{sR}, s{sLAST}")
            p("s_cbranch_scc1 L_pro3L")
            round_end("pro3")
            for n in range(D):
                p(fread(0, n))
            p(f"s_waitcnt lgkmcnt({D - 2})")
            p("s_branch L_it0")
            p.seg("pro3L")
            p.label("L_pro3L")
            round_end("pro3L")
            for n in range(D):
                p(vread(0, n, n))
            p("s_branch L_tail")
    for k in range(4):
        p.seg(f"it{k}")
        p.label(f"L_it{k}")
        if k == 3:
            p(f"s_cmp_eq_u32 s{sR}, s{sLAST}")
            p("s_cbranch_scc1 L_it3L")
        if k in (1, 2):
            p(f"s_cmp_lg_u32 s{sHK2}, 0")
            p(f"s_cbranch_scc1 L_h2c{k}")
            p.label(f"L_h2b{k}")
        iteration(k, False, f"it{k}")
    p("s_branch L_it0")
    p.seg("it3L")
    p.label("L_it3L")
    iteration(3, True, "it3L")
    p.seg("tail")
    p.label("L_tail")
    tail()
    p.seg("epi")
    stamp(p, 22)
    if X('LB'):
        stamp_real(p, 31)
        p(f"s_lshl_b32 s{t0}, s{sL}, 3")
        p(f"s_add_u32 s{t0}, s{t0}, s{sW}")
        p(f"s_lshl_b32 s{t0}, s{t0}, 8")
        p(f"s_add_u32 s{t0}, s{t0}, {DBGOFF}")
        p(f"v_lshlrev_b32 v{vU}, 2, v{vL}")
        p(f"buffer_store_dword v{vSTAMP}, v{vU}, {WS}, s{t0} offen")
        p("s_endpgm")
    vCX = 173
    gate_check(vG, vU, vU + 1, False, "e")
    gate_check(vG1, vU, vU + 1, False, "f", 2048)
    p(f"v_rcp_f32 v{vU}, v{LQ_}")
    p(f"v_rcp_f32 v{vU+1}, v{LQ_+4}")
    p(f"v_add_f32 v{vG}, -1.0, v{vG}")
    p(f"v_add_f32 v{vG1}, -1.0, v{vG1}")
    p(f"s_lshl_b32 s{t0}, s{sQB}, 2")
    p(f"s_add_u32 s{t0}, s{t0}, s{sQ4}")
    p(f"s_mul_i32 s{t0}, s{t0}, 288")
    p(f"s_lshl_b32 s{t1}, s{sH}, 3")
    p(f"s_add_u32 s{t0}, s{t0}, s{t1}")
    p(f"s_lshl_b32 s{t0}, s{t0}, 10")
    p(f"s_add_u32 s{t0}, s{t0}, {AWS}")
    p(f"s_add_u32 s{t1}, s{t0}, 4096")
    p(f"v_mul_f32 v{vU}, v{vU}, v{vG}")
    p(f"v_mul_f32 v{vU+1}, v{vU+1}, v{vG1}")
    p(f"v_lshrrev_b32 v{vG}, 4, v{vL}")
    p(f"v_lshl_add_u32 v{vG}, v{vG}, 8, v{vST}")
    p(f"s_mov_b32 s{sCX}, s{t0}")
    p(f"s_cmp_lt_u32 s{sR}, s{sN}")
    p("s_cbranch_scc1 L_epi2")
    def ctx_store(d, half):
        return f"buffer_store_dwordx4 {vr(80 + 8*d + 4*half)}, v{vG}, {WS}, s{sCX if d < 2 else t1} offen offset:{(d&1)*2048 + half*256} sc1"
    def epi_body(st):
        for d in range(4):
            for qg in range(2):
                o = O(qg, 2 * d)
                for i in range(8):
                    p(f"v_mul_f32 v{o+i}, v{o+i}, v{vU+qg}")
            for qg in range(2):
                o = O(qg, 2 * d)
                for i in range(4):
                    p(f"v_cvt_pk_bf16_f32 v{80+8*d+4*qg+i}, v{o+2*i}, v{o+2*i+1}")
            if st:
                for half in range(2):
                    p(ctx_store(d, half))
    WQ_ = list(range(0, 64, 4)) + list(range(112, 128, 4)) + list(range(144, 160, 4)) + list(range(176, 208, 4)) + list(range(216, 232, 4))
    def wgroup(c, vm=None, part=None):
        L = []
        for q in range(3):
            if part is not None and q != part: continue
            L.append(f"s_add_u32 s{t8}, s{sWT}, {(c * 12 + q * 4) * 1024}")
            for k in range(4):
                L.append(f"buffer_load_dwordx4 {vr(WQ_[c * 12 + q * 4 + k])}, v{vST}, {WS}, s{t8} offen offset:{k * 1024} sc1")
        for x in L: p(x)
    def own_slice():
        p(f"s_mul_i32 s{t8}, s{sW}, {36 * 1024}")
        p(f"s_add_u32 s{sWT}, s{sWT}, s{t8}")
    sAS, sAL, sOD, sM0, sRS = 64, 65, 66, 67, 68
    ACC = lambda ps, rt: (64, 128, 80, 96)[ps * 2 + rt]
    RING = [160, 164, 168, 172, 208, 212, 232, 236]
    vFA, vFD, vA0, vA1, vC = 240, 241, 242, 243, 244
    CW = 49152
    FPOLL = f"buffer_load_dword v{vFD}, v{vFA}, {WS}, 0 offen sc1"
    def cprep():
        p(f"s_bfe_u32 s{sRS}, s{sH}, 0x10002")
        p(f"s_lshl_b32 s{sRS}, s{sRS}, 1")
        p(f"s_lshl_b32 s{t0}, s{sTB}, 3")
        p(f"s_add_u32 s{t0}, s{t0}, s{sW}")
        p(f"s_lshl_b32 s{t1}, s{t0}, 3")
        p(f"s_add_u32 s{t1}, s{t1}, s{sI}")
        p(f"s_lshl_b32 s{t1}, s{t1}, 5")
        p(f"s_add_u32 s{t1}, s{t1}, s{sRS}")
        p(f"s_lshl_b32 s{t1}, s{t1}, 2")
        p(f"s_add_u32 s{t1}, s{t1}, {FLG + 4*F_CS}")
        p(f"s_andn2_b32 s{t2}, s{t1}, 1024")
        p(f"s_add_u32 s{t2}, s{t2}, {4*(F_O - F_CS)}")
        p(f"v_bfe_u32 v{vC}, v{vL}, 1, 1")
        p(f"v_and_b32 v{vC+1}, 1, v{vL}")
        p(f"v_lshlrev_b32 v{vC+1}, 2, v{vC+1}")
        p(f"v_lshl_add_u32 v{vC+2}, v{vC}, 4, v{vC+1}")
        p(f"v_lshl_add_u32 v{vC+3}, v{vC}, 10, v{vC+1}")
        p(f"v_and_b32 v{vC}, 4, v{vL}")
        p(f"v_cmp_ne_u32 vcc, 0, v{vC}")
        p(f"v_add_u32 v{vC+2}, s{t1}, v{vC+2}")
        p(f"v_add_u32 v{vC+3}, s{t2}, v{vC+3}")
        p(f"v_cndmask_b32 v{vFA}, v{vC+2}, v{vC+3}, vcc")
        p(FPOLL)
    p.seg("epi1")
    epi_body(True)
    p("s_barrier")
    p(f"s_mov_b32 s{sBX}, 1")
    cprep()
    own_slice()
    wgroup(0)
    p(f"s_mov_b32 s{sWL}, 1")
    p(f"s_lshl_b32 s{t2}, s{sG}, 2")
    p(f"s_add_u32 s{t2}, s{t2}, s{sQ4}")
    p("s_waitcnt vmcnt(12)")
    flag_store(vU, vU + 1, F_CS, t2)
    stamp(p, 23)
    p("s_branch L_cq")
    p.seg("epi2")
    p.label("L_epi2")
    epi_body(False)
    p(f"s_mov_b32 s{sPEND}, 3")
    p.seg("help0")
    p.label("L_help0")
    p(f"s_cmp_eq_u32 s{sHK2}, 0")
    p("s_cbranch_scc1 L_hs1")
    p(f"s_mov_b32 s{sOUT}, 4")
    p(f"s_sub_u32 s{sHK2}, s{sHK2}, 2")
    p(f"s_cmp_eq_u32 s{sHK2}, 0")
    p("s_cbranch_scc1 L_hs0")
    stash_stores([0, 1])
    p("s_branch L_help")
    p.label("L_hs0")
    stash_stores([2, 3])
    p("s_branch L_help")
    p.label("L_hs1")
    p(f"s_cmp_lt_u32 s{sPEND}, 2")
    p("s_cbranch_scc1 L_hw")
    p(f"s_mov_b32 s{sOUT}, 4")
    p(f"s_sub_u32 s{sPEND}, s{sPEND}, 1")
    p(f"s_cmp_eq_u32 s{sPEND}, 1")
    p("s_cbranch_scc1 L_hs2")
    for d in range(2):
        for half in range(2):
            p(ctx_store(d, half))
    p("s_branch L_help")
    p.label("L_hs2")
    p(f"s_add_u32 s{t1}, s{sCX}, 4096")
    for d in range(2, 4):
        for half in range(2):
            p(ctx_store(d, half))
    p("s_branch L_help")
    p.seg("helpw")
    p.label("L_hw")
    p(f"s_cmp_lg_u32 s{sPEND}, 0")
    p("s_cbranch_scc1 L_help")
    p(f"s_cmp_eq_u32 s{sWOK}, 0")
    p("s_cbranch_scc1 L_help")
    p(f"s_add_u32 s{t0}, s{sR}, {int(os.environ.get('WLD', 5))}")
    p(f"s_cmp_lt_u32 s{t0}, s{sN}")
    p("s_cbranch_scc1 L_help")
    p(f"s_cmp_ge_u32 s{sWL}, {0 if X('NOEARLY') else 3}")
    p("s_cbranch_scc1 L_help")
    p(f"s_mov_b32 s{sOUT}, 12")
    p(f"s_add_u32 s{sWL}, s{sWL}, 1")
    p(f"s_cmp_eq_u32 s{sWL}, 2")
    p("s_cbranch_scc1 L_hwb")
    p(f"s_cmp_eq_u32 s{sWL}, 3")
    p("s_cbranch_scc1 L_hwc")
    own_slice()
    wgroup(0)
    p("s_branch L_help")
    p.label("L_hwb")
    wgroup(1)
    p("s_branch L_help")
    p.label("L_hwc")
    wgroup(2)
    p.seg("help")
    p.label("L_help")
    p("s_waitcnt vmcnt(12)")
    p(f"s_cmp_eq_u32 s{sOUT}, 12")
    p("s_cbranch_scc1 L_hnf")
    p("s_waitcnt vmcnt(4)")
    p(f"s_cmp_eq_u32 s{sOUT}, 4")
    p("s_cbranch_scc1 L_hnf")
    p("s_waitcnt vmcnt(1)")
    p(f"s_cmp_eq_u32 s{sOUT}, 1")
    p("s_cbranch_scc1 L_hw1")
    p("s_waitcnt vmcnt(0)")
    p.label("L_hw1")
    p(f"s_cmp_eq_u32 s{sPEND}, 0")
    p("s_cbranch_scc1 L_hnf")
    p(f"s_lshl_b32 s{t2}, s{sG}, 2")
    p(f"s_add_u32 s{t2}, s{t2}, s{sQ4}")
    flag_store(vU, vU + 1, F_CS, t2)
    p(f"s_mov_b32 s{sPEND}, 0")
    p.label("L_hnf")
    p(f"s_mov_b32 s{sOUT}, 0")
    p(f"s_cmp_ge_u32 s{sR}, s{sN}")
    p("s_cbranch_scc1 L_hy")
    p("s_barrier")
    p(f"s_add_u32 s{sR}, s{sR}, 1")
    p(f"s_call_b64 s[{LKB}:{LKB+1}], L_hook")
    p("s_branch L_help0")
    p.label("L_hy")
    p(f"s_cmp_lg_u32 s{sPEND}, 0")
    p("s_cbranch_scc1 L_help0")
    p.seg("hx")
    p.label("L_hx")
    stamp(p, 23)

    p.seg("cpro")
    cprep()
    def fcheck(mask, tag, want=1):
        top, ok = newlab("fc" + tag), newlab("fcok" + tag)
        p.label(top)
        p(f"v_cmp_ne_u32 vcc, {want}, v{vFD}")
        p("s_nop 1")
        p(f"s_and_b32 s{t9}, vcc_lo, {mask}")
        p(f"s_cbranch_scc0 {ok}")
        p(f"s_sleep {os.environ.get('SLP', 3)}")
        p(FPOLL)
        p("s_waitcnt vmcnt(0)")
        p(f"s_sub_u32 s{sTO}, s{sTO}, 1")
        p(f"s_cbranch_scc0 {top}")
        p(f"s_mov_b32 s{sTO}, 0")
        p.label(ok)
    def emit(G):
        for L in G:
            for x in L: p(x)
    def cond_w(c, part=None):
        sk = newlab("wsk")
        p(f"s_cmp_gt_u32 s{sWL}, {c}")
        p(f"s_cbranch_scc1 {sk}")
        if c == 0: own_slice()
        wgroup(c, part=part)
        p.label(sk)
    def cond_wait(tab):
        done = newlab("cwd")
        for k, n in reversed(tab):
            p(f"s_waitcnt vmcnt({n})")
            if (k, n) != tab[0]:
                kk = tab[tab.index((k, n)) - 1][0]
                p(f"s_cmp_lt_u32 s{sWL}, {kk}")
                p(f"s_cbranch_scc1 {done}")
        p.label(done)
    cond_w(0)
    cond_wait([(1, 0), (0, 12)])
    p.seg("cpro2")
    p.label("L_cq")
    p(f"s_lshl_b32 s{t0}, s{sTB}, 3")
    p(f"s_add_u32 s{t0}, s{t0}, s{sW}")
    p(f"s_lshl_b32 s{t1}, s{sI}, 2")
    p(f"s_sub_u32 s{t2}, 60, s{t1}")
    p(f"s_add_u32 s{t1}, s{t1}, s{sRS}")
    p(f"s_add_u32 s{t2}, s{t2}, s{sRS}")
    p(f"s_mul_i32 s{t1}, s{t1}, {288 * 1024}")
    p(f"s_mul_i32 s{t2}, s{t2}, {288 * 1024}")
    p(f"s_lshl_b32 s{t3}, s{t0}, 13")
    p(f"s_add_u32 s{t3}, s{t3}, {AWS}")
    p(f"s_add_u32 s{sAS}, s{t1}, s{t3}")
    p(f"s_add_u32 s{sAL}, s{t2}, s{t3}")
    p(f"s_mul_i32 s{sOD}, s{t0}, {7 * 1024}")
    p(f"s_sub_u32 s{sOD}, {256 * 1024 - 2048}, s{sOD}")
    p(f"s_mul_i32 s{sM0}, s{sW}, 6144")
    p(f"s_mul_i32 s{t1}, s{sG}, 24576")
    p(f"v_add_u32 v{vA0}, s{t1}, v{vST}")
    p(f"v_add_u32 v{vA1}, 0x10000, v{vA0}")
    def aload(ps, c):
        G = []
        for rt in range(2):
            L = [f"s_add_u32 m0, s{sM0}, {c * CW + rt * 3072}",
                 f"s_add_u32 s{t6}, s{sAL if ps else sAS}, {rt * 288 * 1024 + c * 3072}"]
            for k in range(3):
                if c == 2 and k == 2:
                    L.append(f"s_add_u32 s{t6}, s{sAL if ps else sAS}, s{sOD}")
                    if rt: L.append(f"s_add_u32 s{t6}, s{t6}, {288 * 1024}")
                L.append(f"buffer_load_dwordx4 v{vST}, {WS}, s{t6} offen offset:{k * 1024} sc1 lds")
                G.append(L); L = []
        return G
    cstamp(p, 41)
    fcheck(0x33, "s")
    cstamp(p, 42)
    emit(aload(0, 0))
    cond_w(1)
    emit(aload(0, 1))
    p(f"s_cmp_lg_u32 s{sBX}, 0")
    p("s_cbranch_scc1 L_nobx")
    p("s_barrier")
    p.label("L_nobx")
    cstamp(p, 43)
    p.seg("cmain")
    def chunk_c(n, side):
        ps, c = n // 3, n % 3
        F_ = [(w_, s3, rt) for w_ in range(4) for s3 in range(3) for rt in range(2)]
        def rd(k):
            w_, s3, rt = F_[k]
            o = w_ * 6144 + rt * 3072 + s3 * 1024 + c * CW
            p(f"ds_read_b128 {vr(RING[k % 8])}, v{vA1 if o >> 16 else vA0} offset:{o & 0xffff}")
        for k in range(7): rd(k)
        sp = spread(side, 20)
        for k in range(24):
            w_, s3, rt = F_[k]
            if k % 2 == 0: p(f"s_waitcnt lgkmcnt({min(k + 7, 24) - k - 2})")
            a = ACC(ps, rt)
            p(f"{MF} {vr(a,16)}, {vr(WQ_[c * 12 + w_ * 3 + s3])}, {vr(RING[k % 8])}, {'0' if c == 0 and k < 2 else vr(a,16)}")
            if k + 7 < 24: rd(k + 7)
            if k < 20:
                for L in sp[k]:
                    if callable(L): L()
                    else:
                        for x in L: p(x)
    cond_wait([(2, 6), (0, 18)])
    p("s_barrier")
    cstamp(p, 32)
    p(FPOLL)
    chunk_c(0, [lambda q=q: cond_w(2, q) for q in range(3)] + aload(0, 2))
    cond_wait([(3, 6), (0, 18)])
    cstamp(p, 44)
    fcheck(0xcc, "l")
    cstamp(p, 45)
    p("s_barrier")
    cstamp(p, 33)
    chunk_c(1, aload(1, 0))
    for n in range(2, 6):
        p(f"s_waitcnt vmcnt({6 if n < 5 else 0})")
        p("s_barrier")
        cstamp(p, 32 + n)
        chunk_c(n, aload(1, n - 1) if n < 4 else [])
    stamp(p, 26)
    p.seg("cred")
    p(f"s_lshl_b32 s{t0}, s{sW}, 13")
    p(f"s_xor_b32 s{t1}, s{t0}, 0x8000")
    p(f"v_add_u32 v{vC}, s{t0}, v{vST}")
    p(f"v_add_u32 v{vC+1}, s{t1}, v{vST}")
    p(f"s_lshl_b32 s{t2}, s{sW4}, 12")
    p(f"s_add_u32 s{t2}, s{t2}, {3 * CW}")
    p(f"v_add_u32 v{vC+2}, s{t2}, v{vST}")
    p(f"s_and_b32 s{t3}, s{sL}, 63")
    p(f"s_lshl_b32 s{t4}, s{sG}, 7")
    p(f"s_add_u32 s{t4}, s{t4}, s{t3}")
    p(f"s_lshl_b32 s{t4}, s{t4}, 2")
    p(f"s_add_u32 s{t4}, s{t4}, s{sTB}")
    p(f"s_lshl_b32 s{t4}, s{t4}, 2")
    p(f"s_add_u32 s{t4}, s{t4}, s{sW4}")
    p(f"s_lshl_b32 s{t4}, s{t4}, 12")
    p(f"s_add_u32 s{t4}, s{t4}, {XBO}")
    p(f"s_add_u32 s{t5}, s{t4}, {64 * 65536}")
    p(f"s_lshl_b32 s{t6}, s{sG}, 1")
    p(f"s_sub_u32 s{t6}, s{sTB}, s{t6}")
    p(f"s_cmp_lg_u32 s{sG}, 0")
    p("s_cbranch_scc1 L_cr1")
    def cred(g):
        give, keep = 1 - g, g
        p("s_nop 7")
        for rt in range(2):
            for q in range(4):
                p(f"ds_write_b128 v{vC}, {vr(ACC(give, rt) + 4*q)} offset:{(rt*4 + q) * 1024}")
        p("s_waitcnt lgkmcnt(0)")
        p("s_barrier")
        for q in range(8):
            p(f"ds_read_b128 {vr(4*q)}, v{vC+1} offset:{q * 1024}")
        for rt in range(2):
            a = ACC(keep, rt)
            own, nxt = newlab("cown"), newlab("cnx")
            p(f"s_waitcnt lgkmcnt({4 - 4*rt})")
            for i in range(16):
                p(f"v_add_f32 v{a+i}, v{a+i}, v{16*rt + i}")
            p(f"s_cmp_eq_u32 s{t6}, {rt}")
            p(f"s_cbranch_scc1 {own}")
            for q in range(4):
                p(f"buffer_store_dwordx4 {vr(a + 4*q)}, v{vST}, {WS}, s{t5 if rt else t4} offen offset:{q * 1024} sc1")
            p(f"s_branch {nxt}")
            p.label(own)
            if rt == 0: p("s_waitcnt lgkmcnt(0)")
            for q in range(4):
                p(f"ds_write_b128 v{vC+2}, {vr(a + 4*q)} offset:{q * 1024}")
            p.label(nxt)
    p.seg("cred0")
    cred(0)
    p("s_branch L_cr2")
    p.seg("cred1")
    p.label("L_cr1")
    cred(1)
    p.seg("cfin")
    p.label("L_cr2")
    p(f"s_lshl_b32 s{t3}, s{t3}, 7")
    p(f"s_lshl_b32 s{t2}, s{sTB}, 2")
    p(f"s_add_u32 s{t3}, s{t3}, s{t2}")
    p(f"s_add_u32 s{t3}, s{t3}, {FL3 + 4*F_X}")
    p(f"s_lshl_b32 s{t2}, s{sL}, 7")
    p(f"s_add_u32 s{t2}, s{t2}, {FL3 + 4*F_X}")
    p(f"v_and_b32 v{vC}, 3, v{vL}")
    p(f"v_lshl_add_u32 v{vFA}, v{vC}, 2, s{t2}")
    p(f"v_lshlrev_b32 v{vC}, 13, v{vC}")
    p(f"v_mov_b32 v{vC+1}, 1")
    p(f"s_lshl_b32 s{t4}, s{sW}, 11")
    p(f"s_add_u32 s{t5}, s{t4}, {3 * CW}")
    p(f"v_add_u32 v{vC+2}, s{t5}, v{vST}")
    p(f"s_lshl_b32 s{t5}, s{sL}, 16")
    p(f"s_add_u32 s{t4}, s{t4}, s{t5}")
    p(f"s_add_u32 s{t4}, s{t4}, {XBO}")
    p("s_waitcnt vmcnt(0) lgkmcnt(0)")
    cstamp(p, 40)
    p("s_barrier")
    p(f"s_cmp_lg_u32 s{sW}, 0")
    p("s_cbranch_scc1 L_nfx")
    p("s_mov_b64 exec, 15")
    p(f"buffer_store_dword v{vC+1}, v{vC}, {WS}, s{t3} offen sc1")
    p("s_mov_b64 exec, -1")
    p.label("L_nfx")
    p(FPOLL)
    for q in range(2):
        p(f"ds_read_b128 {vr(64 + 4*q)}, v{vC+2} offset:{q * 1024}")
    p(f"s_sub_u32 s{t2}, 15, s{sI}")
    p(f"s_cmp_lt_u32 s{sTB}, 2")
    p(f"s_cselect_b32 s{t2}, s{sI}, s{t2}")
    p(f"s_lshl_b32 s{t2}, s{t2}, 2")
    p(f"s_add_u32 s{t2}, s{t2}, s{sRS}")
    p(f"s_and_b32 s{t3}, s{sTB}, 1")
    p(f"s_add_u32 s{t2}, s{t2}, s{t3}")
    p(f"s_lshl_b32 s{t2}, s{t2}, 15")
    p(f"s_lshl_b32 s{t3}, s{sCB}, 8")
    p(f"s_add_u32 s{t2}, s{t2}, s{t3}")
    p(f"s_lshl_b32 s{t3}, s{sW}, 5")
    p(f"s_add_u32 s{t2}, s{t2}, s{t3}")
    p(f"v_and_b32 v{vC}, 31, v{vL}")
    p(f"v_lshlrev_b32 v{vC}, 10, v{vC}")
    p(f"v_lshrrev_b32 v{vC+1}, 5, v{vL}")
    p(f"v_lshl_add_u32 v{vC}, v{vC+1}, 4, v{vC}")
    p("s_waitcnt vmcnt(0)")
    cstamp(p, 38)
    fcheck(0xf, "x")
    cstamp(p, 39)
    for k in range(1, 4):
        p(f"s_xor_b32 s{t3}, s{sTB}, {k}")
        p(f"s_lshl_b32 s{t3}, s{t3}, 14")
        p(f"s_add_u32 s{t3}, s{t3}, s{t4}")
        for q in range(2):
            p(f"buffer_load_dwordx4 {vr(64 + 8*k + 4*q)}, v{vST}, {WS}, s{t3} offen offset:{q * 1024} sc1")
    p("s_waitcnt vmcnt(4) lgkmcnt(0)")
    for i in range(8):
        p(f"v_add_f32 v{64+i}, v{64+i}, v{72+i}")
    p("s_waitcnt vmcnt(0)")
    for i in range(8):
        p(f"v_add_f32 v{80+i}, v{80+i}, v{88+i}")
    for i in range(8):
        p(f"v_add_f32 v{64+i}, v{64+i}, v{80+i}")
    for i in range(4):
        p(f"v_cvt_pk_bf16_f32 v{i}, v{64+2*i}, v{65+2*i}")
    p("s_nop 1")
    p("v_permlane32_swap_b32 v0, v2")
    p("v_permlane32_swap_b32 v1, v3")
    p("s_nop 1")
    p(f"buffer_store_dwordx4 v[0:3], v{vC}, {sr(S_OUT)}, s{t2} offen")
    if STAMPS:
        stamp(p, 27)
        p("s_waitcnt vmcnt(0)")
        stamp(p, 28); stamp_real(p, 63)
        p(f"s_lshl_b32 s{t0}, s{sL}, 3")
        p(f"s_add_u32 s{t0}, s{t0}, s{sW}")
        p(f"s_lshl_b32 s{t0}, s{t0}, 8")
        p(f"s_add_u32 s{t0}, s{t0}, {DBGOFF}")
        p(f"v_lshlrev_b32 v{vC}, 2, v{vL}")
        p(f"buffer_store_dword v{vSTAMP}, v{vC}, {WS}, s{t0} offen")
    p.label("L_end")
    p("s_endpgm")
    def need_check(tile, tag):
        top, ok = newlab("nd" + tag), newlab("ndok" + tag)
        p(f"s_sub_u32 s{t9}, 15, s{tile}")
        p(f"s_min_u32 s{t9}, s{t9}, s{tile}")
        p(f"s_lshl_b32 s{t9}, s{t9}, 3")
        p(f"s_lshl_b64 s[{t2}:{t3}], 0xff, s{t9}")
        p(f"s_lshr_b32 s{t9}, s{tile}, 3")
        p(f"s_lshl_b32 s{t9}, s{t9}, 5")
        p.label(top)
        p(f"v_cmp_ne_u32 vcc, 1, v{vPD}")
        p("s_nop 1")
        p(f"s_and_b64 s[{t10}:{t11}], vcc, s[{t2}:{t3}]")
        p(f"s_cbranch_scc0 {ok}")
        p("s_sleep 1")
        p(f"buffer_load_dword v{vPD}, v{vPA}, {WS}, s{t9} offen sc1")
        p("s_waitcnt vmcnt(0)")
        p(f"s_sub_u32 s{sTO}, s{sTO}, 1")
        p(f"s_cbranch_scc0 {top}")
        p(f"s_mov_b32 s{sTO}, 0")
        p.label(ok)
    def loader(tag):
        def piece(src, k):
            return f"buffer_load_dwordx4 v{vST}, {WS}, s{src} offen offset:{(k & 3) * 1024} sc1 lds"
        skipk, skipv = newlab("skipk"), newlab("skipv")
        p(f"s_mov_b32 s{t7}, s{sT}")
        p(f"s_sub_u32 s{sT}, s{sR}, 1")
        p(f"s_cmp_ge_u32 s{sT}, s{sI}")
        p(f"s_addc_u32 s{sT}, s{sT}, 0")
        p(f"s_add_u32 s{t8}, s{sR}, 1")
        p(f"s_cmp_ge_u32 s{t8}, s{sN}")
        p(f"s_cbranch_scc1 {skipk}")
        need_check(sT, tag)
        if tag == "i": cstamp(p, 48)
        p(f"s_lshl_b32 s{t6}, s{sT}, 15")
        p(f"s_add_u32 s{t5}, s{sKB}, s{t6}")
        p(f"s_mov_b32 m0, s{sKM}")
        p(f"s_add_u32 s{t9}, s{t5}, 4096")
        for k in range(8):
            if k == 4:
                p("s_add_u32 m0, m0, 4096"); p("s_nop 0")
            p(piece(t5 if k < 4 else t9, k))
        p.label(skipk)
        p(f"s_cmp_lg_u32 s{sW4}, 0")
        p(f"s_cselect_b32 s{t6}, s{sT}, s{t7}")
        p(f"s_cselect_b32 s{t9}, 1, 0")
        p(f"s_cselect_b32 s{t5}, 99, s{t8}")
        p(f"s_add_u32 s{t9}, s{t8}, s{t9}")
        p(f"s_cmp_gt_u32 s{t9}, s{sN}")
        p(f"s_cbranch_scc1 {skipv}")
        p(f"s_cmp_lt_u32 s{t5}, 3")
        p(f"s_cbranch_scc1 {skipv}")
        p(f"s_lshl_b32 s{t6}, s{t6}, 15")
        p(f"s_add_u32 s{t5}, s{sVB}, s{t6}")
        p(f"s_mov_b32 m0, s{sVM}")
        p(f"s_add_u32 s{t9}, s{t5}, 4096")
        for k in range(8):
            if k == 4:
                p("s_add_u32 m0, m0, 4096"); p("s_nop 0")
            p(piece(t5 if k < 4 else t9, k))
        p.label(skipv)
        p(f"s_xor_b32 s{sKM}, s{sKM}, 0x8000")
        p(f"s_xor_b32 s{sVM}, s{sVM}, 0x38000")
        p(f"s_cmp_ge_u32 s{sR}, s{sI}")
        p(f"s_addc_u32 s{t9}, s{sR}, 0")
        p(f"s_cmp_ge_u32 s{t9}, 8")
        p(f"s_cselect_b32 s{t9}, 32, 0")
        p(f"buffer_load_dword v{vPD}, v{vPA}, {WS}, s{t9} offen sc1")
    p.seg("hook")
    p.label("L_hook")
    p(f"s_cmp_lg_u32 s{sG}, 0")
    p("s_cbranch_scc1 L_hook1")
    p(f"s_cmp_lg_u32 s{sR}, 1")
    p("s_cbranch_scc1 L_hookld")
    p.seg("idle")
    stamp(p, 24)
    KV, XA, va, vb, vc, vn, vgo = 128, S(0), 173, 174, 175, vPE, vPB
    p(f"s_lshl_b32 s{t0}, s{sW4}, 12")
    p(f"s_add_u32 s{t0}, s{t0}, {MISC + 8192}")
    p(f"v_add_u32 v{vc}, s{t0}, v{vST}")
    for s in range(2):
        p(f"ds_read_b128 {vr(PQ + 4*s)}, v{vc} offset:{s*1024}")
    loader("i")
    cstamp(p, 49)
    p("s_waitcnt lgkmcnt(0)")
    for s in range(2):
        p(f"ds_read_b128 {vr(KV + 4*s)}, v{vc} offset:{2048 + s*1024}")
    phi_inplace(PQ, 4, XA)
    phi_inplace(PQ + 4, 4, XA)
    ONE, OUT = KV + 8, KV
    for i in range(4):
        p(f"v_mov_b32 v{ONE+i}, 0x3f803f80")
    p(f"v_and_b32 v{va}, 16, v{vL}")
    p(f"v_cmp_ne_u32 vcc, 0, v{va}")
    p("s_waitcnt lgkmcnt(0)")
    p(f"{MF} {vr(XA,16)}, {vr(PQ)}, {vr(KV)}, 0")
    p(f"{MF} {vr(XA,16)}, {vr(PQ+4)}, {vr(KV+4)}, {vr(XA,16)}")
    p(f"s_lshl_b32 s{t0}, s{sL}, 2")
    p(f"s_add_u32 s{t0}, s{t0}, s{sW4}")
    p(f"s_lshl_b32 s{t0}, s{t0}, 12")
    p(f"s_add_u32 s{t0}, s{t0}, {KVP}")
    p("s_nop 7")
    for i in range(8):
        p(f"v_cndmask_b32 v{OUT+i}, v{XA+i}, v{XA+8+i}, vcc")
    p(f"{MF} {vr(XA,16)}, {vr(PQ)}, {vr(ONE)}, 0")
    p(f"{MF} {vr(XA,16)}, {vr(PQ+4)}, {vr(ONE)}, {vr(XA,16)}")
    for q in range(2):
        p(f"buffer_store_dwordx4 {vr(OUT + q*4)}, v{vST}, {WS}, s{t0} offen offset:{q*1024} sc1")
    p("s_nop 9")
    for i in range(8):
        p(f"v_cndmask_b32 v{OUT+8+i}, v{XA+i}, v{XA+8+i}, vcc")
    for q in range(2, 4):
        p(f"buffer_store_dwordx4 {vr(OUT + q*4)}, v{vST}, {WS}, s{t0} offen offset:{q*1024} sc1")
    cstamp(p, 50)
    p("s_waitcnt vmcnt(4)")
    stamp(p, 25)
    p("s_barrier")
    p(f"s_mov_b32 s{sR}, 2")
    loader("j")
    def wt_head(dst):
        p(f"s_lshr_b32 s{dst}, s{sH}, 2")
        p(f"s_lshl_b32 s{dst}, s{dst}, 2")
        p(f"s_lshr_b32 s{t1}, s{sI}, 1")
        p(f"s_add_u32 s{dst}, s{dst}, s{t1}")
    p(f"v_lshrrev_b32 v{va}, 3, v{vL}")
    p(f"v_lshlrev_b32 v{va}, 10, v{va}")
    p(f"v_bfe_u32 v{vb}, v{vL}, 4, 1")
    p(f"v_lshlrev_b32 v{vb}, 2, v{vb}")
    p(f"v_and_b32 v{vc}, 7, v{vL}")
    p(f"v_xor_b32 v{vc}, v{vc}, v{vb}")
    p(f"v_lshl_add_u32 v{va}, v{vc}, 4, v{va}")
    p(f"s_lshl_b32 s{t0}, s{sCB}, 1")
    p(f"s_and_b32 s{t1}, s{sI}, 1")
    p(f"s_add_u32 s{t0}, s{t0}, s{t1}")
    p(f"s_lshl_b32 s{t0}, s{t0}, 7")
    p(f"v_add_u32 v{va}, s{t0}, v{va}")
    wt_head(t2)
    p(f"s_lshl_b32 s{t0}, s{t2}, 17")
    p(f"s_lshr_b32 s{t1}, s{sW4}, 1")
    p(f"s_lshl_b32 s{t1}, s{t1}, 15")
    p(f"s_add_u32 s{t0}, s{t0}, s{t1}")
    p(f"s_and_b32 s{t1}, s{sW4}, 1")
    p(f"s_lshl_b32 s{t1}, s{t1}, 13")
    p(f"s_add_u32 s{t0}, s{t0}, s{t1}")
    p(f"s_lshl_b32 s{t1}, s{sW4}, 12")
    p(f"s_add_u32 m0, s{t1}, {MISC + 8192}")
    for k in range(4):
        p(f"s_add_u32 s{t1}, s{t0}, {(k >> 1) * 65536 + (k & 1) * 16384 - k * 1024}")
        p(f"buffer_load_dwordx4 v{va}, {sr(S_WO)}, s{t1} offen offset:{k * 1024} lds")
    p(f"s_cmp_lg_u32 s{sW4}, 0")
    p("s_cbranch_scc1 L_wt1")
    p(f"s_lshl_b32 s{t0}, s{t2}, 14")
    p(f"s_mov_b32 m0, {MISC + 24576}")
    p(f"s_add_u32 s{t1}, s{t0}, {8192 - 1024}")
    p(f"buffer_load_dwordx4 v{va}, {sr(S_BWO)}, s{t0} offen lds")
    p(f"buffer_load_dwordx4 v{va}, {sr(S_BWO)}, s{t1} offen offset:1024 lds")
    p.label("L_wt1")
    p(f"s_mov_b32 s{sHK2}, 4")
    p(f"s_setpc_b64 s[{LKB}:{LKB+1}]")
    p.seg("hookld")
    p.label("L_hookld")
    def grp_flag_addr():
        p(f"v_lshrrev_b32 v{va}, 2, v{vL}")
        p(f"v_lshlrev_b32 v{vb}, 12, v{va}")
        p(f"v_lshlrev_b32 v{va}, 7, v{va}")
        p(f"v_and_b32 v{vc}, 3, v{vL}")
        p(f"v_lshl_add_u32 v{va}, v{vc}, 2, v{va}")
    p(f"s_sub_u32 s{t2}, s{sR}, s{sR1}")
    p(f"s_add_u32 s{t3}, s{t2}, 1")
    p(f"s_cmp_lt_u32 s{t2}, 2")
    p(f"s_cselect_b32 s{sJOB}, s{t3}, 0")
    p(f"s_sub_u32 s{t2}, s{sR}, s{sRO}")
    p(f"s_add_u32 s{t3}, s{t2}, 3")
    p(f"s_cmp_lt_u32 s{t2}, 2")
    p(f"s_cselect_b32 s{sJOB}, s{t3}, s{sJOB}")
    p(f"s_cmp_eq_u32 s{t2}, 2")
    p(f"s_cselect_b32 s{t2}, {F_O}, 0")
    p(f"s_cmp_eq_u32 s{sR}, 3")
    p(f"s_cselect_b32 s{t2}, {F_B}, s{t2}")
    p(f"s_cmp_eq_u32 s{t2}, 0")
    p("s_cbranch_scc1 L_nofo")
    p(f"s_add_u32 s{t2}, s{t2}, s{sW4}")
    flag_store(va, vb, 0, t2)
    p.label("L_nofo")
    p(f"s_cmp_lg_u32 s{sR}, s{sFH}")
    p("s_cbranch_scc1 L_nohi")
    p(f"s_cmp_lg_u32 s{sW}, 0")
    p("s_cbranch_scc1 L_nohi")
    flag_store(va, vb, 8, base=FL2, lanes=8)
    p.label("L_nohi")
    p(f"s_cmp_lg_u32 s{sJOB}, 0")
    p("s_cbranch_scc1 L_jpre")
    p.seg("hookl2")
    p.label("L_jpreb")
    loader("r")
    p(f"s_cmp_lg_u32 s{sJOB}, 0")
    p("s_cbranch_scc1 L_jpost")
    p.seg("hookl3")
    p.label("L_jpostb")
    p(f"s_cmp_eq_u32 s{sWOK}, 2")
    p("s_cbranch_scc0 L_wtj")
    p(f"s_setpc_b64 s[{LKB}:{LKB+1}]")
    p.seg("wtj")
    p.label("L_wtj")
    p(f"s_cmp_eq_u32 s{sR}, 3")
    p("s_cbranch_scc1 L_wtp")
    p(f"s_cmp_eq_u32 s{sWOK}, 1")
    p("s_cbranch_scc1 L_wtt")
    p(f"s_cmp_lg_u32 s{sR}, 4")
    p("s_cbranch_scc1 L_wtc")
    p(f"v_mov_b32 v{vPE}, 0")
    p(f"s_cmp_lg_u32 s{sW}, 0")
    p("s_cbranch_scc1 L_wtc")
    p(f"v_bfe_u32 v{va}, v{vL}, 3, 1")
    p(f"v_lshlrev_b32 v{va}, 12, v{va}")
    p(f"v_and_b32 v{vb}, 7, v{vL}")
    p(f"v_lshl_add_u32 v{va}, v{vb}, 7, v{va}")
    p(f"v_mov_b32 v{vb}, 1")
    p(f"s_lshl_b32 s{t0}, s{sTB}, 13")
    p(f"s_lshl_b32 s{t1}, s{sCB}, 10")
    p(f"s_add_u32 s{t0}, s{t0}, s{t1}")
    p(f"s_bfe_u32 s{t1}, s{sH}, 0x10002")
    p(f"s_lshl_b32 s{t1}, s{t1}, 3")
    p(f"s_add_u32 s{t1}, s{t1}, s{sI}")
    p(f"s_lshl_b32 s{t1}, s{t1}, 2")
    p(f"s_add_u32 s{t0}, s{t0}, s{t1}")
    p(f"s_add_u32 s{t0}, s{t0}, {FL3 + 4*F_WT}")
    p("s_mov_b64 exec, 0xffff")
    p(f"buffer_store_dword v{vb}, v{va}, {WS}, s{t0} offen sc1")
    p("s_mov_b64 exec, -1")
    p.label("L_wtc")
    p(f"v_and_b32 v{va}, 15, v{vL}")
    p(f"v_lshlrev_b32 v{va}, 2, v{va}")
    p(f"v_cmp_ne_u32 vcc, 1, v{vPE}")
    p(f"s_lshl_b32 s{t0}, s{sL}, 7")
    p(f"s_add_u32 s{t0}, s{t0}, {FL3 + 4*F_WT}")
    p("s_cbranch_vccz L_wtok")
    p(f"s_add_u32 s{t1}, s{sR}, 2")
    p(f"s_cmp_ge_u32 s{t1}, s{sN}")
    p("s_cbranch_scc1 L_wtb")
    p(f"buffer_load_dword v{vPE}, v{va}, {WS}, s{t0} offen sc1")
    p(f"s_setpc_b64 s[{LKB}:{LKB+1}]")
    p.seg("wtj2")
    p.label("L_wtb")
    poll_block(p, [(vPE, va, S_WS, f"s{t0}", 1)], "wt")
    p.label("L_wtok")
    p(f"s_mov_b32 s{sWOK}, 1")
    p.label("L_wtt")
    p(f"s_add_u32 s{t0}, s{sR}, {PFD}")
    p(f"s_cmp_lt_u32 s{t0}, s{sN}")
    p("s_cbranch_scc1 L_wtx")
    p(f"s_mov_b32 s{sWOK}, 2")
    if not X('NOPF'):
        p(f"s_mov_b32 s{sOUT}, 1")
        p(f"v_min_u32 v{vc}, 35, v{vL}")
        p(f"v_lshlrev_b32 v{vc}, 7, v{vc}")
        p(f"s_lshl_b32 s{t0}, s{sI}, 2")
        p(f"s_add_u32 s{t0}, s{t0}, s{sW4}")
        p(f"s_mul_i32 s{t0}, s{t0}, {36 * 128}")
        p(f"s_lshl_b32 s{t1}, s{sTB}, 2")
        p(f"s_add_u32 s{t1}, s{t1}, s{sCB}")
        p(f"s_mul_i32 s{t1}, s{t1}, {288 * 1024}")
        p(f"s_add_u32 s{t0}, s{t0}, s{t1}")
        p(f"s_add_u32 s{t0}, s{t0}, {WTO + 144 * 1024}")
        p(f"buffer_load_dword v{vPE}, v{vc}, {WS}, s{t0} offen sc1")
        p.cur[-1].nodst = True
    p.label("L_wtx")
    p(f"s_setpc_b64 s[{LKB}:{LKB+1}]")
    p.seg("wtp")
    p.label("L_wtp")
    p(f"v_lshrrev_b32 v{va}, 5, v{vL}")
    p(f"v_bfe_u32 v{vb}, v{vL}, 2, 2")
    p(f"v_lshl_add_u32 v{va}, v{va}, 2, v{vb}")
    p(f"v_lshlrev_b32 v{va}, 7, v{va}")
    p(f"v_bfe_u32 v{vc}, v{vL}, 4, 1")
    p(f"v_lshl_add_u32 v{va}, v{vc}, 5, v{va}")
    p(f"v_and_b32 v{vc}, 3, v{vL}")
    p(f"v_lshl_add_u32 v{va}, v{vc}, 3, v{va}")
    p(f"v_lshrrev_b32 v{vb}, 1, v{vb}")
    p(f"v_lshl_add_u32 v{va}, v{vb}, 6, v{va}")
    p(f"s_lshl_b32 s{t0}, s{sW4}, 12")
    p(f"s_add_u32 s{t0}, s{t0}, {MISC + 8192}")
    p(f"v_add_u32 v{va}, s{t0}, v{va}")
    p(f"v_xor_b32 v{vb}, 64, v{va}")
    for u, o in ((0, 0), (1, 2048), (2, 16384)):
        for ct in range(2):
            r = (XA, XA + 8, KV)[u] + 4 * ct
            p(f"ds_read_b64_tr_b16 v[{r}:{r+1}], v{vb if ct else va} offset:{o}")
            p(f"ds_read_b64_tr_b16 v[{r+2}:{r+3}], v{vb if ct else va} offset:{o + 1024}")
    p(f"s_bfe_u32 s{t0}, s{sH}, 0x10002")
    p(f"s_lshl_b32 s{t0}, s{t0}, 1")
    p(f"s_and_b32 s{t1}, s{sI}, 1")
    p(f"s_add_u32 s{t0}, s{t0}, s{t1}")
    p(f"s_mul_i32 s{t0}, s{t0}, 72")
    p(f"s_lshr_b32 s{t1}, s{sI}, 1")
    p(f"s_mul_i32 s{t1}, s{t1}, 3")
    p(f"s_add_u32 s{t0}, s{t0}, s{t1}")
    p(f"s_lshl_b32 s{t0}, s{t0}, 10")
    p(f"s_add_u32 s{t0}, s{t0}, s{sWT}")
    p(f"s_lshl_b32 s{t3}, s{sW4}, 3")
    pos = lambda st: (st // 3) * 12 + st % 3
    p(f"s_lshr_b32 s{t1}, {sum(pos(k) << (8 * k) for k in range(4)):#x}, s{t3}")
    p(f"s_lshr_b32 s{t2}, {sum(pos(k + 4) << (8 * k) for k in range(4)):#x}, s{t3}")
    for t_ in (t1, t2):
        p(f"s_and_b32 s{t_}, s{t_}, 0xff")
        p(f"s_lshl_b32 s{t_}, s{t_}, 10")
        p(f"s_add_u32 s{t_}, s{t_}, s{t0}")
    p(f"s_add_u32 s{t0}, s{t0}, {pos(8) * 1024}")
    p("s_waitcnt lgkmcnt(0)")
    for u, t_ in ((0, t1), (1, t2), (2, t0)):
        if u == 2:
            p(f"s_cmp_lg_u32 s{sW4}, 0")
            p("s_cbranch_scc1 L_wtq")
        for ct in range(2):
            if ct: p(f"s_add_u32 s{t_}, s{t_}, {36 * 1024}")
            p(f"buffer_store_dwordx4 {vr((XA, XA + 8, KV)[u] + 4 * ct)}, v{vST}, {WS}, s{t_} offen sc1")
    p.label("L_wtq")
    p("s_nop 1")
    p(f"s_setpc_b64 s[{LKB}:{LKB+1}]")
    RL = KV
    def fbase(dst):
        p(f"s_cmp_eq_u32 s{sJOB}, 1")
        p(f"s_cselect_b32 s{dst}, {FLG + 4*F_B}, {FLG + 4*F_K}" if False else f"s_cselect_b32 s{dst}, {4*F_B}, {4*F_K}")
        p(f"s_lshl_b32 s{t1}, s{sHP}, 11")
        p(f"s_add_u32 s{dst}, s{dst}, s{t1}")
        p(f"s_add_u32 s{dst}, s{dst}, {FLG}")
    p.seg("jpre")
    p.label("L_jpre")
    p(f"s_cmp_eq_u32 s{sJOB}, 2")
    p("s_cbranch_scc1 L_red")
    p(f"s_cmp_eq_u32 s{sJOB}, 4")
    p("s_cbranch_scc1 L_jpreb")
    grp_flag_addr()
    fbase(t0)
    p(f"buffer_load_dword v{vPK}, v{va}, {WS}, s{t0} offen sc1")
    p("s_branch L_jpreb")
    p.seg("red")
    p.label("L_red")
    p(f"s_lshl_b32 s{t0}, s{sW4}, 12")
    p(f"s_add_u32 s{t0}, s{t0}, {MISC + 8192}")
    p(f"v_add_u32 v{vb}, s{t0}, v{vST}")
    p(f"v_and_b32 v{vc}, 3, v{vL}")
    p(f"v_lshlrev_b32 v{vc}, 4, v{vc}")
    for k in range(4):
        p(f"ds_read_b128 {vr(RL + 4*k)}, v{vb} offset:{k * 1024}")
    red_slice_base(t0, KVT)
    p(f"s_lshl_b32 s{t1}, s{sHP}, 12")
    p(f"s_add_u32 s{t0}, s{t0}, s{t1}")
    p("s_waitcnt lgkmcnt(0)")
    for i in range(4):
        p(f"v_add_f32 v{RL+i}, v{RL+i}, v{RL+4+i}")
        p(f"v_add_f32 v{RL+8+i}, v{RL+8+i}, v{RL+12+i}")
    for i in range(4):
        p(f"v_add_f32 v{RL+i}, v{RL+i}, v{RL+8+i}")
    for sh in ("row_shr:4", "row_shr:8"):
        for i in range(4):
            p(f"v_add_f32_dpp v{RL+i}, v{RL+i}, v{RL+i} {sh} row_mask:0xf bank_mask:0xf bound_ctrl:0")
    for sw in ("v_permlane16_swap_b32", "v_permlane32_swap_b32"):
        for i in range(4):
            p(f"v_mov_b32 v{RL+4+i}, v{RL+i}")
        for i in range(4):
            p(f"{sw} v{RL+i}, v{RL+4+i}")
        for i in range(4):
            p(f"v_add_f32 v{RL+i}, v{RL+i}, v{RL+4+i}")
    p("s_mov_b64 exec, 0xf000")
    p(f"buffer_store_dwordx4 {vr(RL)}, v{vc}, {WS}, s{t0} offen sc1")
    p("s_mov_b64 exec, -1")
    p("s_branch L_jpreb")
    p.seg("jpost")
    p.label("L_jpost")
    p(f"s_cmp_eq_u32 s{sJOB}, 4")
    p("s_cbranch_scc1 L_oph")
    p("s_waitcnt vmcnt(17)")
    p(f"s_cmp_eq_u32 s{sJOB}, 2")
    p("s_cbranch_scc1 L_fk")
    p(f"v_cmp_ne_u32 vcc, 1, v{vPK}")
    fbase(t0)
    p("s_cbranch_vccz L_jok")
    poll_block(p, [(vPK, va, S_WS, f"s{t0}", 1)], "fb")
    p.label("L_jok")
    p(f"s_cmp_eq_u32 s{sJOB}, 3")
    p("s_cbranch_scc1 L_kvt")
    p(f"v_lshl_add_u32 v{vb}, v{vc}, 4, v{vb}")
    red_slice_base(t0, KVP)
    p(f"s_lshl_b32 s{t1}, s{sHP}, 18")
    p(f"s_add_u32 s{t0}, s{t0}, s{t1}")
    p(f"s_lshl_b32 s{t1}, s{sW4}, 12")
    p(f"s_add_u32 m0, s{t1}, {MISC + 8192}")
    for k in range(4):
        p(f"s_add_u32 s{t1}, s{t0}, {k * (65536 - 1024)}")
        p(f"buffer_load_dwordx4 v{vb}, {WS}, s{t1} offen offset:{k * 1024} sc1 lds")
    p("s_branch L_jpostb")
    p.label("L_kvt")
    p(f"s_lshl_b32 s{t1}, s{sW4}, 10")
    p(f"s_add_u32 m0, s{t1}, {MISC + 8192}")
    p(f"s_lshl_b32 s{t0}, s{sHP}, 12")
    p(f"s_add_u32 s{t0}, s{t0}, s{t1}")
    p(f"s_add_u32 s{t0}, s{t0}, {KVT}")
    p(f"buffer_load_dwordx4 v{vST}, {WS}, s{t0} offen sc1 lds")
    p("s_branch L_jpostb")
    p.label("L_fk")
    flag_store(va, vb, F_K, sW4)
    p("s_branch L_jpostb")
    p.seg("oph")
    p.label("L_oph")
    vn = vPK
    p(f"s_lshl_b32 s{t1}, s{sW4}, 11")
    p(f"s_add_u32 s{t1}, s{t1}, {MISC}")
    p(f"v_add_u32 v{vc}, s{t1}, v{vST}")
    p(f"v_add_u32 v{va}, {MISC}, v{vST}")
    for s in range(2):
        p(f"ds_read_b128 {vr(PQ + 4*s)}, v{vc} offset:{s*1024}")
    for q in range(4):
        p(f"ds_read_b128 {vr(KV + q*4)}, v{va} offset:{8192 + q*1024}")
    p("s_waitcnt lgkmcnt(0)")
    phi_inplace(PQ, 4, XA)
    phi_inplace(PQ + 4, 4, XA)
    gate_check(vgo, va, vb, True, "o")
    p(f"v_and_b32 v{va}, 16, v{vL}")
    p(f"v_cmp_ne_u32 vcc, 0, v{va}")
    for i in range(8):
        p(f"v_cvt_pk_bf16_f32 v{XA+i}, v{KV+2*i}, v{KV+2*i+1}")
    for i in range(8):
        p(f"v_cndmask_b32 v{KV+i}, v{XA+i}, 0, vcc")
    for i in range(8):
        p(f"v_cndmask_b32 v{KV+8+i}, 0, v{XA+i}, vcc")
    p("s_nop 1")
    p(f"{MF} {vr(XA,16)}, {vr(KV+4)}, {vr(PQ)}, 0")
    p(f"{MF} {vr(XA,16)}, {vr(KV+12)}, {vr(PQ+4)}, {vr(XA,16)}")
    p(f"s_lshl_b32 s{t0}, s{sRB}, 2")
    p(f"s_add_u32 s{t0}, s{t0}, s{sW4}")
    p(f"s_mul_i32 s{t0}, s{t0}, 288")
    p(f"s_lshl_b32 s{t1}, s{sHP}, 1")
    p(f"s_add_u32 s{t0}, s{t0}, s{t1}")
    p(f"s_add_u32 s{t0}, s{t0}, 256")
    p(f"s_lshl_b32 s{t0}, s{t0}, 10")
    p(f"s_add_u32 s{t0}, s{t0}, {AWS}")
    p("s_nop 7")
    p(f"v_add_f32 v{va}, 0x358637bd, v{XA}")
    p(f"v_add_f32 v{vb}, 0x358637bd, v{XA+8}")
    p(f"{MF} {vr(XA,16)}, {vr(KV)}, {vr(PQ)}, 0")
    p(f"{MF} {vr(XA,16)}, {vr(KV+8)}, {vr(PQ+4)}, {vr(XA,16)}")
    p(f"v_rcp_f32 v{va}, v{va}")
    p(f"v_rcp_f32 v{vb}, v{vb}")
    p(f"v_sub_f32 v{vgo}, 2.0, v{vgo}")
    p(f"v_mul_f32 v{va}, v{va}, v{vgo}")
    p(f"v_mul_f32 v{vb}, v{vb}, v{vgo}")
    p("s_nop 8")
    for i in range(16):
        p(f"v_mul_f32 v{XA+i}, v{XA+i}, v{va if i < 8 else vb}")
    for i in range(8):
        p(f"v_cvt_pk_bf16_f32 v{KV+i}, v{XA+2*i}, v{XA+1+2*i}")
    for s in range(2):
        p(f"buffer_store_dwordx4 {vr(KV + 4*s)}, v{vST}, {WS}, s{t0} offen offset:{s*1024} sc1")
    p("s_nop 1")
    p("s_branch L_jpostb")
    p.seg("hook1")
    p.label("L_hook1")
    p(f"s_mov_b32 s{sHK2}, 4")
    p(f"s_mov_b32 s{sHK}, 0")
    p(f"s_setpc_b64 s[{LKB}:{LKB+1}]")
    for k in (1, 2):
        p.seg(f"h2c{k}")
        p.label(f"L_h2c{k}")
        p(f"s_sub_u32 s{sHK2}, s{sHK2}, 1")
        p(f"s_cmp_lt_u32 s{sHK2}, 2")
        p(f"s_cbranch_scc1 L_h2d{k}")
        stash_stores([k - 1])
        p(f"s_branch L_h2b{k}")
        p.label(f"L_h2d{k}")
        stash_stores([k + 1])
        p(f"s_branch L_h2b{k}")
    p.seg("tramps")
    for k, sb in tramps:
        p.label(f"L_tr{k}")
        p(f"s_call_b64 s[{LKA}:{LKA+1}], L_rare{sb}")
        p(f"s_branch L_bk{k}")
    for sb in range(2):
        p.seg(f"rare{sb}")
        p.label(f"L_rare{sb}")
        for qg in range(2):
            p(f"v_log_f32 v{vU+4+qg}, v{LQ_+4*qg}")
        p(f"s_mov_b32 s{t4}, 0x5f800000")
        p("s_nop 15")
        maxtree(sb, vU)
        for qg in range(2):
            p(f"v_cmp_gt_f32 s[{SM[qg]}:{SM[qg]+1}], s{t4}, v{LQ_+4*qg}")
        p("s_nop 0")
        for qg in range(2):
            p(f"v_cndmask_b32 v{vU+qg}, v{vU+qg}, v{vU+4+qg}, s[{SM[qg]}:{SM[qg]+1}]")
        for qg in range(2):
            p(f"v_ceil_f32 v{vU+qg}, v{vU+qg}")
        for qg in range(2):
            p(f"v_max_f32 v{vU+qg}, 0, v{vU+qg}")
        for qg in range(2):
            p(f"v_exp_f32 v{vU+2+qg}, -v{vU+qg}")
        for i in range(32):
            p(f"v_sub_f32 v{S(0)+i}, v{S(0)+i}, v{vU + ((i >> 3) & 1)}")
        for i in range(8):
            p(f"v_sub_f32 v{NEGM+i}, v{NEGM+i}, v{vU + (i >> 2)}")
        for i in range(64):
            p(f"v_mul_f32 v{i}, v{i}, v{vU + 2 + (i >> 5)}")
        for qg in range(2):
            p(f"v_mul_f32 v{LQ_+4*qg}, v{LQ_+4*qg}, v{vU+2+qg}")
        seq = [sm_text(t, None, sb)[0] for t in SEQ if ISN(t)]
        seq += [sm_text(t, sb, sb ^ 1)[0] for t in SEQ[:SEQ.index("CHK")] if t[0] in "ecEC" and t != "CMP"]
        for t in seq:
            p(t)
            p("s_nop 0")
        p("s_nop 1")
        for qg in range(2):
            p(msum(sb, qg, vU + 4 * qg))
        p("s_nop 7")
        for qg in range(2):
            p(f"v_cndmask_b32 v{LQ_+4*qg}, v{vU+4*qg}, v{LQ_+4*qg}, s[{SM[qg]}:{SM[qg]+1}]")
        p("s_nop 1")
        p(f"s_setpc_b64 s[{LKA}:{LKA+1}]")
    errs = []
    G0 = ["pro", "g0_pro"] + [f"g0_s{s}" for s in range(16)] + ["g0_tr", "apro"]
    G1 = ["pro", "g1_pro"] + [f"g1_s{s}" for s in range(16)] + ["g1_tr", "apro"]
    CC = ["cpro2", "cmain", "cred", "cred0", "cfin"]
    post = ["tail", "epi", "epi2", "help0", "help", "hook", "hookld", "hookl2", "hookl3", "wtj", "helpw", "help", "hx", "cpro"] + CC
    H0 = ["hook", "idle"]
    errs += p.check(G0 + ["pro3", "pro3L"] + H0 + ["pro3L_b"] + post)
    errs += p.check(G1 + ["pro0", "it1", "it2", "it3", "hook", "hook1", "it3_b", "it0", "it1", "it2", "it3L", "it3L_b"] + post)
    errs += p.check(["apro", "pro1", "it2", "it3"] + H0 + ["it3_b", "it0", "it1", "it2", "it3", "hook", "hookld", "hookl2", "hookl3", "it3_b", "it0"])
    errs += p.check(["apro", "pro2", "it3L"] + H0 + ["it3L_b", "tail", "epi", "epi1", "cpro2", "cmain", "cred", "cred1", "cfin"])
    errs += p.check(["it2", "it3", "hook", "hookld", "hookl2", "hookl3", "wtp", "it3_b", "it0"])
    errs += p.check(["it2", "it3", "hook", "hookld", "hookl2", "hookl3", "wtj2", "it3_b", "it0"])
    errs += p.check(["apro", "pro3"] + H0 + ["pro3_b", "it0", "it1"])
    for z in (["red", "hookl2", "jpost"], ["jpre", "hookl2", "jpost"], ["hookl2", "oph"]):
        errs += p.check(["it2", "it3", "hook", "hookld"] + z + ["hookl3", "it3_b", "it0"])
    for sb in range(2):
        errs += p.check([f"rare{sb}"])
    return p, errs


def main():
    global STAMPS
    if '--stamps' in sys.argv:
        STAMPS = True; sys.argv.remove('--stamps')
    hdr = open(f'cdna_kernels/{NAME}.s.ref').read().split("; Override launch")[0]
    p, errs = gen()
    for e in errs[:12]:
        print("HAZARD", e[-230:])
    n = "fused_kernel"
    out = [hdr, f"; @launch kernel={n} grid=(256,1,1) block=(512,1,1) lds=163840\n",
           '.amdgcn_target "amdgcn-amd-amdhsa--gfx950"\n.text\n',
           f".globl {n}\n.p2align 8\n.type {n},@function\n{n}:\n", p.text(),
           '.section .rodata,"a"\n', f""".p2align 6
.amdhsa_kernel {n}
  .amdhsa_next_free_vgpr 256
  .amdhsa_next_free_sgpr 102
  .amdhsa_accum_offset 256
  .amdhsa_group_segment_fixed_size 0
  .amdhsa_kernarg_size 104
  .amdhsa_user_sgpr_count 2
  .amdhsa_user_sgpr_kernarg_segment_ptr 1
  .amdhsa_system_sgpr_workgroup_id_x 1
.end_amdhsa_kernel
"""]
    dst = sys.argv[1] if len(sys.argv) > 1 else f'cdna_kernels/{NAME}.s'
    open(dst, 'w').write("".join(out))
    print("wrote", dst, "errs", len(errs))

if __name__ == '__main__':
    main()
```
